```python
import torch

def _softmax(x, axis=-1):
    return torch.softmax(x, dim=axis)

def _gelu(x):
    return torch.nn.functional.gelu(x, approximate='tanh')

def _silu(x):
    return torch.nn.functional.silu(x)

def _sigmoid(x):
    return torch.sigmoid(x)

def _layernorm(x, axis=-1, eps=1e-05):
    m = x.mean(dim=axis, keepdim=True)
    v = x.var(dim=axis, keepdim=True, unbiased=False)
    return (x - m) / torch.sqrt(v + eps)

def _scatter_add(tgt, idx, src, axis=0):
    return tgt.clone().index_add_(axis, idx, src)

def _segment_sum(src, seg, n):
    out = torch.zeros((n,) + src.shape[1:], dtype=src.dtype)
    return out.index_add_(0, seg, src)

def _pad(x, pw):
    flat = tuple((v for pair in reversed(pw) for v in pair))
    return torch.nn.functional.pad(x, flat)
kernel_name = 'sequential_preLN__memory_aug_recurrent_mem_tr__glu_gated_swiglu__prompt'

def setup_inputs():

    _w = lambda a: (lambda t: t.to(torch.bfloat16) if t.is_floating_point() else t)(torch.as_tensor(a))

    def _A_setup():
        B, S, Dm = (1, 2048, 640)
        H, Dh = (32, 128)
        M, seg = (8, 32)
        seg = min(seg, S)
        S = S // seg * seg
        return {'x': _w((lambda *s: torch.randn(*s, dtype=torch.bfloat16) * 0.05)(B, S, Dm)), 'mem0': _w((lambda *s: torch.randn(*s, dtype=torch.bfloat16) * 0.2)(B, M, Dm)), 'Wq': _w((lambda *s: torch.randn(*s, dtype=torch.bfloat16) * 1.6)(Dm, H, Dh) * Dm ** (-0.5)), 'Wk': _w((lambda *s: torch.randn(*s, dtype=torch.bfloat16) * 1.6)(Dm, H, Dh) * Dm ** (-0.5)), 'Wv': _w((lambda *s: torch.randn(*s, dtype=torch.bfloat16) * 0.2)(Dm, H, Dh) * Dm ** (-0.5)), 'Wo': _w((lambda *s: torch.randn(*s, dtype=torch.bfloat16) * 0.2)(H, Dh, Dm) * (H * Dh) ** (-0.5)), 'seg_len': seg}
    _A_in = _A_setup()

    def _B_setup():
        B, S, D, F = (1, 2048, 640, 1728)
        return {'x': _w((lambda *s: torch.randn(*s, dtype=torch.bfloat16) * 0.05)(B, S, D)), 'w1': _w((lambda *s: torch.randn(*s, dtype=torch.bfloat16) * 0.2)(D, F) * (2.0 / D) ** 0.5), 'w3': _w((lambda *s: torch.randn(*s, dtype=torch.bfloat16) * 0.2)(D, F) * (2.0 / D) ** 0.5), 'w2': _w((lambda *s: torch.randn(*s, dtype=torch.bfloat16) * 0.2)(F, D) * (2.0 / F) ** 0.5)}
    _B_in = _B_setup()
    return {'A_x': _A_in['x'], 'A_mem0': _A_in['mem0'], 'A_Wq': _A_in['Wq'], 'A_Wk': _A_in['Wk'], 'A_Wv': _A_in['Wv'], 'A_Wo': _A_in['Wo'], 'A_seg_len': _A_in['seg_len'], 'B_x': _B_in['x'], 'B_w1': _B_in['w1'], 'B_w3': _B_in['w3'], 'B_w2': _B_in['w2']}

def reference(A_x, A_mem0, A_Wq, A_Wk, A_Wv, A_Wo, A_seg_len, B_x, B_w1, B_w3, B_w2):

    def _A_ref(x, mem0, Wq, Wk, Wv, Wo, seg_len):
        B, S, Dm = x.shape
        H, Dh = (Wq.shape[1], Wq.shape[2])
        M = mem0.shape[1]
        scale = Dh ** (-0.5)
        n_seg = S // seg_len
        L = M + seg_len
        idx = torch.arange(L)
        mask = (idx[:, None] < M) | (idx[:, None] >= idx[None, :])
        mem = mem0
        outs = []
        for s in range(n_seg):
            xs = x[:, s * seg_len:(s + 1) * seg_len, :].clone()
            h = torch.concatenate([mem, xs], axis=1)
            q = torch.einsum('btd,dhe->bhte', h, Wq)
            k = torch.einsum('btd,dhe->bhte', h, Wk)
            v = torch.einsum('btd,dhe->bhte', h, Wv)
            scores = torch.einsum('bhqe,bhke->bhqk', q, k) * scale
            scores = torch.where(mask[None, None], scores, -1000000000.0)
            p = _softmax(scores, axis=-1)
            o = torch.einsum('bhqk,bhke->bhqe', p, v)
            o = torch.einsum('bhte,hed->btd', o, Wo)
            mem = o[:, :M, :].clone()
            outs.append(o[:, M:, :])
        return torch.concatenate(outs, axis=1)

    def _B_ref(x, w1, w3, w2):
        gate = torch.einsum('bsd,df->bsf', x, w1)
        up = torch.einsum('bsd,df->bsf', x, w3)
        h = _silu(gate) * up
        out = torch.einsum('bsf,fd->bsd', h, w2)
        return out
    x = A_x
    h = x + _A_ref(_layernorm(x, axis=-1), A_mem0, A_Wq, A_Wk, A_Wv, A_Wo, A_seg_len)
    h2 = h + _B_ref(_layernorm(h, axis=-1), B_w1, B_w3, B_w2)
    return h2
```

```python
from common import *
CS=0x3e0293ee
import struct
def f2u(x): return struct.unpack('<I',struct.pack('<f',x))[0]
CS=f2u(128**-0.5*1.4426950408889634)
NEG=0xff800000
def xred(k,op,r,t):
    k(f'v_mov_b32 v{t}, v{r}','s_nop 1',f'v_permlane32_swap_b32 v{t}, v{r}','s_nop 1',f'{op} v{r}, v{r}, v{t}',
      f'v_mov_b32 v{t}, v{r}','s_nop 1',f'v_permlane16_swap_b32 v{t}, v{r}','s_nop 1',f'{op} v{r}, v{r}, v{t}')
def attn_core(k, Q, KT, KM, VT, VM, S, P, O, T, tiles, diag, MB, MM, pre_S=False, R=None):
    f=(lambda b,n=4: vr(b,n)) if R is None else R
    for ks in range(4):
        k(f'v_mfma_f32_16x16x32_bf16 {vr(S+8)}, {vr(KM+4*ks)}, {vr(Q+4*ks)}, {vr(S+8) if ks else 0}')
        if not pre_S:
            for t in tiles:
                k(f'v_mfma_f32_16x16x32_bf16 {vr(S+4*t)}, {f(KT+16*t+4*ks)}, {vr(Q+4*ks)}, {vr(S+4*t) if ks else 0}')
    k('s_nop 7')
    vals=[S+4*t+i for t in tiles for i in range(4)]
    if diag is not None:
        for i in range(4): k(f'v_add_f32 v{S+4*diag+i}, v{S+4*diag+i}, v{MB+i}')
    for i in range(4): k(f'v_add_f32 v{S+8+i}, v{S+8+i}, v{MM}')
    vals+= [S+8+i for i in range(4)]
    m=T;
    k(f'v_max3_f32 v{m}, v{vals[0]}, v{vals[1]}, v{vals[2]}')
    rest=vals[3:]
    while rest:
        if len(rest)>=2: k(f'v_max3_f32 v{m}, v{m}, v{rest[0]}, v{rest[1]}'); rest=rest[2:]
        else: k(f'v_max_f32 v{m}, v{m}, v{rest[0]}'); rest=rest[1:]
    xred(k,'v_max_f32',m,T+1)
    k(f'v_mul_f32 v{m}, 0x{CS:x}, v{m}')
    k(f's_mov_b32 s39, 0x{CS:x}')
    for v in vals: k(f'v_fma_f32 v{v}, v{v}, s39, -v{m}')
    for v in vals: k(f'v_exp_f32 v{v}, v{v}')
    k('s_nop 0')
    for t in range(2):
        if t in tiles: k(f'v_cvt_pk_bf16_f32 v{P+2*t}, v{S+4*t}, v{S+4*t+1}',f'v_cvt_pk_bf16_f32 v{P+2*t+1}, v{S+4*t+2}, v{S+4*t+3}')
        else: k(f'v_mov_b32 v{P+2*t}, 0',f'v_mov_b32 v{P+2*t+1}, 0')
    k(f'v_cvt_pk_bf16_f32 v{P+4}, v{S+8}, v{S+9}',f'v_cvt_pk_bf16_f32 v{P+5}, v{S+10}, v{S+11}')
    s=T+2
    k(f'v_add_f32 v{s}, v{vals[0]}, v{vals[1]}')
    for et in range(8):
        k(f'v_mfma_f32_16x16x32_bf16 {vr(O+4*et)}, {f(VT+4*et)}, {vr(P)}, 0')
        if 2+et<len(vals): k(f'v_add_f32 v{s}, v{s}, v{vals[2+et]}')
    for v in vals[10:]: k(f'v_add_f32 v{s}, v{s}, v{v}')
    for et in range(8):
        k(f'v_mfma_f32_16x16x16_bf16 {vr(O+4*et)}, {vr(VM+2*et,2)}, {vr(P+4,2)}, {vr(O+4*et)}')
    xred(k,'v_add_f32',s,T+1)
    k(f'v_rcp_f32 v{s}, v{s}','s_nop 3')
    for i in range(32): k(f'v_mul_f32 v{O+i}, v{O+i}, v{s}')
def lane_consts(k, MB, MM, t):
    k(f'v_and_b32 v{t}, 15, v0',f'v_lshrrev_b32 v{t+1}, 4, v0',f'v_lshlrev_b32 v{t+1}, 2, v{t+1}',f'v_mov_b32 v{t+2}, 0x{NEG:x}')
    if MB is not None:
        for i in range(4):
            k(f'v_add_u32 v{t+3}, {i}, v{t+1}',f'v_cmp_gt_u32 vcc, v{t+3}, v{t}','s_nop 1',f'v_cndmask_b32 v{MB+i}, 0, v{t+2}, vcc')
    k(f'v_cmp_le_u32 vcc, 32, v0','s_nop 1',f'v_cndmask_b32 v{MM}, 0, v{t+2}, vcc')
def gen_tattn():
    k=K('tattn_kernel',vgpr=224,sgpr=48)
    k('s_cmp_ge_u32 s2, 512','s_cbranch_scc1 tattn_done')
    k.srd(8,'ws',WS_BYTES)
    k('v_lshrrev_b32 v1, 6, v0','s_nop 0','v_readfirstlane_b32 s3, v1','v_and_b32 v0, 63, v0','v_lshlrev_b32 v2, 4, v0')
    k('s_lshl_b32 s4, s2, 2','s_add_u32 s4, s4, s3','s_lshr_b32 s5, s4, 5','s_and_b32 s6, s4, 31')
    Q=16; KT=Q+32; KM=KT+32; VT=KM+16; VM=VT+32; S=VM+16; P=S+12; O=P+8; T=8; MB=4; MM=3
    assert O+32<=224 and VM%4==0
    lane_consts(k,MB,MM,T)
    k('s_lshl_b32 s12, s5, 9','s_lshl_b32 s13, s6, 2','s_add_u32 s12, s12, s13','s_lshl_b32 s12, s12, 10',f's_add_u32 s12, s12, {OFF["QK"]}')
    for qt in range(2):
        k(f's_add_u32 s14, s12, {qt*256*KB}')
        for ks in range(4): k(f'buffer_load_dwordx4 {vr(Q+16*qt+4*ks)}, v2, s[8:11], s14 offen offset:{ks*KB}')
    for kt in range(2):
        k(f's_add_u32 s14, s12, {(kt*256+128)*KB}')
        for ks in range(4): k(f'buffer_load_dwordx4 {vr(KT+16*kt+4*ks)}, v2, s[8:11], s14 offen offset:{ks*KB}')
    k(f's_mul_i32 s15, s4, 6144',f's_add_u32 s15, s15, {OFF["QKVM"]}')
    k('v_and_b32 v12, 7, v0','v_lshrrev_b32 v13, 4, v0','v_lshlrev_b32 v12, 4, v12','v_lshl_add_u32 v12, v13, 7, v12')
    k('v_and_b32 v14, 15, v0','v_and_b32 v13, 1, v13','v_lshlrev_b32 v14, 4, v14','v_lshl_add_u32 v14, v13, 8, v14')
    for ks in range(4): k(f'buffer_load_dwordx4 {vr(KM+4*ks)}, v12, s[8:11], s15 offen offset:{2048+ks*512}')
    k('s_lshl_b32 s16, s4, 13',f's_add_u32 s16, s16, {OFF["VT"]}')
    for et in range(8):
        k(f's_add_u32 s17, s16, {(et//4)*4096}') if et%4==0 else None
        k(f'buffer_load_dwordx4 {vr(VT+4*et)}, v2, s[8:11], s17 offen offset:{(et%4)*KB}')
    k('s_add_u32 s15, s15, 4096')
    for ep in range(4): k(f'buffer_load_dwordx4 {vr(VM+4*ep)}, v14, s[8:11], s15 offen offset:{ep*512}')
    k('s_waitcnt vmcnt(0)')
    for qt in range(2):
        attn_core(k,Q+16*qt,KT,KM,VT,VM,S,P,O,T,[0] if qt==0 else [0,1],qt,MB,MM)
        k('s_lshl_b32 s14, s5, 1',f's_add_u32 s14, s14, {qt}','s_lshl_b32 s14, s14, 7','s_add_u32 s14, s14, s13','s_lshl_b32 s14, s14, 10',f's_add_u32 s14, s14, {OFF["O"]}')
        for c in range(4):
            r0=O+8*c; t=Q+16*qt+4*c
            k(f'v_cvt_pk_bf16_f32 v{t}, v{r0}, v{r0+1}',f'v_cvt_pk_bf16_f32 v{t+1}, v{r0+2}, v{r0+3}',
              f'v_cvt_pk_bf16_f32 v{t+2}, v{r0+4}, v{r0+5}',f'v_cvt_pk_bf16_f32 v{t+3}, v{r0+6}, v{r0+7}',
              f'buffer_store_dwordx4 {vr(t)}, v2, s[8:11], s14 offen offset:{c*KB}')
    k('tattn_done:')
    return k
```

```python
from common import *
from attn import *
NSTEP=64
SPIN=1<<16
def chain_body(k, fast, tag):
    LS='' if fast else ' sc1'
    M=64; Q=64; KM=80; VM=96; S=112; P=124; O=132; T=8; MM=3; OB=164; D=180; PT=188
    L=lambda n: f'ch_{tag}_{n}'
    lane_consts(k,None,MM,T)
    k('v_and_b32 v12, 7, v0','v_lshrrev_b32 v13, 4, v0','v_lshlrev_b32 v12, 4, v12','v_lshl_add_u32 v12, v13, 7, v12')
    k('v_and_b32 v14, 15, v0','v_and_b32 v15, 1, v13','v_lshlrev_b32 v14, 4, v14','v_lshl_add_u32 v14, v15, 8, v14')
    k('v_lshrrev_b32 v18, 5, v0','v_bfe_u32 v19, v0, 3, 2','v_and_b32 v20, 7, v0',
      'v_lshlrev_b32 v16, 10, v18','v_lshl_add_u32 v16, v19, 8, v16','v_lshl_add_u32 v16, v20, 4, v16',
      'v_lshlrev_b32 v17, 7, v19','v_lshl_add_u32 v17, v20, 4, v17','v_lshl_add_u32 v17, v18, 3, v17')
    k('v_mov_b32 v21, -2')
    k('v_and_b32 v18, 8, v0','v_cmp_eq_u32 s[50:51], 0, v18','s_mov_b32 s52, -1','s_mov_b32 s53, 0')
    k('s_lshr_b32 s42, s41, 3','s_and_b32 s43, s41, 7','s_lshl_b32 s44, s40, 2','s_add_u32 s45, s44, s42')
    k('s_cmp_eq_u32 s3, 3',f's_cbranch_scc1 {L("nowa")}')
    k('s_lshl_b32 s12, s3, 8','s_lshl_b32 s13, s45, 3','s_add_u32 s12, s12, s13','s_add_u32 s12, s12, s43',f's_mul_i32 s12, s12, {20*KB}',f's_add_u32 s12, s12, {OFF["WQKV"]}')
    for ks in range(20):
        if ks%4==0 and ks: k('s_add_u32 s12, s12, 4096')
        k(f'buffer_load_dwordx4 {ar(4*ks)}, v2, s[8:11], s12 offen offset:{(ks%4)*KB}')
    k(f'{L("nowa")}:')
    k('s_add_u32 s46, s44, s3')
    k('s_cmp_ge_u32 s41, 20',f's_cbranch_scc1 {L("nowo")}')
    for t in range(2):
        k('s_lshl_b32 s12, s41, 1',f's_add_u32 s12, s12, {t}','s_lshl_b32 s12, s12, 7','s_lshl_b32 s13, s46, 2','s_add_u32 s12, s12, s13','s_lshl_b32 s12, s12, 10',f's_add_u32 s12, s12, {OFF["WO"]}')
        for c in range(4): k(f'buffer_load_dwordx4 {ar(80+16*t+4*c)}, v2, s[8:11], s12 offen offset:{c*KB}')
    k('s_lshl_b32 s54, s46, 12',f's_add_u32 s54, s54, {OFF["QK"]+128*KB}','s_lshl_b32 s55, s46, 13',f's_add_u32 s55, s55, {OFF["VT"]}')
    def pf_k():
        for kt in range(2):
            k(f's_add_u32 s12, s54, {kt*256*KB}')
            for ks in range(4): k(f'buffer_load_dwordx4 {ar(112+16*kt+4*ks)}, v2, s[8:11], s12 offen offset:{ks*KB}')
        k(f's_add_u32 s54, s54, {512*KB}')
    def pf_v():
        for hf in range(2):
            k(f's_add_u32 s12, s55, {hf*4096}')
            for e in range(4): k(f'buffer_load_dwordx4 {ar(144+16*hf+4*e)}, v2, s[8:11], s12 offen offset:{e*KB}')
        k(f's_add_u32 s55, s55, {256*KB}')
    pf_k(); pf_v()
    k(f'{L("nowo")}:')
    k(f's_mul_i32 s56, s40, 10240',f's_add_u32 s56, s56, {OFF["MEM"]}')
    k(f's_mul_i32 s57, s45, 6144',f's_add_u32 s57, s57, {OFF["QKVM"]}')
    k(f's_mul_i32 s58, s46, 6144',f's_add_u32 s58, s58, {OFF["QKVM"]}')
    k(f's_lshl_b32 s59, s41, 10',f's_add_u32 s59, s59, {OFF["PART"]}')
    k('s_lshr_b32 s12, s43, 1','s_lshl_b32 s12, s12, 9','s_and_b32 s13, s43, 1','s_lshl_b32 s13, s13, 3','s_add_u32 s12, s12, s13','s_lshl_b32 s13, s3, 11','s_add_u32 s12, s12, s13')
    k('s_cmp_eq_u32 s3, 2',f's_cbranch_scc1 {L("vo")}','v_add_u32 v22, s12, v12',f's_branch {L("vo2")}',f'{L("vo")}:','v_add_u32 v22, s12, v14',f'{L("vo2")}:')
    k('s_mov_b32 s60, 0','s_waitcnt vmcnt(0)')
    k(f'{L("loop")}:')
    k('s_cmp_eq_u32 s3, 3',f's_cbranch_scc1 {L("B")}')
    for sw in (0,1):
        if sw==0: k('s_cmp_eq_u32 s3, 2',f's_cbranch_scc1 {L("Av")}')
        else: k(f'{L("Av")}:')
        k(f's_mov_b32 s61, {SPIN}',f'{L("Ap%d"%sw)}:')
        for ks in range(20):
            if ks%8==0: k(f's_add_u32 s12, s56, {ks*512}')
            k(f'buffer_load_dwordx4 {vr(M+4*ks)}, v12, s[8:11], s12 offen offset:{(ks%8)*512} sc1')
        for ks in range(20):
            k(f's_waitcnt vmcnt({19-ks})')
            A,B=(ar(4*ks),vr(M+4*ks)) if sw==0 else (vr(M+4*ks),ar(4*ks))
            k(f'v_mfma_f32_16x16x32_bf16 {vr(D)}, {A}, {B}, {vr(D) if ks else 0}')
            if ks==0: k(f'v_max_u32 v{T}, v{M}, v{M+2}')
            else: k(f'v_max3_u32 v{T}, v{T}, v{M+4*ks}, v{M+4*ks+2}')
        k(f'v_cmp_eq_u32 vcc, -1, v{T}','s_sub_u32 s61, s61, 1','s_cmp_eq_u32 s61, 0',f's_cbranch_scc1 {L("Ad%d"%sw)}',f's_cbranch_vccnz {L("Ap%d"%sw)}',f'{L("Ad%d"%sw)}:')
        k('s_nop 3',f'v_cvt_pk_bf16_f32 v{PT}, v{D}, v{D+1}',f'v_cvt_pk_bf16_f32 v{PT+1}, v{D+2}, v{D+3}',f'v_min_u32 v{PT}, v{PT}, v21')
        k(f's_mov_b64 exec, s[{50 if sw==0 else 52}:{51 if sw==0 else 53}]',f'buffer_store_dwordx2 {vr(PT,2)}, v22, s[8:11], s57 offen{LS}','s_mov_b64 exec, -1')
        if sw==0: k(f's_branch {L("B")}')
    k(f'{L("B")}:',f's_cmp_eq_u32 s60, {NSTEP-1}',f's_cbranch_scc1 {L("end")}')
    k('s_cmp_ge_u32 s41, 20',f's_cbranch_scc1 {L("next")}')
    k(f's_mov_b32 s61, {SPIN}',f'{L("Bp")}:')
    for ks in range(4): k(f'buffer_load_dwordx4 {vr(Q+4*ks)}, v12, s[8:11], s58 offen offset:{ks*512} sc1')
    for ks in range(4): k(f'buffer_load_dwordx4 {vr(KM+4*ks)}, v12, s[8:11], s58 offen offset:{2048+ks*512} sc1')
    k('s_add_u32 s12, s58, 4096')
    for ep in range(4): k(f'buffer_load_dwordx4 {vr(VM+4*ep)}, v14, s[8:11], s12 offen offset:{ep*512} sc1')
    for i in range(12):
        k(f's_waitcnt vmcnt({11-i})')
        b=Q+4*i
        if i==0: k(f'v_max_u32 v{T}, v{b}, v{b+2}')
        else: k(f'v_max3_u32 v{T}, v{T}, v{b}, v{b+2}')
        if i<4:
            for t in range(2): k(f'v_mfma_f32_16x16x32_bf16 {vr(S+4*t)}, {ar(112+16*t+4*i)}, {vr(Q+4*i)}, {vr(S+4*t) if i else 0}')
    k(f'v_cmp_eq_u32 vcc, -1, v{T}','s_sub_u32 s61, s61, 1','s_cmp_eq_u32 s61, 0',f's_cbranch_scc1 {L("Bd")}',f's_cbranch_vccnz {L("Bp")}',f'{L("Bd")}:')
    pf_k()
    attn_core(k,Q,112,KM,144,VM,S,P,O,T,[0,1],None,None,MM,pre_S=True,R=lambda b,n=4: ar(b,n))
    pf_v()
    for c in range(4):
        r0=O+8*c; t=OB+4*c
        k(f'v_cvt_pk_bf16_f32 v{t}, v{r0}, v{r0+1}',f'v_cvt_pk_bf16_f32 v{t+1}, v{r0+2}, v{r0+3}',
          f'v_cvt_pk_bf16_f32 v{t+2}, v{r0+4}, v{r0+5}',f'v_cvt_pk_bf16_f32 v{t+3}, v{r0+6}, v{r0+7}')
    k('s_nop 0')
    for c in range(4):
        for t in range(2): k(f'v_mfma_f32_16x16x32_bf16 {vr(D+4*t)}, {ar(80+16*t+4*c)}, {vr(OB+4*c)}, {vr(D+4*t) if c else 0}')
    k('s_and_b32 s12, s60, 1','s_lshl_b32 s12, s12, 13','s_lshl_b32 s13, s3, 11','s_add_u32 s13, s13, s12','v_add_u32 v18, s13, v2','s_nop 4')
    k(f'ds_write_b128 v18, {vr(D)}',f'ds_write_b128 v18, {vr(D+4)} offset:1024','s_waitcnt lgkmcnt(0)','s_barrier')
    k('s_cmp_eq_u32 s3, 3',f's_cbranch_scc0 {L("next")}')
    k('v_add_u32 v18, s12, v16')
    for hh in range(4): k(f'ds_read_b128 {vr(M+4*hh)}, v18 offset:{hh*2048}')
    k('s_waitcnt lgkmcnt(0)')
    for q in range(4): k(f'v_add_f32 v{M+q}, v{M+q}, v{M+4+q}',f'v_add_f32 v{M+8+q}, v{M+8+q}, v{M+12+q}',f'v_add_f32 v{M+q}, v{M+q}, v{M+8+q}')
    k(f'v_min_u32 v{M}, v{M}, v21',f's_mul_i32 s12, s40, {20*KB}','s_add_u32 s12, s12, s59',f'buffer_store_dwordx4 {vr(M)}, v2, s[8:11], s12 offen sc1')
    k(f's_mov_b32 s61, {SPIN}',f'{L("Cp")}:','s_mov_b32 s12, s59')
    for x in range(8):
        k(f'buffer_load_dwordx4 {vr(M+16+4*x)}, v2, s[8:11], s12 offen sc1',f's_add_u32 s12, s12, {20*KB}')
    k('s_waitcnt vmcnt(0)')
    b=M+16
    k(f'v_max3_u32 v{T}, v{b}, v{b+4}, v{b+8}',f'v_max3_u32 v{T}, v{T}, v{b+12}, v{b+16}',f'v_max3_u32 v{T}, v{T}, v{b+20}, v{b+24}',f'v_max_u32 v{T}, v{T}, v{b+28}')
    k(f'v_cmp_eq_u32 vcc, -1, v{T}','s_sub_u32 s61, s61, 1','s_cmp_eq_u32 s61, 0',f's_cbranch_scc1 {L("Cd")}',f's_cbranch_vccnz {L("Cp")}',f'{L("Cd")}:')
    for q in range(4):
        k(f'v_add_f32 v{b+q}, v{b+q}, v{b+4+q}',f'v_add_f32 v{b+8+q}, v{b+8+q}, v{b+12+q}',f'v_add_f32 v{b+16+q}, v{b+16+q}, v{b+20+q}',f'v_add_f32 v{b+24+q}, v{b+24+q}, v{b+28+q}',
          f'v_add_f32 v{b+q}, v{b+q}, v{b+8+q}',f'v_add_f32 v{b+16+q}, v{b+16+q}, v{b+24+q}',f'v_add_f32 v{b+q}, v{b+q}, v{b+16+q}')
    k(f'v_cvt_pk_bf16_f32 v{PT}, v{b}, v{b+1}',f'v_cvt_pk_bf16_f32 v{PT+1}, v{b+2}, v{b+3}',f'v_min_u32 v{PT}, v{PT}, v21')
    k('s_lshl_b32 s12, s41, 9','s_add_u32 s12, s12, s56',f's_add_u32 s12, s12, {8*10240}',f'buffer_store_dwordx2 {vr(PT,2)}, v17, s[8:11], s12 offen{LS}')
    k(f'{L("next")}:')
    k(f's_add_u32 s56, s56, {8*10240}',f's_add_u32 s57, s57, {32*6144}',f's_add_u32 s58, s58, {32*6144}',f's_add_u32 s59, s59, {8*20*KB}','s_add_u32 s60, s60, 1',f's_branch {L("loop")}')
    k(f'{L("end")}:','s_endpgm')
def gen_chain(use_fast=False):
    k=K('chain_kernel',vgpr=192,agpr=176,sgpr=72)
    k('s_cmp_ge_u32 s2, 256','s_cbranch_scc1 chain_done')
    k.srd(8,'ws',WS_BYTES)
    k('v_lshrrev_b32 v1, 6, v0','s_nop 0','v_readfirstlane_b32 s3, v1','v_and_b32 v0, 63, v0','v_lshlrev_b32 v2, 4, v0')
    if use_fast:
        k.srd(64,'dbg',256)
        k('s_getreg_b32 s40, hwreg(HW_REG_XCC_ID)','s_and_b32 s40, s40, 7')
        k('s_cmp_eq_u32 s3, 0','s_cbranch_scc0 ch_reg_wait')
        k('v_mov_b32 v4, 1','s_lshl_b32 s12, s40, 2','v_mov_b32 v5, s12','s_mov_b64 exec, 1',
          'buffer_atomic_add v4, v5, s[64:67], 0 offen sc0 sc1','s_waitcnt vmcnt(0)',
          'v_mov_b32 v6, 1','v_mov_b32 v7, 32','buffer_atomic_add v6, v7, s[64:67], 0 offen sc0 sc1','s_waitcnt vmcnt(0)',
          's_mov_b64 exec, -1')
        k(f's_mov_b32 s61, {SPIN}','v_lshlrev_b32 v8, 2, v0','ch_reg_poll:','buffer_load_dword v9, v8, s[64:67], 0 offen sc1','s_waitcnt vmcnt(0)',
          'v_readlane_b32 s12, v9, 8','s_sub_u32 s61, s61, 1','s_cmp_eq_u32 s61, 0','s_cbranch_scc1 ch_reg_got','s_cmp_lt_u32 s12, 256','s_cbranch_scc1 ch_reg_poll','ch_reg_got:')
        k('v_cmp_ne_u32 vcc, 32, v9','s_nop 1','s_and_b32 s12, vcc_lo, 0xff','v_readfirstlane_b32 s13, v4','v_readfirstlane_b32 s14, v6',
          's_cmp_eq_u32 s12, 0','s_cselect_b32 s15, 1, 0',
          'v_mov_b32 v10, s13','v_mov_b32 v11, s14','v_mov_b32 v9, s15','v_mov_b32 v8, 16384','ds_write_b96 v8, v[9:11]','s_waitcnt lgkmcnt(0)')
        k('ch_reg_wait:','s_barrier','v_mov_b32 v8, 16384','ds_read_b96 v[12:14], v8','s_waitcnt lgkmcnt(0)',
          'v_readfirstlane_b32 s15, v12','v_readfirstlane_b32 s41, v13','v_readfirstlane_b32 s14, v14','s_cmp_eq_u32 s15, 1','s_cbranch_scc0 ch_slow')
        chain_body(k,True,'f')
        k('ch_slow:','s_lshr_b32 s40, s14, 5','s_and_b32 s41, s14, 31')
    else:
        k('s_lshr_b32 s40, s2, 5','s_and_b32 s41, s2, 31')
    chain_body(k,False,'s')
    k('chain_done:')
    return k,16384+64
```

```python
KB=1024
OFF={}
_o=0
def _al(name,size):
    global _o
    OFF[name]=_o; _o+=(size+4095)//4096*4096
_al('WQKV',768*20*KB); _al('WO',40*128*KB); _al('W13',216*20*KB); _al('W2',40*54*KB)
_al('XN',128*20*KB); _al('QK',128*256*KB); _al('VT',64*32*8*KB)
_al('MEM',65*8*10240); _al('QKVM',64*32*6144); _al('PART',64*8*20*KB); _al('FILLEND',4096)
_al('O',128*128*KB); _al('H',2048*1280); _al('HN',128*20*KB); _al('HH',128*54*KB)
_al('TR',256*4*64*32)
WS_BYTES=268435456
ARG={'x':0,'mem0':8,'Wq':16,'Wk':24,'Wv':32,'Wo':40,'w1':64,'w3':72,'w2':80,'out':88,'dbg':96,'ws':104}
class K:
    def __init__(s,name,vgpr=256,agpr=0,sgpr=102):
        s.name=name; s.L=[]; s.vgpr=vgpr; s.agpr=agpr; s.sgpr=sgpr; s.n=0
    def __call__(s,*a):
        for x in a:
            for l in x.split('\n'):
                l=l.strip()
                if l: s.L.append(('' if l.endswith(':') else '  ')+l)
    def lab(s,p='L'):
        s.n+=1; return f'{s.name}_{p}{s.n}'
    def srd(s,d,arg,size,tmp=None,add=0):
        s(f's_load_dwordx2 s[{d}:{d+1}], s[0:1], {ARG[arg]}','s_waitcnt lgkmcnt(0)')
        if add: s(f's_add_u32 s{d}, s{d}, {add}',f's_addc_u32 s{d+1}, s{d+1}, 0')
        s(f's_and_b32 s{d+1}, s{d+1}, 0xffff',f's_mov_b32 s{d+2}, {size}',f's_mov_b32 s{d+3}, 0x20000')
    def text(s):
        acc=(s.vgpr+3)//4*4
        tot=acc+s.agpr if s.agpr else s.vgpr
        h=f'.text\n.globl {s.name}\n.p2align 8\n.type {s.name},@function\n{s.name}:\n'
        t=f'''\n  s_endpgm
.section .rodata,"a"
.p2align 6
.amdhsa_kernel {s.name}
  .amdhsa_next_free_vgpr {tot}
  .amdhsa_next_free_sgpr {s.sgpr}
  .amdhsa_accum_offset {acc}
  .amdhsa_group_segment_fixed_size 0
  .amdhsa_kernarg_size 112
  .amdhsa_user_sgpr_count 2
  .amdhsa_user_sgpr_kernarg_segment_ptr 1
  .amdhsa_system_sgpr_workgroup_id_x 1
.end_amdhsa_kernel
'''
        return h+'\n'.join(s.L)+t
def vr(b,n=4): return f'v[{b}:{b+n-1}]'
def ar(b,n=4): return f'a[{b}:{b+n-1}]'
```

```python
from common import *
def gemm_lds(k, NT, MT, WN, WM, KS, wbase, abase, NB, swapped, epi, NBUF=4, idsub=0, end='s_endpgm'):
    ntw=NT//WN; mtw=MT//WM; F=NT+MT; FPW=F//8; assert F%8==0 and WN*WM==8
    ST=F*KB; D=NBUF-1
    k(f's_sub_u32 s4, s2, {idsub}')
    if NB&(NB-1)==0:
        k(f's_and_b32 s5, s4, {NB-1}',f's_lshr_b32 s6, s4, {NB.bit_length()-1}')
    else:
        k(f's_mul_i32 s6, s4, {(65536+NB-1)//NB}','s_lshr_b32 s6, s6, 16',f's_mul_i32 s5, s6, {NB}','s_sub_u32 s5, s4, s5')
    k('v_lshrrev_b32 v1, 6, v0','s_nop 0','v_readfirstlane_b32 s3, v1','v_and_b32 v0, 63, v0','v_lshlrev_b32 v2, 4, v0')
    for i in range(FPW):
        l1=k.lab(); l2=k.lab()
        k(f's_mul_i32 s7, s3, {FPW}',f's_add_u32 s7, s7, {i}',f's_cmp_lt_u32 s7, {NT}',f's_cbranch_scc0 {l1}',
          f's_mul_i32 s12, s5, {NT}','s_add_u32 s12, s12, s7',f's_mul_i32 s12, s12, {KS*KB}',f's_add_u32 s{24+i}, s12, {wbase}',f's_branch {l2}',f'{l1}:',
          f's_mul_i32 s12, s6, {MT}','s_add_u32 s12, s12, s7',f's_sub_u32 s12, s12, {NT}',f's_mul_i32 s12, s12, {KS*KB}',f's_add_u32 s{24+i}, s12, {abase}',f'{l2}:')
    k(f's_mul_i32 s13, s3, {FPW*KB}')
    k(f's_lshr_b32 s14, s3, {WM.bit_length()-1}',f's_and_b32 s15, s3, {WM-1}')
    k(f's_mul_i32 s16, s14, {ntw*KB}',f's_mul_i32 s17, s15, {mtw*KB}',f's_add_u32 s17, s17, {NT*KB}',
      'v_add_u32 v3, s16, v2','v_add_u32 v4, s17, v2','v_mov_b32 v5, v2','v_add_u32 v6, 0x10000, v3','v_add_u32 v7, 0x10000, v4')
    def issue(s):
        b=s%NBUF
        for i in range(FPW):
            k(f's_add_u32 m0, s13, {b*ST+i*KB}','s_nop 0',f'buffer_load_dwordx4 v5, s[8:11], s{24+i} offen lds')
        k('v_add_u32 v5, 1024, v5')
    WF=16; AF=WF+4*ntw; ACC=AF+4*mtw
    k.vgpr=max(k.vgpr,ACC+4*ntw*mtw)
    for s in range(min(D,KS)): issue(s)
    for s in range(KS):
        rem=min(D-1,KS-1-s)
        k(f's_waitcnt vmcnt({rem*FPW})','s_barrier')
        if s+D<KS: issue(s+D)
        b=(s%NBUF)*ST
        order=[('a',j) for j in range(mtw)]+[('w',i) for i in range(ntw)]
        order=[order[0],order[mtw]]+order[1:mtw]+order[mtw+1:]
        for t,i in order:
            off=b+i*KB; hi=off>=65536
            if hi: off-=65536
            if t=='a': k(f'ds_read_b128 {vr(AF+4*i)}, {"v7" if hi else "v4"} offset:{off}')
            else: k(f'ds_read_b128 {vr(WF+4*i)}, {"v6" if hi else "v3"} offset:{off}')
        pos={x:n for n,x in enumerate(order)}; tot=len(order); last=-1
        for i in range(ntw):
            for j in range(mtw):
                need=max(pos[('w',i)],pos[('a',j)])
                if need>last: k(f's_waitcnt lgkmcnt({tot-1-need})'); last=need
                acc=vr(ACC+4*(i*mtw+j)); c=acc if s>0 else '0'
                A,B=(vr(WF+4*i),vr(AF+4*j)) if not swapped else (vr(AF+4*j),vr(WF+4*i))
                k(f'v_mfma_f32_16x16x32_bf16 {acc}, {A}, {B}, {c}')
    k('s_nop 15')
    k(f's_mul_i32 s18, s5, {NT}',f's_mul_i32 s12, s14, {ntw}','s_add_u32 s18, s18, s12',
      f's_mul_i32 s19, s6, {MT}',f's_mul_i32 s12, s15, {mtw}','s_add_u32 s19, s19, s12')
    T=WF
    def a(i,j): return ACC+4*(i*mtw+j)
    if epi=='qk':
        for j in range(mtw):
            for c in range(ntw//2):
                r0,r1=a(2*c,j),a(2*c+1,j); t=T+4*((j*ntw//2+c)%4)
                k(f'v_cvt_pk_bf16_f32 v{t}, v{r0}, v{r0+1}',f'v_cvt_pk_bf16_f32 v{t+1}, v{r0+2}, v{r0+3}',
                  f'v_cvt_pk_bf16_f32 v{t+2}, v{r1}, v{r1+1}',f'v_cvt_pk_bf16_f32 v{t+3}, v{r1+2}, v{r1+3}',
                  f's_add_u32 s12, s19, {j}','s_lshl_b32 s12, s12, 8','s_lshr_b32 s20, s18, 1','s_add_u32 s12, s12, s20',f's_add_u32 s12, s12, {c}',
                  's_lshl_b32 s12, s12, 10',f's_add_u32 s12, s12, {OFF["QK"]}',
                  f'buffer_store_dwordx4 {vr(t)}, v2, s[8:11], s12 offen')
    elif epi=='v':
        for jp in range(mtw//2):
            for i in range(ntw):
                r0,r1=a(i,2*jp),a(i,2*jp+1); t=T+4*((jp*ntw+i)%4)
                k(f'v_cvt_pk_bf16_f32 v{t}, v{r0}, v{r0+1}',f'v_cvt_pk_bf16_f32 v{t+1}, v{r0+2}, v{r0+3}',
                  f'v_cvt_pk_bf16_f32 v{t+2}, v{r1}, v{r1+1}',f'v_cvt_pk_bf16_f32 v{t+3}, v{r1+2}, v{r1+3}',
                  's_lshr_b32 s12, s19, 1',f's_add_u32 s12, s12, {jp}','s_lshl_b32 s12, s12, 8','s_add_u32 s12, s12, s18',f's_add_u32 s12, s12, {i}',
                  's_lshl_b32 s12, s12, 10',f's_add_u32 s12, s12, {OFF["VT"]}',
                  f'buffer_store_dwordx4 {vr(t)}, v2, s[8:11], s12 offen')
    elif epi=='swiglu':
        assert ntw==4
        k('s_mov_b32 s21, 0xbfb8aa3b')
        for j in range(mtw):
            t=T+4*(j%4)
            for tt in range(2):
                g=a(tt,j); u=a(2+tt,j)
                for i in range(4):
                    k(f'v_mul_f32 v6, s21, v{g+i}','v_exp_f32 v6, v6','s_nop 0','v_add_f32 v6, 1.0, v6','v_rcp_f32 v6, v6',
                      f'v_mul_f32 v{g+i}, v{g+i}, v{u+i}',f'v_mul_f32 v{g+i}, v{g+i}, v6')
                k(f'v_cvt_pk_bf16_f32 v{t+2*tt}, v{g}, v{g+1}',f'v_cvt_pk_bf16_f32 v{t+2*tt+1}, v{g+2}, v{g+3}')
            k(f's_add_u32 s12, s19, {j}','s_mul_i32 s12, s12, 54','s_lshr_b32 s20, s18, 2','s_add_u32 s12, s12, s20',
              's_lshl_b32 s12, s12, 10',f's_add_u32 s12, s12, {OFF["HH"]}',
              f'buffer_store_dwordx4 {vr(t)}, v2, s[8:11], s12 offen')
    k(end)
    return NBUF*ST
def gen_g1():
    k=K('qkv_kernel',vgpr=64,sgpr=40)
    k('s_cmp_ge_u32 s2, 512','s_cbranch_scc1 qkv_done')
    k.srd(8,'ws',WS_BYTES)
    k('s_cmp_ge_u32 s2, 256','s_cbranch_scc1 qkv_v')
    l1=gemm_lds(k,16,16,2,4,20,OFF['WQKV'],OFF['XN'],32,False,'qk',NBUF=4)
    k('qkv_v:')
    l2=gemm_lds(k,16,8,4,2,20,OFF['WQKV']+512*20*KB,OFF['XN'],16,True,'v',NBUF=4,idsub=256)
    k('qkv_done:')
    return k,max(l1,l2)
def gen_g3():
    k=K('ffn1_kernel',vgpr=64,sgpr=40)
    k('s_cmp_ge_u32 s2, 216','s_cbranch_scc1 ffn1_done')
    k.srd(8,'ws',WS_BYTES)
    l=gemm_lds(k,8,16,2,4,20,OFF['W13'],OFF['HN'],27,False,'swiglu',NBUF=4)
    k('ffn1_done:')
    return k,l

def gen_direct(name, KS, wbase, abase, res_arg, res_off, out_arg, out_off):
    NT,MT,NS=5,4,4
    k=K(name,vgpr=256,sgpr=40)
    k('s_cmp_ge_u32 s2, 256',f's_cbranch_scc1 {name}_done')
    k.srd(8,'ws',WS_BYTES)
    k('s_and_b32 s5, s2, 7','s_lshl_b32 s5, s5, 2','s_lshr_b32 s6, s2, 3','s_and_b32 s6, s6, 3','s_add_u32 s6, s5, s6','s_lshr_b32 s5, s2, 5')
    k('v_lshrrev_b32 v1, 6, v0','s_nop 0','v_readfirstlane_b32 s3, v1','v_and_b32 v0, 63, v0','v_lshlrev_b32 v2, 4, v0')
    for i in range(NT): k(f's_mul_i32 s12, s5, {NT}',f's_add_u32 s12, s12, {i}',f's_mul_i32 s12, s12, {KS*KB}',f's_add_u32 s{24+i}, s12, {wbase}')
    for j in range(MT): k(f's_mul_i32 s12, s6, {MT}',f's_add_u32 s12, s12, {j}',f's_mul_i32 s12, s12, {KS*KB}',f's_add_u32 s{24+NT+j}, s12, {abase}')
    k('s_lshl_b32 s12, s3, 10','v_add_u32 v5, s12, v2')
    k(f's_sub_u32 s13, {KS+3}, s3','s_lshr_b32 s13, s13, 2')
    FR=8; ACC=FR+NS*36
    def issue(st):
        for i in range(NT+MT): k(f'buffer_load_dwordx4 {vr(FR+st*36+4*i)}, v5, s[8:11], s{24+i} offen')
        k('v_add_u32 v5, 4096, v5')
    for i in range(80): k(f'v_mov_b32 v{ACC+i}, 0')
    for st in range(NS-1): issue(st)
    lp=f'{name}_lp'; fin=f'{name}_fin'
    k(f'{lp}:')
    for st in range(NS):
        issue((st+NS-1)%NS)
        k(f's_waitcnt vmcnt({(NS-1)*9})')
        for i in range(NT):
            for j in range(MT):
                acc=vr(ACC+4*(i*MT+j))
                k(f'v_mfma_f32_16x16x32_bf16 {acc}, {vr(FR+st*36+4*i)}, {vr(FR+st*36+4*(NT+j))}, {acc}')
        k('s_sub_u32 s13, s13, 1','s_cmp_eq_u32 s13, 0',f's_cbranch_scc1 {fin}')
    k(f's_branch {lp}',f'{fin}:','s_nop 15','s_waitcnt vmcnt(0)')
    for j in range(MT):
        sk=k.lab('sk')
        k(f's_cmp_eq_u32 s3, {j}',f's_cbranch_scc1 {sk}',f's_sub_u32 s12, s3, {j+1}','s_and_b32 s12, s12, 3',f's_add_u32 s12, s12, {j*3}','s_mul_i32 s12, s12, 5120','v_add_u32 v3, s12, v2')
        for i in range(NT): k(f'ds_write_b128 v3, {vr(ACC+4*(i*MT+j))} offset:{i*KB}')
        k(f'{sk}:')
    k('s_waitcnt lgkmcnt(0)','s_barrier')
    R=FR
    for j in range(MT):
        sk=k.lab('sk')
        k(f's_cmp_eq_u32 s3, {j}',f's_cbranch_scc0 {sk}')
        for i in range(NT):
            for q in range(4): k(f'v_mov_b32 v{R+4*i+q}, v{ACC+4*(i*MT+j)+q}')
        k(f'{sk}:')
    k('s_mul_i32 s12, s3, 15360','v_add_u32 v3, s12, v2')
    S=R+20
    for sidx in range(3):
        for i in range(NT): k(f'ds_read_b128 {vr(S+20*sidx+4*i)}, v3 offset:{(sidx*5+i)*KB}')
    k.srd(12,res_arg,2048*1280,add=res_off)
    k.srd(16,out_arg,2048*1280,add=out_off)
    k('s_lshl_b32 s22, s6, 2','s_add_u32 s22, s22, s3',f's_mul_i32 s22, s22, {16*1280}',
      'v_and_b32 v3, 15, v0','v_mul_u32_u24 v3, 1280, v3','v_lshrrev_b32 v4, 4, v0','v_lshl_add_u32 v3, v4, 4, v3','v_add_u32 v3, s22, v3')
    X=S+60
    for i in range(NT):
        k(f's_mul_i32 s20, s5, {NT}',f's_add_u32 s20, s20, {i}','s_lshr_b32 s21, s20, 1','s_lshl_b32 s21, s21, 6','s_and_b32 s20, s20, 1','s_lshl_b32 s20, s20, 3',f's_add_u32 s{24+i}, s20, s21',
          f'buffer_load_dwordx2 {vr(X+2*i,2)}, v3, s[12:15], s{24+i} offen')
    k('s_waitcnt lgkmcnt(0)')
    for sidx in range(3):
        for q in range(20): k(f'v_add_f32 v{R+q}, v{R+q}, v{S+20*sidx+q}')
    k('s_waitcnt vmcnt(0)')
    for i in range(NT):
        r=R+4*i; x=X+2*i
        k(f'v_cvt_pk_bf16_f32 v{r}, v{r}, v{r+1}',f'v_cvt_pk_bf16_f32 v{r+1}, v{r+2}, v{r+3}')
        for d in range(2):
            k(f'v_lshlrev_b32 v4, 16, v{r+d}',f'v_and_b32 v5, 0xffff0000, v{r+d}',f'v_lshlrev_b32 v6, 16, v{x+d}',f'v_and_b32 v7, 0xffff0000, v{x+d}',
              'v_add_f32 v4, v4, v6','v_add_f32 v5, v5, v7',f'v_cvt_pk_bf16_f32 v{x+d}, v4, v5')
        k(f'buffer_store_dwordx2 {vr(x,2)}, v3, s[16:19], s{24+i} offen')
    k(f'{name}_done:')
    return k,61440
```

```python
from common import *
def ln_wave(k, src_srd, src_off_s, dst_off_s, pfx=''):
    k('v_and_b32 v1, 15, v0','v_lshrrev_b32 v2, 4, v0',
      'v_mul_u32_u24 v3, 1280, v1','v_lshl_add_u32 v3, v2, 4, v3',
      'v_lshlrev_b32 v4, 4, v0')
    for ks in range(20):
        k(f'buffer_load_dwordx4 {vr(8+4*ks)}, v3, s[{src_srd}:{src_srd+3}], s{src_off_s} offen offset:{ks*64}')
    k('v_mov_b32 v5, 0','v_mov_b32 v6, 0')
    for ks in range(20):
        k(f's_waitcnt vmcnt({19-ks})')
        for d in range(4):
            r=8+4*ks+d
            k(f'v_lshlrev_b32 v90, 16, v{r}',f'v_and_b32 v91, 0xffff0000, v{r}','v_add_f32 v5, v5, v90','v_add_f32 v6, v6, v91')
    k('v_add_f32 v5, v5, v6')
    def xred(r):
        k(f'v_mov_b32 v90, v{r}','s_nop 1',f'v_permlane32_swap_b32 v90, v{r}','s_nop 1',f'v_add_f32 v{r}, v{r}, v90',
          f'v_mov_b32 v90, v{r}','s_nop 1',f'v_permlane16_swap_b32 v90, v{r}','s_nop 1',f'v_add_f32 v{r}, v{r}, v90')
    xred(5)
    k('v_mul_f32 v5, 0x3acccccd, v5')
    k('v_mov_b32 v6, 0','v_mov_b32 v7, 0')
    for r in range(8,88):
        k(f'v_lshlrev_b32 v90, 16, v{r}',f'v_and_b32 v91, 0xffff0000, v{r}','v_sub_f32 v90, v90, v5','v_sub_f32 v91, v91, v5',
          'v_fmac_f32 v6, v90, v90','v_fmac_f32 v7, v91, v91')
    k('v_add_f32 v6, v6, v7')
    xred(6)
    k('v_mov_b32 v7, 0x3727c5ac','v_fmac_f32 v7, 0x3acccccd, v6','v_rsq_f32 v7, v7','s_nop 0')
    for ks in range(20):
        for d in range(4):
            r=8+4*ks+d
            k(f'v_lshlrev_b32 v90, 16, v{r}',f'v_and_b32 v91, 0xffff0000, v{r}','v_sub_f32 v90, v90, v5','v_sub_f32 v91, v91, v5',
              'v_mul_f32 v90, v90, v7','v_mul_f32 v91, v91, v7',f'v_cvt_pk_bf16_f32 v{r}, v90, v91')
        k(f's_add_u32 s20, s{dst_off_s}, {ks*1024}',
          f'buffer_store_dwordx4 {vr(8+4*ks)}, v4, s[8:11], s20 offen')

SEGS=[
 ('Wq',4096,20,256,20,OFF['WQKV'],2,0),('Wk',4096,20,256,20,OFF['WQKV']+256*20*KB,2,0),('Wv',4096,20,256,20,OFF['WQKV']+512*20*KB,2,0),
 ('Wo',640,128,40,16,OFF['WO'],2,0),('w1',1728,20,108,20,OFF['W13'],4,0),('w3',1728,20,108,20,OFF['W13'],4,2),('w2',640,54,40,18,OFF['W2'],2,0)]
FILL_WG=64*KB
def gen_k0():
    k=K('prep_kernel',vgpr=96,sgpr=40)
    k.srd(8,'ws',WS_BYTES)
    k('v_lshrrev_b32 v1, 6, v0','s_nop 0','v_readfirstlane_b32 s3, v1','v_and_b32 v0, 63, v0')
    start=0
    k('s_mov_b32 s4, s2')
    for (arg,N,KS,NT,KBLK,dst,DM,DO) in SEGS:
        nb=KS//KBLK; cnt=NT*nb
        nxt=k.lab('seg');
        k(f's_cmp_ge_u32 s4, {cnt}',f's_cbranch_scc1 {nxt}')
        k.srd(12,arg,KS*32*N*2)
        if nb==1: k('s_mov_b32 s5, s4','s_mov_b32 s6, 0')
        elif nb==8: k('s_lshr_b32 s5, s4, 3','s_and_b32 s6, s4, 7')
        else: k('s_mul_i32 s5, s4, 0x5556','s_lshr_b32 s5, s5, 16','s_mul_i32 s6, s5, 3','s_sub_u32 s6, s4, s6')
        k(f's_mul_i32 s6, s6, {KBLK}','s_add_u32 s7, s6, s3',f's_add_u32 s6, s6, {KBLK}')
        k('s_lshr_b32 s16, s5, 1','s_and_b32 s17, s5, 1','s_lshl_b32 s18, s16, 6','s_lshl_b32 s19, s17, 3','s_add_u32 s18, s18, s19',
          f's_mul_i32 s19, s16, {DM}','s_add_u32 s19, s19, s17',f's_add_u32 s19, s19, {DO}',f's_mul_i32 s19, s19, {KS*KB}',f's_add_u32 s19, s19, {dst}')
        k('v_and_b32 v1, 15, v0','v_lshrrev_b32 v2, 4, v0','v_lshrrev_b32 v3, 2, v1','v_and_b32 v1, 3, v1',
          'v_lshlrev_b32 v3, 4, v3','v_lshl_add_u32 v3, v1, 1, v3',f's_mov_b32 s21, {8*N*2}','v_mul_lo_u32 v2, v2, s21','v_add_u32 v3, v3, v2',
          'v_lshlrev_b32 v4, 4, v0')
        lp=k.lab('lp');
        k(f'{lp}:',f's_mul_i32 s20, s7, {32*N*2}','s_add_u32 s20, s20, s18')
        for j in range(8):
            k(f'buffer_load_ushort v{12+j}, v3, s[12:15], s20 offen',f's_add_u32 s20, s20, {N*2}')
        k('s_lshl_b32 s22, s7, 10','s_add_u32 s22, s22, s19','s_waitcnt vmcnt(0)')
        for j in range(4): k(f'v_lshl_or_b32 v{8+j}, v{13+2*j}, 16, v{12+2*j}')
        k(
          'buffer_store_dwordx4 v[8:11], v4, s[8:11], s22 offen','s_add_u32 s7, s7, 4','s_cmp_lt_u32 s7, s6',f's_cbranch_scc1 {lp}','s_endpgm')
        k(f'{nxt}:',f's_sub_u32 s4, s4, {cnt}')
        start+=cnt
    nxt=k.lab('seg')
    k('s_cmp_ge_u32 s4, 32',f's_cbranch_scc1 {nxt}')
    k.srd(12,'x',2048*1280)
    k('s_lshl_b32 s5, s4, 2','s_add_u32 s5, s5, s3',f's_mul_i32 s6, s5, {16*1280}',f's_mul_i32 s7, s5, {20*KB}',f's_add_u32 s7, s7, {OFF["XN"]}')
    ln_wave(k,12,6,7)
    k('s_endpgm',f'{nxt}:','s_sub_u32 s4, s4, 32'); start+=32
    nxt=k.lab('seg')
    k('s_cmp_ge_u32 s4, 1',f's_cbranch_scc1 {nxt}')
    k.srd(12,'mem0',8*1280)
    k('v_and_b32 v1, 7, v0','v_lshrrev_b32 v2, 3, v0','v_mul_u32_u24 v3, 1280, v1','v_lshl_add_u32 v3, v2, 4, v3','v_lshlrev_b32 v4, 4, v0')
    for i in range(10): k(f'buffer_load_dwordx4 {vr(8+4*i)}, v3, s[12:15], 0 offen offset:{i*128}')
    k(f's_mul_i32 s5, s3, {2*10240}',f's_add_u32 s5, s5, {OFF["MEM"]}','s_waitcnt vmcnt(0)')
    for g in range(2):
        for i in range(10):
            k(f'buffer_store_dwordx4 {vr(8+4*i)}, v4, s[8:11], s5 offen',f's_add_u32 s5, s5, 1024')
    k('s_endpgm',f'{nxt}:','s_sub_u32 s4, s4, 1'); start+=1
    f0=OFF['MEM']+8*10240; fn=(OFF['FILLEND']-f0+FILL_WG-1)//FILL_WG
    k(f's_cmp_ge_u32 s4, {fn}','s_cbranch_scc1 prep_done')
    k.srd(12,'ws',OFF['FILLEND']-f0,add=f0)
    k(f's_mul_i32 s5, s4, {FILL_WG}','s_lshl_b32 s6, s3, 10','s_add_u32 s5, s5, s6','v_lshlrev_b32 v4, 4, v0')
    for i in range(4): k(f'v_mov_b32 v{8+i}, -1')
    for i in range(16): k('buffer_store_dwordx4 v[8:11], v4, s[12:15], s5 offen','s_add_u32 s5, s5, 4096')
    k('prep_done:')
    start+=fn
    return k,start
def gen_ln():
    k=K('ln_kernel',vgpr=96,sgpr=40)
    k('s_cmp_ge_u32 s2, 128','s_cbranch_scc1 ln_done')
    k.srd(8,'ws',WS_BYTES)
    k(f's_mul_i32 s6, s2, {16*1280}',f's_add_u32 s6, s6, {OFF["H"]}',f's_mul_i32 s7, s2, {20*KB}',f's_add_u32 s7, s7, {OFF["HN"]}')
    ln_wave(k,8,6,7)
    k('ln_done:')
    return k
```

```python
import sys
from common import *
import k0,gemm,attn,chain
def build(fast=False, upto=99):
    ks=[]
    k,n=k0.gen_k0(); ks.append((k,n,256,0))
    k,l=gemm.gen_g1(); ks.append((k,512,512,l))
    k,l=chain.gen_chain(fast); ks.append((k,256,256,l))
    k=attn.gen_tattn(); ks.append((k,512,256,0))
    k,l=gemm.gen_direct('wo_kernel',128,OFF['WO'],OFF['O'],'x',0,'ws',OFF['H']); ks.append((k,256,256,l))
    k=k0.gen_ln(); ks.append((k,128,64,0))
    k,l=gemm.gen_g3(); ks.append((k,216,512,l))
    k,l=gemm.gen_direct('ffn2_kernel',54,OFF['W2'],OFF['HH'],'ws',OFF['H'],'out',0); ks.append((k,256,256,l))
    ks=ks[:upto]
    hdr=open('sequential_preLN__memory_aug_recurrent_mem_tr__glu_gated_swiglu__prompt.s.ref').read().split('; Override')[0]
    for k,g,b,l in ks: hdr+=f'; @launch kernel={k.name} grid=({g},1,1) block=({b},1,1) lds={l}\n'
    hdr+='.amdgcn_target "amdgcn-amd-amdhsa--gfx950"\n'
    return hdr+'\n'.join(k.text() for k,_,_,_ in ks)
if __name__=='__main__':
    fast='fast' in sys.argv
    out=sys.argv[1]
    open(out,'w').write(build(fast))
```

```python
from common import *
from attn import *
NSTEP=64
SPIN=1<<16
TRACE=False
CSLEEP=0
NOPF=0
PSLEEP=5
WARM=2
PIPE=1
PIPEA=0
BSLEEP=3
def chain_body(k, fast, tag):
    def ts(i):
        if TRACE: k(f's_memtime s[{72+2*i}:{73+2*i}]')
    LS='' if fast else ' sc1'
    started=[False]
    M=64; Q=192; KM=208; VM=224; S=112; P=124; O=132; T=8; MM=3; OB=164; D=180; PT=188; ONE=240; SM=244; MB0=16448; MF=96
    L=lambda n: f'ch_{tag}_{n}'
    lane_consts(k,None,MM,T)
    k('v_and_b32 v12, 7, v0','v_lshrrev_b32 v13, 4, v0','v_lshlrev_b32 v12, 4, v12','v_lshl_add_u32 v12, v13, 7, v12')
    k('v_and_b32 v14, 15, v0','v_and_b32 v15, 1, v13','v_lshlrev_b32 v14, 4, v14','v_lshl_add_u32 v14, v15, 8, v14')
    k('v_lshrrev_b32 v18, 5, v0','v_bfe_u32 v19, v0, 3, 2','v_and_b32 v20, 7, v0',
      'v_lshlrev_b32 v16, 10, v18','v_lshl_add_u32 v16, v19, 8, v16','v_lshl_add_u32 v16, v20, 4, v16',
      'v_lshlrev_b32 v17, 7, v19','v_lshl_add_u32 v17, v20, 4, v17','v_lshl_add_u32 v17, v18, 3, v17')
    k('v_mov_b32 v21, -2')
    for i in range(4): k(f'v_mov_b32 v{56+i}, -1')
    k('v_and_b32 v18, 8, v0','v_cmp_eq_u32 s[50:51], 0, v18','s_mov_b32 s52, -1','s_mov_b32 s53, 0')
    k('s_lshr_b32 s42, s41, 3','s_and_b32 s43, s41, 7','s_lshl_b32 s44, s40, 2','s_add_u32 s45, s44, s42')
    k('s_cmp_eq_u32 s3, 3',f's_cbranch_scc1 {L("nowa")}')
    k('s_lshl_b32 s12, s3, 8','s_lshl_b32 s13, s45, 3','s_add_u32 s12, s12, s13','s_add_u32 s12, s12, s43',f's_mul_i32 s12, s12, {20*KB}',f's_add_u32 s12, s12, {OFF["WQKV"]}')
    for ks in range(20):
        if ks%4==0 and ks: k('s_add_u32 s12, s12, 4096')
        k(f'buffer_load_dwordx4 {ar(4*ks)}, v2, s[8:11], s12 offen offset:{(ks%4)*KB}')
    k(f'{L("nowa")}:')
    k('s_add_u32 s46, s44, s3')
    k('s_cmp_ge_u32 s41, 20',f's_cbranch_scc1 {L("nowo")}')
    for t in range(2):
        k('s_lshl_b32 s12, s41, 1',f's_add_u32 s12, s12, {t}','s_lshl_b32 s12, s12, 7','s_lshl_b32 s13, s46, 2','s_add_u32 s12, s12, s13','s_lshl_b32 s12, s12, 10',f's_add_u32 s12, s12, {OFF["WO"]}')
        for c in range(4): k(f'buffer_load_dwordx4 {ar(80+16*t+4*c)}, v2, s[8:11], s12 offen offset:{c*KB}')
    k('s_lshl_b32 s54, s46, 12',f's_add_u32 s54, s54, {OFF["QK"]+128*KB}','s_lshl_b32 s55, s46, 13',f's_add_u32 s55, s55, {OFF["VT"]}')
    def pf_k():
        if NOPF and started[0]: return
        for kt in range(2):
            k(f's_add_u32 s12, s54, {kt*256*KB}')
            for ks in range(4): k(f'buffer_load_dwordx4 {ar(112+16*kt+4*ks)}, v2, s[8:11], s12 offen offset:{ks*KB}')
        k(f's_add_u32 s54, s54, {512*KB}')
    def pf_v():
        if NOPF and started[0]: return
        for hf in range(2):
            k(f's_add_u32 s12, s55, {hf*4096}')
            for e in range(4): k(f'buffer_load_dwordx4 {ar(144+16*hf+4*e)}, v2, s[8:11], s12 offen offset:{e*KB}')
        k(f's_add_u32 s55, s55, {256*KB}')
    pf_k(); pf_v()
    started[0]=True
    k(f'{L("nowo")}:')
    k(f's_mul_i32 s56, s40, 10240',f's_add_u32 s56, s56, {OFF["MEM"]}')
    k(f's_mul_i32 s57, s45, 6144',f's_add_u32 s57, s57, {OFF["QKVM"]}')
    k(f's_mul_i32 s58, s46, 6144',f's_add_u32 s58, s58, {OFF["QKVM"]}')
    k(f's_lshl_b32 s59, s41, 10',f's_add_u32 s59, s59, {OFF["PART"]}')
    k('s_lshr_b32 s12, s43, 1','s_lshl_b32 s12, s12, 9','s_and_b32 s13, s43, 1','s_lshl_b32 s13, s13, 3','s_add_u32 s12, s12, s13','s_lshl_b32 s13, s3, 11','s_add_u32 s12, s12, s13')
    k('s_cmp_eq_u32 s3, 2',f's_cbranch_scc1 {L("vo")}','v_add_u32 v22, s12, v12',f's_branch {L("vo2")}',f'{L("vo")}:','v_add_u32 v22, s12, v14',f'{L("vo2")}:')
    k('s_mov_b32 s60, 0')
    for i in range(48): k(f'v_mov_b32 v{Q+i}, 0')
    for i in range(4): k(f'v_mov_b32 v{ONE+i}, 0x3f803f80')
    k('s_lshl_b32 s62, s3, 10','v_add_u32 v23, s62, v2','s_cmp_eq_u32 s3, 0','s_cselect_b32 s67, 9216, 0','s_waitcnt vmcnt(0)')
    k(f'{L("loop")}:')
    ts(0)
    k('s_and_b32 s12, s60, 1','s_mul_i32 s63, s12, 10240',f's_add_u32 s63, s63, {MB0}','v_add_u32 v18, s63, v23')
    if WARM and fast:
        k('s_cmp_eq_u32 s3, 3',f's_cbranch_scc0 {L("nw")}',f's_cmp_gt_u32 s60, {63-WARM}',f's_cbranch_scc1 {L("nw")}')
        k(f's_mul_i32 s12, s60, {32*6144}',f's_mul_i32 s13, s44, 6144','s_add_u32 s12, s12, s13',f's_add_u32 s12, s12, {OFF["QKVM"]+WARM*32*6144}','s_lshl_b32 s13, s41, 10','s_add_u32 s12, s12, s13')
        k(f's_add_u32 s14, s56, {WARM*8*10240-24*1024}','s_add_u32 s14, s14, s13','s_cmp_lt_u32 s41, 24','s_cselect_b32 s12, s12, s14',
          'buffer_store_dwordx4 v[56:59], v2, s[8:11], s12 offen',
          f's_add_u32 s14, s56, {WARM*8*10240+8192}','s_and_b32 s13, s13, 1024','s_add_u32 s14, s14, s13','buffer_store_dwordx4 v[56:59], v2, s[8:11], s14 offen','s_waitcnt vmcnt(0)')
        k(f'{L("nw")}:')
    k('s_cmp_eq_u32 s3, 3',f's_cbranch_scc1 {L("A3")}')
    k('s_add_u32 s64, s56, 3072','s_add_u32 s65, s56, 6144','s_add_u32 s66, s56, s67')
    def aiss(st):
        b0=M+16*st
        k(f'buffer_load_dwordx4 {vr(b0)}, v23, s[8:11], s56 offen sc1',f'buffer_load_dwordx4 {vr(b0+4)}, v23, s[8:11], s64 offen sc1',
          f'buffer_load_dwordx4 {vr(b0+8)}, v23, s[8:11], s65 offen sc1',f'buffer_load_dwordx4 {vr(b0+12)}, v23, s[8:11], s66 offen sc1')
    if PIPEA: aiss(0)
    k(f's_mov_b32 s61, {SPIN}',f'{L("Ap")}:')
    for st in range(2):
        b0=M+16*st
        aiss(1-st) if PIPEA else aiss(st)
        k('s_waitcnt vmcnt(4)' if PIPEA else 's_waitcnt vmcnt(0)',f'v_max3_u32 v{T}, v{b0}, v{b0+2}, v{b0+4}',f'v_max3_u32 v{T+1}, v{b0+6}, v{b0+8}, v{b0+10}',f'v_max3_u32 v{T}, v{T}, v{b0+12}, v{b0+14}',f'v_max_u32 v{T}, v{T}, v{T+1}')
        k(f'v_cmp_eq_u32 vcc, -1, v{T}','s_sub_u32 s61, s61, 1','s_cmp_eq_u32 s61, 0',f's_cbranch_scc1 {L("Ad%d"%st)}',f's_cbranch_vccz {L("Ad%d"%st)}')
    k(f's_branch {L("Ap")}')
    for st in range(2):
        b0=M+16*st
        k(f'{L("Ad%d"%st)}:',f'ds_write_b128 v18, {vr(b0)}',f'ds_write_b128 v18, {vr(b0+4)} offset:3072',f'ds_write_b128 v18, {vr(b0+8)} offset:6144',
          's_cmp_eq_u32 s3, 0',f's_cbranch_scc0 {L("A3")}',f'ds_write_b128 v18, {vr(b0+12)} offset:9216',f's_branch {L("A3")}')
    k(f'{L("A3")}:')
    if TRACE: k('s_cmp_eq_u32 s3, 3',f's_cbranch_scc1 {L("t4")}',f's_sub_u32 s84, {SPIN}, s61',f'{L("t4")}:')
    k('v_add_u32 v18, s63, v12','s_waitcnt lgkmcnt(0)','s_barrier')
    ts(1)
    k('s_cmp_eq_u32 s3, 3',f's_cbranch_scc1 {L("B")}')
    if TRACE: k('s_waitcnt lgkmcnt(0)')
    for ks in range(12): k(f'ds_read_b128 {vr(MF+4*ks)}, v18 offset:{ks*512}')
    for sw in (0,1):
        if sw==0: k('s_cmp_eq_u32 s3, 2',f's_cbranch_scc1 {L("Av")}')
        else: k(f'{L("Av")}:')
        for ks in range(20):
            k(f's_waitcnt lgkmcnt({min(11,19-ks)})')
            A,B=(ar(4*ks),vr(MF+4*(ks%12))) if sw==0 else (vr(MF+4*(ks%12)),ar(4*ks))
            k(f'v_mfma_f32_16x16x32_bf16 {vr(D)}, {A}, {B}, {vr(D) if ks else 0}')
            if ks+12<20: k(f'ds_read_b128 {vr(MF+4*ks)}, v18 offset:{(ks+12)*512}')
        k('s_nop 7',f'v_cvt_pk_bf16_f32 v{PT}, v{D}, v{D+1}',f'v_cvt_pk_bf16_f32 v{PT+1}, v{D+2}, v{D+3}',f'v_min_u32 v{PT}, v{PT}, v21')
        k(f's_mov_b64 exec, s[{50 if sw==0 else 52}:{51 if sw==0 else 53}]',f'buffer_store_dwordx2 {vr(PT,2)}, v22, s[8:11], s57 offen{LS}','s_mov_b64 exec, -1')
        if sw==0: k(f's_branch {L("B")}')
    k(f'{L("B")}:',f's_cmp_eq_u32 s60, {NSTEP-1}',f's_cbranch_scc1 {L("end")}')
    k('s_cmp_ge_u32 s41, 20',f's_cbranch_scc1 {L("next")}')
    ts(2)
    k(f's_sleep {BSLEEP}') if BSLEEP else None
    k(f's_mov_b32 s61, {SPIN}',f'{L("Bp")}:','s_mov_b64 exec, s[50:51]')
    for ks in range(4): k(f'buffer_load_dwordx4 {vr(Q+4*ks)}, v12, s[8:11], s58 offen offset:{ks*512} sc1')
    for ks in range(4): k(f'buffer_load_dwordx4 {vr(KM+4*ks)}, v12, s[8:11], s58 offen offset:{2048+ks*512} sc1')
    k('s_add_u32 s12, s58, 4096','s_mov_b64 exec, s[52:53]')
    for ep in range(4): k(f'buffer_load_dwordx4 {vr(VM+4*ep)}, v14, s[8:11], s12 offen offset:{ep*512} sc1')
    k('s_mov_b64 exec, -1')
    for i in range(12):
        k(f's_waitcnt vmcnt({11-i})')
        b=Q+4*i
        if i==0: k(f'v_max_u32 v{T}, v{b}, v{b+2}')
        else: k(f'v_max3_u32 v{T}, v{T}, v{b}, v{b+2}')
        if i<4:
            for t in range(2): k(f'v_mfma_f32_16x16x32_bf16 {vr(S+4*t)}, {ar(112+16*t+4*i)}, {vr(Q+4*i)}, {vr(S+4*t) if i else 0}')
        elif i<8:
            k(f'v_mfma_f32_16x16x32_bf16 {vr(S+8)}, {vr(KM+4*(i-4))}, {vr(Q+4*(i-4))}, {vr(S+8) if i>4 else 0}')
    k(f'v_cmp_eq_u32 vcc, -1, v{T}','s_sub_u32 s61, s61, 1','s_cmp_eq_u32 s61, 0',f's_cbranch_scc1 {L("Bd")}',f's_cbranch_vccnz {L("Bp")}',f'{L("Bd")}:')
    ts(3)
    if TRACE: k('s_cmp_eq_u32 s3, 3',f's_cbranch_scc1 {L("t3")}',f's_sub_u32 s82, {SPIN}, s61',f'{L("t3")}:')
    vals=[S+i for i in range(12)]
    for i in range(4): k(f'v_add_f32 v{S+8+i}, v{S+8+i}, v{MM}')
    m=T
    k(f'v_max3_f32 v{m}, v{S}, v{S+1}, v{S+2}',f'v_max3_f32 v{m+1}, v{S+3}, v{S+4}, v{S+5}',f'v_max3_f32 v{m}, v{m}, v{S+6}, v{S+7}',f'v_max3_f32 v{m+1}, v{m+1}, v{S+8}, v{S+9}',
      f'v_max3_f32 v{m}, v{m}, v{S+10}, v{S+11}',f'v_max_f32 v{m}, v{m}, v{m+1}')
    xred(k,'v_max_f32',m,T+1)
    k(f'v_mul_f32 v{m}, 0x{CS:x}, v{m}',f's_mov_b32 s39, 0x{CS:x}')
    for v in vals: k(f'v_fma_f32 v{v}, v{v}, s39, -v{m}')
    for v in vals: k(f'v_exp_f32 v{v}, v{v}')
    k('s_nop 0')
    for t in range(3): k(f'v_cvt_pk_bf16_f32 v{P+2*t}, v{S+4*t}, v{S+4*t+1}',f'v_cvt_pk_bf16_f32 v{P+2*t+1}, v{S+4*t+2}, v{S+4*t+3}')
    k('s_nop 1')
    def pv1(et): k(f'v_mfma_f32_16x16x32_bf16 {vr(O+4*et)}, {ar(144+4*et)}, {vr(P)}, 0')
    def pv2(et): k(f'v_mfma_f32_16x16x16_bf16 {vr(O+4*et)}, {vr(VM+2*et,2)}, {vr(P+4,2)}, {vr(O+4*et)}')
    def cv(c):
        r0=O+8*c; t=OB+4*c
        k(f'v_cvt_pk_bf16_f32 v{t}, v{r0}, v{r0+1}',f'v_cvt_pk_bf16_f32 v{t+1}, v{r0+2}, v{r0+3}',
          f'v_cvt_pk_bf16_f32 v{t+2}, v{r0+4}, v{r0+5}',f'v_cvt_pk_bf16_f32 v{t+3}, v{r0+6}, v{r0+7}')
    def wo(c):
        for t in range(2): k(f'v_mfma_f32_16x16x32_bf16 {vr(D+4*t)}, {ar(80+16*t+4*c)}, {vr(OB+4*c)}, {vr(D+4*t) if c else 0}')
    for et in range(8): pv1(et)
    k(f'v_mfma_f32_16x16x32_bf16 {vr(SM)}, {vr(ONE)}, {vr(P)}, 0')
    for et in range(8): pv2(et)
    k(f'v_mfma_f32_16x16x16_bf16 {vr(SM)}, {vr(ONE,2)}, {vr(P+4,2)}, {vr(SM)}')
    k('s_nop 1'); cv(0); cv(1); wo(0); cv(2); wo(1); k(f'v_rcp_f32 v{T}, v{SM}'); cv(3); wo(2); k('s_nop 0'); wo(3)
    k('s_nop 7')
    for i in range(8): k(f'v_mul_f32 v{D+i}, v{D+i}, v{T}')
    k('s_and_b32 s12, s60, 1','s_lshl_b32 s12, s12, 13','s_lshl_b32 s13, s3, 11','s_add_u32 s13, s13, s12','v_add_u32 v18, s13, v2')
    k(f'ds_write_b128 v18, {vr(D)}',f'ds_write_b128 v18, {vr(D+4)} offset:1024','s_waitcnt lgkmcnt(0)','s_barrier')
    ts(4)
    k('s_cmp_eq_u32 s3, 3',f's_cbranch_scc0 {L("pf")}')
    k('v_add_u32 v18, s12, v16')
    for hh in range(4): k(f'ds_read_b128 {vr(M+4*hh)}, v18 offset:{hh*2048}')
    k('s_waitcnt lgkmcnt(0)')
    for q in range(4): k(f'v_add_f32 v{M+q}, v{M+q}, v{M+4+q}',f'v_add_f32 v{M+8+q}, v{M+8+q}, v{M+12+q}',f'v_add_f32 v{M+q}, v{M+q}, v{M+8+q}')
    k(f'v_min_u32 v{M}, v{M}, v21',f's_mul_i32 s12, s40, {20*KB}','s_add_u32 s12, s12, s59',f'buffer_store_dwordx4 {vr(M)}, v2, s[8:11], s12 offen sc1')
    ts(5)
    pf_k(); pf_v()
    if CSLEEP: k(f's_sleep {CSLEEP}')
    def ciss(st):
        k('s_mov_b32 s12, s59')
        for x in range(8): k(f'buffer_load_dwordx4 {vr(M+16+32*st+4*x)}, v2, s[8:11], s12 offen sc1',f's_add_u32 s12, s12, {20*KB}')
    if PIPE: ciss(0)
    k(f's_mov_b32 s61, {SPIN}',f'{L("Cp")}:')
    for st in range(2):
        b=M+16+32*st
        ciss(1-st) if PIPE else ciss(st)
        k('s_waitcnt vmcnt(8)' if PIPE else 's_waitcnt vmcnt(0)')
        k(f'v_max3_u32 v{T}, v{b}, v{b+4}, v{b+8}',f'v_max3_u32 v{T+1}, v{b+12}, v{b+16}, v{b+20}',f'v_max3_u32 v{T}, v{T}, v{b+24}, v{b+28}',f'v_max_u32 v{T}, v{T}, v{T+1}')
        k(f'v_cmp_eq_u32 vcc, -1, v{T}','s_sub_u32 s61, s61, 1','s_cmp_eq_u32 s61, 0',f's_cbranch_scc1 {L("Cd%d"%st)}',f's_cbranch_vccz {L("Cd%d"%st)}')
    k(f's_branch {L("Cp")}')
    for st in range(2):
        b=M+16+32*st
        k(f'{L("Cd%d"%st)}:')
        ts(6)
        for q in range(4):
            k(f'v_add_f32 v{b+q}, v{b+q}, v{b+4+q}',f'v_add_f32 v{b+8+q}, v{b+8+q}, v{b+12+q}',f'v_add_f32 v{b+16+q}, v{b+16+q}, v{b+20+q}',f'v_add_f32 v{b+24+q}, v{b+24+q}, v{b+28+q}',
              f'v_add_f32 v{b+q}, v{b+q}, v{b+8+q}',f'v_add_f32 v{b+16+q}, v{b+16+q}, v{b+24+q}',f'v_add_f32 v{b+q}, v{b+q}, v{b+16+q}')
        k(f'v_cvt_pk_bf16_f32 v{PT}, v{b}, v{b+1}',f'v_cvt_pk_bf16_f32 v{PT+1}, v{b+2}, v{b+3}',f'v_min_u32 v{PT}, v{PT}, v21')
        if st==0: k(f's_branch {L("Ce")}')
    k(f'{L("Ce")}:')
    k('s_lshl_b32 s12, s41, 9','s_add_u32 s12, s12, s56',f's_add_u32 s12, s12, {8*10240}',f'buffer_store_dwordx2 {vr(PT,2)}, v17, s[8:11], s12 offen{LS}')
    k(f's_branch {L("next")}',f'{L("pf")}:',f's_sleep {PSLEEP}')
    pf_k(); pf_v()
    k(f'{L("next")}:')
    if TRACE:
        ts(7)
        k('s_waitcnt lgkmcnt(0)')
        k('s_lshl_b32 s12, s40, 5','s_add_u32 s12, s12, s41','s_lshl_b32 s12, s12, 2','s_add_u32 s12, s12, s3','s_lshl_b32 s12, s12, 11','s_lshl_b32 s13, s60, 5','s_add_u32 s12, s12, s13',f's_add_u32 s12, s12, {OFF["TR"]}')
        for i in range(8): k(f'v_mov_b32 v{24+i}, s{72+2*i}')
        k('v_mov_b32 v32, 0','s_mov_b64 exec, 1','buffer_store_dwordx4 v[24:27], v32, s[8:11], s12 offen','buffer_store_dwordx4 v[28:31], v32, s[8:11], s12 offen offset:16','s_mov_b64 exec, -1')
    k(f's_add_u32 s56, s56, {8*10240}',f's_add_u32 s57, s57, {32*6144}',f's_add_u32 s58, s58, {32*6144}',f's_add_u32 s59, s59, {8*20*KB}','s_add_u32 s60, s60, 1',f's_branch {L("loop")}')
    k(f'{L("end")}:','s_endpgm')
def gen_chain(use_fast=False):
    k=K('chain_kernel',vgpr=248,agpr=176,sgpr=96)
    k('s_cmp_ge_u32 s2, 256','s_cbranch_scc1 chain_done')
    k.srd(8,'ws',WS_BYTES)
    k('v_lshrrev_b32 v1, 6, v0','s_nop 0','v_readfirstlane_b32 s3, v1','v_and_b32 v0, 63, v0','v_lshlrev_b32 v2, 4, v0')
    if use_fast:
        k.srd(64,'dbg',256)
        k('s_getreg_b32 s40, hwreg(HW_REG_XCC_ID)','s_and_b32 s40, s40, 7')
        k('s_cmp_eq_u32 s3, 0','s_cbranch_scc0 ch_reg_wait')
        k('v_mov_b32 v4, 1','s_lshl_b32 s12, s40, 2','v_mov_b32 v5, s12','s_mov_b64 exec, 1',
          'buffer_atomic_add v4, v5, s[64:67], 0 offen sc0 sc1','s_waitcnt vmcnt(0)',
          'v_mov_b32 v6, 1','v_mov_b32 v7, 32','buffer_atomic_add v6, v7, s[64:67], 0 offen sc0 sc1','s_waitcnt vmcnt(0)',
          's_mov_b64 exec, -1')
        k(f's_mov_b32 s61, {SPIN}','v_lshlrev_b32 v8, 2, v0','ch_reg_poll:','buffer_load_dword v9, v8, s[64:67], 0 offen sc1','s_waitcnt vmcnt(0)',
          'v_readlane_b32 s12, v9, 8','s_sub_u32 s61, s61, 1','s_cmp_eq_u32 s61, 0','s_cbranch_scc1 ch_reg_got','s_cmp_lt_u32 s12, 256','s_cbranch_scc1 ch_reg_poll','ch_reg_got:')
        k('v_cmp_ne_u32 vcc, 32, v9','s_nop 1','s_and_b32 s12, vcc_lo, 0xff','v_readfirstlane_b32 s13, v4','v_readfirstlane_b32 s14, v6',
          's_cmp_eq_u32 s12, 0','s_cselect_b32 s15, 1, 0',
          'v_mov_b32 v11, s13','v_mov_b32 v12, s14','v_mov_b32 v10, s15','v_mov_b32 v8, 16384','ds_write_b96 v8, v[10:12]','s_waitcnt lgkmcnt(0)')
        k('ch_reg_wait:','s_barrier','v_mov_b32 v8, 16384','ds_read_b96 v[12:14], v8','s_waitcnt lgkmcnt(0)',
          'v_readfirstlane_b32 s15, v12','v_readfirstlane_b32 s41, v13','v_readfirstlane_b32 s14, v14','s_cmp_eq_u32 s15, 1','s_cbranch_scc0 ch_slow')
        chain_body(k,True,'f')
        k('ch_slow:','s_lshr_b32 s40, s14, 5','s_and_b32 s41, s14, 31')
    else:
        k('s_lshr_b32 s40, s2, 5','s_and_b32 s41, s2, 31')
    chain_body(k,False,'s')
    k('chain_done:')
    return k,16448+20480
```

```python
import sys
from common import *
import k0,gemm,attn,chain
def build(fast=False, upto=99):
    ks=[]
    k,n=k0.gen_k0(); ks.append((k,n,256,0))
    if not chain.TOK: k,l=gemm.gen_g1b(); ks.append((k,256,256,l))
    k,l=chain.gen_chain(fast); ks.append((k,256,256,l))
    if not chain.TATT: k=attn.gen_tattn(); ks.append((k,512,256,0))
    k,l=gemm.gen_direct('wo_kernel',128,OFF['WO'],OFF['O'],'x',0,'ws',OFF['H']); ks.append((k,256,256,l))
    k=k0.gen_ln(); ks.append((k,128,64,0))
    k,l=gemm.gen_g3(); ks.append((k,216,512,l))
    k,l=gemm.gen_direct('ffn2_kernel',54,OFF['W2'],OFF['HH'],'ws',OFF['H'],'out',0); ks.append((k,256,256,l))
    ks=ks[:upto]
    hdr=open('sequential_preLN__memory_aug_recurrent_mem_tr__glu_gated_swiglu__prompt.s.ref').read().split('; Override')[0]
    for k,g,b,l in ks: hdr+=f'; @launch kernel={k.name} grid=({g},1,1) block=({b},1,1) lds={l}\n'
    hdr+='.amdgcn_target "amdgcn-amd-amdhsa--gfx950"\n'
    return hdr+'\n'.join(k.text() for k,_,_,_ in ks)
if __name__=='__main__':
    fast='fast' in sys.argv
    chain.TRACE='trace' in sys.argv
    for a in sys.argv:
        if '=' in a:
            n,v=a.split('='); setattr(chain,n,int(v))
    out=sys.argv[1]
    open(out,'w').write(build(fast))
```

```python
from common import *
from attn import *
NSTEP=64
SPIN=1<<16
TRACE=False
CSLEEP=0
NOPF=0
PSLEEP=0
WARM=2
PIPE=0
PIPEA=0
BSLEEP=4
TATT=1
PFILL=1
def chain_body(k, fast, tag):
    def ts(i):
        if TRACE: k(f's_memtime s[{72+2*i}:{73+2*i}]')
    LS='' if fast else ' sc1'
    started=[False]
    M=64; Q=192; KM=208; VM=224; S=112; P=124; O=132; T=8; MM=3; OB=164; D=180; PT=188; ONE=240; SM=244; MB0=16448; MF=96
    L=lambda n: f'ch_{tag}_{n}'
    MB=36
    lane_consts(k,MB,MM,T)
    k('v_and_b32 v12, 7, v0','v_lshrrev_b32 v13, 4, v0','v_lshlrev_b32 v12, 4, v12','v_lshl_add_u32 v12, v13, 7, v12')
    k('v_and_b32 v14, 15, v0','v_and_b32 v15, 1, v13','v_lshlrev_b32 v14, 4, v14','v_lshl_add_u32 v14, v15, 8, v14')
    k('v_lshrrev_b32 v18, 5, v0','v_bfe_u32 v19, v0, 3, 2','v_and_b32 v20, 7, v0',
      'v_lshlrev_b32 v16, 10, v18','v_lshl_add_u32 v16, v19, 8, v16','v_lshl_add_u32 v16, v20, 4, v16',
      'v_lshlrev_b32 v17, 7, v19','v_lshl_add_u32 v17, v20, 4, v17','v_lshl_add_u32 v17, v18, 3, v17')
    k('v_mov_b32 v21, -2')
    for i in range(4): k(f'v_mov_b32 v{56+i}, -1')
    k('v_and_b32 v18, 8, v0','v_cmp_eq_u32 s[50:51], 0, v18','s_mov_b32 s52, -1','s_mov_b32 s53, 0')
    k('s_lshr_b32 s42, s41, 3','s_and_b32 s43, s41, 7','s_lshl_b32 s44, s40, 2','s_add_u32 s45, s44, s42')
    k('s_cmp_eq_u32 s3, 3',f's_cbranch_scc1 {L("nowa")}')
    k('s_lshl_b32 s12, s3, 8','s_lshl_b32 s13, s45, 3','s_add_u32 s12, s12, s13','s_add_u32 s12, s12, s43',f's_mul_i32 s12, s12, {20*KB}',f's_add_u32 s12, s12, {OFF["WQKV"]}')
    for ks in range(20):
        if ks%4==0 and ks: k('s_add_u32 s12, s12, 4096')
        k(f'buffer_load_dwordx4 {ar(4*ks)}, v2, s[8:11], s12 offen offset:{(ks%4)*KB}')
    k(f'{L("nowa")}:')
    k('s_add_u32 s46, s44, s3')
    k('s_cmp_ge_u32 s41, 20',f's_cbranch_scc1 {L("nowo")}')
    for t in range(2):
        k('s_lshl_b32 s12, s41, 1',f's_add_u32 s12, s12, {t}','s_lshl_b32 s12, s12, 7','s_lshl_b32 s13, s46, 2','s_add_u32 s12, s12, s13','s_lshl_b32 s12, s12, 10',f's_add_u32 s12, s12, {OFF["WO"]}')
        for c in range(4): k(f'buffer_load_dwordx4 {ar(80+16*t+4*c)}, v2, s[8:11], s12 offen offset:{c*KB}')
    k('s_lshl_b32 s54, s46, 12',f's_add_u32 s54, s54, {OFF["QK"]+128*KB}','s_lshl_b32 s55, s46, 13',f's_add_u32 s55, s55, {OFF["VT"]}')
    def pf_k():
        if NOPF and started[0]: return
        for kt in range(2):
            k(f's_add_u32 s12, s54, {kt*256*KB}')
            for ks in range(4): k(f'buffer_load_dwordx4 {ar(112+16*kt+4*ks)}, v2, s[8:11], s12 offen offset:{ks*KB}')
        k(f's_add_u32 s54, s54, {512*KB}')
    def pf_v():
        if NOPF and started[0]: return
        for hf in range(2):
            k(f's_add_u32 s12, s55, {hf*4096}')
            for e in range(4): k(f'buffer_load_dwordx4 {ar(144+16*hf+4*e)}, v2, s[8:11], s12 offen offset:{e*KB}')
        k(f's_add_u32 s55, s55, {256*KB}')
    pf_k(); pf_v()
    started[0]=True
    k(f'{L("nowo")}:')
    k(f's_mul_i32 s56, s40, 10240',f's_add_u32 s56, s56, {OFF["MEM"]}')
    k(f's_mul_i32 s57, s45, 6144',f's_add_u32 s57, s57, {OFF["QKVM"]}')
    k(f's_mul_i32 s58, s46, 6144',f's_add_u32 s58, s58, {OFF["QKVM"]}')
    k(f's_lshl_b32 s59, s41, 10',f's_add_u32 s59, s59, {OFF["PART"]}')
    TQ=64; TK=96; TKM=128; TV=144; TVM=176; TS=192; TP=204; TO=212
    k('s_sub_u32 s12, s41, 20','s_lshr_b32 s12, s12, 1','s_add_u32 s12, s12, s44','s_and_b32 s91, s41, 1',
      's_lshl_b32 s13, s12, 12','s_lshl_b32 s14, s91, 18','s_add_u32 s68, s13, s14',f's_add_u32 s68, s68, {OFF["QK"]}',f's_add_u32 s69, s13, {OFF["QK"]+128*KB}',
      's_lshl_b32 s70, s12, 13',f's_add_u32 s70, s70, {OFF["VT"]}','s_mul_i32 s71, s12, 6144',f's_add_u32 s71, s71, {OFF["QKVM"]}',
      's_lshl_b32 s14, s91, 17','s_add_u32 s88, s13, s14',f's_add_u32 s88, s88, {OFF["O"]}','s_mov_b32 s89, 0','s_mov_b32 s90, 0')
    def tpf():
        for ks in range(4): k(f'buffer_load_dwordx4 {vr(TQ+4*ks)}, v2, s[8:11], s68 offen offset:{ks*KB}')
        for kt in range(2):
            k(f's_add_u32 s12, s69, {kt*256*KB}')
            for ks in range(4): k(f'buffer_load_dwordx4 {vr(TK+16*kt+4*ks)}, v2, s[8:11], s12 offen offset:{ks*KB}')
        for hf in range(2):
            k(f's_add_u32 s12, s70, {hf*4096}')
            for e in range(4): k(f'buffer_load_dwordx4 {vr(TV+16*hf+4*e)}, v2, s[8:11], s12 offen offset:{e*KB}')
        k(f's_add_u32 s68, s68, {512*KB}',f's_add_u32 s69, s69, {512*KB}',f's_add_u32 s70, s70, {256*KB}')
    if TATT:
        k('s_cmp_eq_u32 s3, 3',f's_cbranch_scc0 {L("not")}','s_cmp_lt_u32 s41, 20',f's_cbranch_scc1 {L("not")}','s_cmp_ge_u32 s41, 28',f's_cbranch_scc1 {L("not")}','s_mov_b32 s90, 1')
        tpf()
        k(f'{L("not")}:')
    k('s_lshr_b32 s12, s43, 1','s_lshl_b32 s12, s12, 9','s_and_b32 s13, s43, 1','s_lshl_b32 s13, s13, 3','s_add_u32 s12, s12, s13','s_lshl_b32 s13, s3, 11','s_add_u32 s12, s12, s13')
    k('s_cmp_eq_u32 s3, 2',f's_cbranch_scc1 {L("vo")}','v_add_u32 v22, s12, v12',f's_branch {L("vo2")}',f'{L("vo")}:','v_add_u32 v22, s12, v14',f'{L("vo2")}:')
    k('s_mov_b32 s60, 0')
    for i in range(48): k(f'v_mov_b32 v{Q+i}, 0')
    for i in range(4): k(f'v_mov_b32 v{ONE+i}, 0x3f803f80')
    k('s_lshl_b32 s62, s3, 10','v_add_u32 v23, s62, v2','s_cmp_eq_u32 s3, 0','s_cselect_b32 s67, 9216, 0','s_waitcnt vmcnt(0)')
    k(f'{L("loop")}:')
    ts(0)
    k('s_and_b32 s12, s60, 1','s_mul_i32 s63, s12, 10240',f's_add_u32 s63, s63, {MB0}','v_add_u32 v18, s63, v23')
    if WARM:
        k('s_cmp_eq_u32 s3, 3',f's_cbranch_scc0 {L("nw")}',f's_cmp_gt_u32 s60, {63-WARM}',f's_cbranch_scc1 {L("nw")}')
        k(f's_mul_i32 s12, s60, {32*6144}',f's_mul_i32 s13, s44, 6144','s_add_u32 s12, s12, s13',f's_add_u32 s12, s12, {OFF["QKVM"]+WARM*32*6144}','s_lshl_b32 s13, s41, 10','s_add_u32 s12, s12, s13')
        k(f's_add_u32 s14, s56, {WARM*8*10240-24*1024}','s_add_u32 s14, s14, s13','s_cmp_lt_u32 s41, 24','s_cselect_b32 s12, s12, s14',
          f'buffer_store_dwordx4 v[56:59], v2, s[8:11], s12 offen{LS}',
          f's_add_u32 s14, s56, {WARM*8*10240+8192}','s_and_b32 s13, s13, 1024','s_add_u32 s14, s14, s13',f'buffer_store_dwordx4 v[56:59], v2, s[8:11], s14 offen{LS}','s_waitcnt vmcnt(0)')
        k(f'{L("nw")}:')
    k('s_cmp_eq_u32 s3, 3',f's_cbranch_scc1 {L("A3")}')
    k('s_add_u32 s64, s56, 3072','s_add_u32 s65, s56, 6144','s_add_u32 s66, s56, s67')
    def aiss(st):
        b0=M+16*st
        k(f'buffer_load_dwordx4 {vr(b0)}, v23, s[8:11], s56 offen sc1',f'buffer_load_dwordx4 {vr(b0+4)}, v23, s[8:11], s64 offen sc1',
          f'buffer_load_dwordx4 {vr(b0+8)}, v23, s[8:11], s65 offen sc1',f'buffer_load_dwordx4 {vr(b0+12)}, v23, s[8:11], s66 offen sc1')
    if PIPEA: aiss(0)
    k(f's_mov_b32 s61, {SPIN}',f'{L("Ap")}:')
    for st in range(2):
        b0=M+16*st
        aiss(1-st) if PIPEA else aiss(st)
        k('s_waitcnt vmcnt(4)' if PIPEA else 's_waitcnt vmcnt(0)',f'v_max3_u32 v{T}, v{b0}, v{b0+2}, v{b0+4}',f'v_max3_u32 v{T+1}, v{b0+6}, v{b0+8}, v{b0+10}',f'v_max3_u32 v{T}, v{T}, v{b0+12}, v{b0+14}',f'v_max_u32 v{T}, v{T}, v{T+1}')
        k(f'v_cmp_eq_u32 vcc, -1, v{T}','s_sub_u32 s61, s61, 1','s_cmp_eq_u32 s61, 0',f's_cbranch_scc1 {L("Ad%d"%st)}',f's_cbranch_vccz {L("Ad%d"%st)}')
    k(f's_branch {L("Ap")}')
    for st in range(2):
        b0=M+16*st
        k(f'{L("Ad%d"%st)}:',f'ds_write_b128 v18, {vr(b0)}',f'ds_write_b128 v18, {vr(b0+4)} offset:3072',f'ds_write_b128 v18, {vr(b0+8)} offset:6144',
          's_cmp_eq_u32 s3, 0',f's_cbranch_scc0 {L("A3")}',f'ds_write_b128 v18, {vr(b0+12)} offset:9216',f's_branch {L("A3")}')
    k(f'{L("A3")}:')
    if TRACE: k('s_cmp_eq_u32 s3, 3',f's_cbranch_scc1 {L("t4")}',f's_sub_u32 s84, {SPIN}, s61',f'{L("t4")}:')
    k('v_add_u32 v18, s63, v12','s_waitcnt lgkmcnt(0)','s_barrier')
    ts(1)
    k('s_cmp_eq_u32 s3, 3',f's_cbranch_scc1 {L("B")}')
    if TRACE: k('s_waitcnt lgkmcnt(0)')
    for ks in range(12): k(f'ds_read_b128 {vr(MF+4*ks)}, v18 offset:{ks*512}')
    for sw in (0,1):
        if sw==0: k('s_cmp_eq_u32 s3, 2',f's_cbranch_scc1 {L("Av")}')
        else: k(f'{L("Av")}:')
        for ks in range(20):
            k(f's_waitcnt lgkmcnt({min(11,19-ks)})')
            A,B=(ar(4*ks),vr(MF+4*(ks%12))) if sw==0 else (vr(MF+4*(ks%12)),ar(4*ks))
            k(f'v_mfma_f32_16x16x32_bf16 {vr(D)}, {A}, {B}, {vr(D) if ks else 0}')
            if ks+12<20: k(f'ds_read_b128 {vr(MF+4*ks)}, v18 offset:{(ks+12)*512}')
        k('s_nop 7',f'v_cvt_pk_bf16_f32 v{PT}, v{D}, v{D+1}',f'v_cvt_pk_bf16_f32 v{PT+1}, v{D+2}, v{D+3}',f'v_min_u32 v{PT}, v{PT}, v21')
        k(f's_mov_b64 exec, s[{50 if sw==0 else 52}:{51 if sw==0 else 53}]',f'buffer_store_dwordx2 {vr(PT,2)}, v22, s[8:11], s57 offen{LS}','s_mov_b64 exec, -1')
        if sw==0: k(f's_branch {L("B")}')
    k(f'{L("B")}:','s_cmp_ge_u32 s41, 20',f's_cbranch_scc1 {L("hi")}',f's_cmp_eq_u32 s60, {NSTEP-1}',f's_cbranch_scc1 {L("end")}')
    ts(2)
    k(f's_sleep {BSLEEP}') if BSLEEP else None
    k(f's_mov_b32 s61, {SPIN}',f'{L("Bp")}:','s_mov_b64 exec, s[50:51]')
    for ks in range(4): k(f'buffer_load_dwordx4 {vr(Q+4*ks)}, v12, s[8:11], s58 offen offset:{ks*512} sc1')
    for ks in range(4): k(f'buffer_load_dwordx4 {vr(KM+4*ks)}, v12, s[8:11], s58 offen offset:{2048+ks*512} sc1')
    k('s_add_u32 s12, s58, 4096','s_mov_b64 exec, s[52:53]')
    for ep in range(4): k(f'buffer_load_dwordx4 {vr(VM+4*ep)}, v14, s[8:11], s12 offen offset:{ep*512} sc1')
    k('s_mov_b64 exec, -1')
    for i in range(12):
        k(f's_waitcnt vmcnt({11-i})')
        b=Q+4*i
        if i==0: k(f'v_max_u32 v{T}, v{b}, v{b+2}')
        else: k(f'v_max3_u32 v{T}, v{T}, v{b}, v{b+2}')
        if i<4:
            for t in range(2): k(f'v_mfma_f32_16x16x32_bf16 {vr(S+4*t)}, {ar(112+16*t+4*i)}, {vr(Q+4*i)}, {vr(S+4*t) if i else 0}')
        elif i<8:
            k(f'v_mfma_f32_16x16x32_bf16 {vr(S+8)}, {vr(KM+4*(i-4))}, {vr(Q+4*(i-4))}, {vr(S+8) if i>4 else 0}')
    k(f'v_cmp_eq_u32 vcc, -1, v{T}','s_sub_u32 s61, s61, 1','s_cmp_eq_u32 s61, 0',f's_cbranch_scc1 {L("Bd")}',f's_cbranch_vccnz {L("Bp")}',f'{L("Bd")}:')
    ts(3)
    if TRACE: k('s_cmp_eq_u32 s3, 3',f's_cbranch_scc1 {L("t3")}',f's_sub_u32 s82, {SPIN}, s61',f'{L("t3")}:')
    vals=[S+i for i in range(12)]
    for i in range(4): k(f'v_add_f32 v{S+8+i}, v{S+8+i}, v{MM}')
    m=T
    k(f'v_max3_f32 v{m}, v{S}, v{S+1}, v{S+2}',f'v_max3_f32 v{m+1}, v{S+3}, v{S+4}, v{S+5}',f'v_max3_f32 v{m}, v{m}, v{S+6}, v{S+7}',f'v_max3_f32 v{m+1}, v{m+1}, v{S+8}, v{S+9}',
      f'v_max3_f32 v{m}, v{m}, v{S+10}, v{S+11}',f'v_max_f32 v{m}, v{m}, v{m+1}')
    xred(k,'v_max_f32',m,T+1)
    k(f'v_mul_f32 v{m}, 0x{CS:x}, v{m}',f's_mov_b32 s39, 0x{CS:x}')
    for v in vals: k(f'v_fma_f32 v{v}, v{v}, s39, -v{m}')
    for v in vals: k(f'v_exp_f32 v{v}, v{v}')
    k('s_nop 0')
    for t in range(3): k(f'v_cvt_pk_bf16_f32 v{P+2*t}, v{S+4*t}, v{S+4*t+1}',f'v_cvt_pk_bf16_f32 v{P+2*t+1}, v{S+4*t+2}, v{S+4*t+3}')
    k('s_nop 1')
    def pv1(et): k(f'v_mfma_f32_16x16x32_bf16 {vr(O+4*et)}, {ar(144+4*et)}, {vr(P)}, 0')
    def pv2(et): k(f'v_mfma_f32_16x16x16_bf16 {vr(O+4*et)}, {vr(VM+2*et,2)}, {vr(P+4,2)}, {vr(O+4*et)}')
    def cv(c):
        r0=O+8*c; t=OB+4*c
        k(f'v_cvt_pk_bf16_f32 v{t}, v{r0}, v{r0+1}',f'v_cvt_pk_bf16_f32 v{t+1}, v{r0+2}, v{r0+3}',
          f'v_cvt_pk_bf16_f32 v{t+2}, v{r0+4}, v{r0+5}',f'v_cvt_pk_bf16_f32 v{t+3}, v{r0+6}, v{r0+7}')
    def wo(c):
        for t in range(2): k(f'v_mfma_f32_16x16x32_bf16 {vr(D+4*t)}, {ar(80+16*t+4*c)}, {vr(OB+4*c)}, {vr(D+4*t) if c else 0}')
    for et in range(8): pv1(et)
    k(f'v_mfma_f32_16x16x32_bf16 {vr(SM)}, {vr(ONE)}, {vr(P)}, 0')
    for et in range(8): pv2(et)
    k(f'v_mfma_f32_16x16x16_bf16 {vr(SM)}, {vr(ONE,2)}, {vr(P+4,2)}, {vr(SM)}')
    k('s_nop 1'); cv(0); cv(1); wo(0); cv(2); wo(1); k(f'v_rcp_f32 v{T}, v{SM}'); cv(3); wo(2); k('s_nop 0'); wo(3)
    k('s_nop 7')
    for i in range(8): k(f'v_mul_f32 v{D+i}, v{D+i}, v{T}')
    k('s_and_b32 s12, s60, 1','s_lshl_b32 s12, s12, 13','s_lshl_b32 s13, s3, 11','s_add_u32 s13, s13, s12','v_add_u32 v18, s13, v2')
    k(f'ds_write_b128 v18, {vr(D)}',f'ds_write_b128 v18, {vr(D+4)} offset:1024','s_waitcnt lgkmcnt(0)','s_barrier')
    ts(4)
    k('s_cmp_eq_u32 s3, 3',f's_cbranch_scc0 {L("pf")}')
    k('v_add_u32 v18, s12, v16')
    for hh in range(4): k(f'ds_read_b128 {vr(M+4*hh)}, v18 offset:{hh*2048}')
    k('s_waitcnt lgkmcnt(0)')
    for q in range(4): k(f'v_add_f32 v{M+q}, v{M+q}, v{M+4+q}',f'v_add_f32 v{M+8+q}, v{M+8+q}, v{M+12+q}',f'v_add_f32 v{M+q}, v{M+q}, v{M+8+q}')
    k(f'v_min_u32 v{M}, v{M}, v21',f's_mul_i32 s12, s40, {20*KB}','s_add_u32 s12, s12, s59',f'buffer_store_dwordx4 {vr(M)}, v2, s[8:11], s12 offen sc1')
    ts(5)
    pf_k(); pf_v()
    if CSLEEP: k(f's_sleep {CSLEEP}')
    def ciss(st):
        k('s_mov_b32 s12, s59')
        for x in range(8): k(f'buffer_load_dwordx4 {vr(M+16+32*st+4*x)}, v2, s[8:11], s12 offen sc1',f's_add_u32 s12, s12, {20*KB}')
    if PIPE: ciss(0)
    k(f's_mov_b32 s61, {SPIN}',f'{L("Cp")}:')
    for st in range(2):
        b=M+16+32*st
        ciss(1-st) if PIPE else ciss(st)
        k('s_waitcnt vmcnt(8)' if PIPE else 's_waitcnt vmcnt(0)')
        k(f'v_max3_u32 v{T}, v{b}, v{b+4}, v{b+8}',f'v_max3_u32 v{T+1}, v{b+12}, v{b+16}, v{b+20}',f'v_max3_u32 v{T}, v{T}, v{b+24}, v{b+28}',f'v_max_u32 v{T}, v{T}, v{T+1}')
        k(f'v_cmp_eq_u32 vcc, -1, v{T}','s_sub_u32 s61, s61, 1','s_cmp_eq_u32 s61, 0',f's_cbranch_scc1 {L("Cd%d"%st)}',f's_cbranch_vccz {L("Cd%d"%st)}')
    k(f's_branch {L("Cp")}')
    for st in range(2):
        b=M+16+32*st
        k(f'{L("Cd%d"%st)}:')
        ts(6)
        for q in range(4):
            k(f'v_add_f32 v{b+q}, v{b+q}, v{b+4+q}',f'v_add_f32 v{b+8+q}, v{b+8+q}, v{b+12+q}',f'v_add_f32 v{b+16+q}, v{b+16+q}, v{b+20+q}',f'v_add_f32 v{b+24+q}, v{b+24+q}, v{b+28+q}',
              f'v_add_f32 v{b+q}, v{b+q}, v{b+8+q}',f'v_add_f32 v{b+16+q}, v{b+16+q}, v{b+24+q}',f'v_add_f32 v{b+q}, v{b+q}, v{b+16+q}')
        k(f'v_cvt_pk_bf16_f32 v{PT}, v{b}, v{b+1}',f'v_cvt_pk_bf16_f32 v{PT+1}, v{b+2}, v{b+3}',f'v_min_u32 v{PT}, v{PT}, v21')
        if st==0: k(f's_branch {L("Ce")}')
    k(f'{L("Ce")}:')
    k('s_lshl_b32 s12, s41, 9','s_add_u32 s12, s12, s56',f's_add_u32 s12, s12, {8*10240}',f'buffer_store_dwordx2 {vr(PT,2)}, v17, s[8:11], s12 offen{LS}')
    k(f's_branch {L("next")}',f'{L("pf")}:')
    if PSLEEP: k(f's_sleep {PSLEEP}')
    if WARM and PFILL:
        k('s_cmp_eq_u32 s3, 0',f's_cbranch_scc0 {L("npf")}',f's_cmp_gt_u32 s60, {63-WARM}',f's_cbranch_scc1 {L("npf")}',
          f's_mul_i32 s12, s40, {20*KB}','s_add_u32 s12, s12, s59',f's_add_u32 s12, s12, {WARM*8*20*KB}','buffer_store_dwordx4 v[56:59], v2, s[8:11], s12 offen sc1',f'{L("npf")}:')
    pf_k(); pf_v()
    k(f'{L("next")}:')
    if TRACE:
        ts(7)
        k('s_waitcnt lgkmcnt(0)')
        k('s_lshl_b32 s12, s40, 5','s_add_u32 s12, s12, s41','s_lshl_b32 s12, s12, 2','s_add_u32 s12, s12, s3','s_lshl_b32 s12, s12, 11','s_lshl_b32 s13, s60, 5','s_add_u32 s12, s12, s13',f's_add_u32 s12, s12, {OFF["TR"]}')
        for i in range(8): k(f'v_mov_b32 v{24+i}, s{72+2*i}')
        k('v_mov_b32 v32, 0','s_mov_b64 exec, 1','buffer_store_dwordx4 v[24:27], v32, s[8:11], s12 offen','buffer_store_dwordx4 v[28:31], v32, s[8:11], s12 offen offset:16','s_mov_b64 exec, -1')
    k(f's_add_u32 s56, s56, {8*10240}',f's_add_u32 s57, s57, {32*6144}',f's_add_u32 s58, s58, {32*6144}',f's_add_u32 s59, s59, {8*20*KB}','s_add_u32 s60, s60, 1',f's_branch {L("loop")}')
    k(f'{L("end")}:','s_endpgm')
    k(f'{L("hi")}:')
    if TATT:
        k('s_cmp_eq_u32 s90, 0',f's_cbranch_scc1 {L("hid")}','s_cmp_eq_u32 s60, 0',f's_cbranch_scc1 {L("hid")}')
        k(f'{L("tl")}:',f's_mov_b32 s61, {SPIN}',f'{L("tp")}:')
        for ks in range(4): k(f'buffer_load_dwordx4 {vr(TKM+4*ks)}, v12, s[8:11], s71 offen offset:{2048+ks*512} sc1')
        k('s_add_u32 s12, s71, 4096')
        for ep in range(4): k(f'buffer_load_dwordx4 {vr(TVM+4*ep)}, v14, s[8:11], s12 offen offset:{ep*512} sc1')
        k('s_waitcnt vmcnt(0)')
        regs=[TKM+4*i for i in range(4)]+[TVM+4*i for i in range(4)]
        for i,b in enumerate(regs):
            if i==0: k(f'v_max_u32 v{T}, v{b}, v{b+2}')
            else: k(f'v_max3_u32 v{T}, v{T}, v{b}, v{b+2}')
        k(f'v_cmp_eq_u32 vcc, -1, v{T}','s_sub_u32 s61, s61, 1','s_cmp_eq_u32 s61, 0',f's_cbranch_scc1 {L("td")}',f's_cbranch_vccnz {L("tp")}',f'{L("td")}:')
        k('s_cmp_eq_u32 s91, 0',f's_cbranch_scc0 {L("tq1")}')
        attn_core(k,TQ,TK,TKM,TV,TVM,TS,TP,TO,T,[0],0,MB,MM)
        k(f's_branch {L("tq2")}',f'{L("tq1")}:')
        attn_core(k,TQ,TK,TKM,TV,TVM,TS,TP,TO,T,[0,1],1,MB,MM)
        k(f'{L("tq2")}:')
        for c in range(4):
            r0=TO+8*c; t=TKM+4*c
            k(f'v_cvt_pk_bf16_f32 v{t}, v{r0}, v{r0+1}',f'v_cvt_pk_bf16_f32 v{t+1}, v{r0+2}, v{r0+3}',
              f'v_cvt_pk_bf16_f32 v{t+2}, v{r0+4}, v{r0+5}',f'v_cvt_pk_bf16_f32 v{t+3}, v{r0+6}, v{r0+7}',
              f'buffer_store_dwordx4 {vr(t)}, v2, s[8:11], s88 offen offset:{c*KB}')
        k(f's_add_u32 s71, s71, {32*6144}',f's_add_u32 s88, s88, {256*KB}','s_add_u32 s89, s89, 1','s_cmp_ge_u32 s89, 64',f's_cbranch_scc1 {L("end")}')
        tpf()
        k(f's_cmp_eq_u32 s60, {NSTEP-1}',f's_cbranch_scc1 {L("tl")}')
        k(f'{L("hid")}:')
    k(f's_cmp_eq_u32 s60, {NSTEP-1}',f's_cbranch_scc1 {L("end")}',f's_branch {L("next")}')
def gen_chain(use_fast=False):
    k=K('chain_kernel',vgpr=248,agpr=176,sgpr=96)
    k('s_cmp_ge_u32 s2, 256','s_cbranch_scc1 chain_done')
    k.srd(8,'ws',WS_BYTES)
    k('v_lshrrev_b32 v1, 6, v0','s_nop 0','v_readfirstlane_b32 s3, v1','v_and_b32 v0, 63, v0','v_lshlrev_b32 v2, 4, v0')
    if use_fast:
        k.srd(64,'dbg',256)
        k('s_getreg_b32 s40, hwreg(HW_REG_XCC_ID)','s_and_b32 s40, s40, 7')
        k('s_cmp_eq_u32 s3, 0','s_cbranch_scc0 ch_reg_wait')
        k('v_mov_b32 v4, 1','s_lshl_b32 s12, s40, 2','v_mov_b32 v5, s12','s_mov_b64 exec, 1',
          'buffer_atomic_add v4, v5, s[64:67], 0 offen sc0 sc1','s_waitcnt vmcnt(0)',
          'v_mov_b32 v6, 1','v_mov_b32 v7, 32','buffer_atomic_add v6, v7, s[64:67], 0 offen sc0 sc1','s_waitcnt vmcnt(0)',
          's_mov_b64 exec, -1')
        k(f's_mov_b32 s61, {SPIN}','v_lshlrev_b32 v8, 2, v0','ch_reg_poll:','buffer_load_dword v9, v8, s[64:67], 0 offen sc1','s_waitcnt vmcnt(0)',
          'v_readlane_b32 s12, v9, 8','s_sub_u32 s61, s61, 1','s_cmp_eq_u32 s61, 0','s_cbranch_scc1 ch_reg_got','s_cmp_lt_u32 s12, 256','s_cbranch_scc1 ch_reg_poll','ch_reg_got:')
        k('v_cmp_ne_u32 vcc, 32, v9','s_nop 1','s_and_b32 s12, vcc_lo, 0xff','v_readfirstlane_b32 s13, v4','v_readfirstlane_b32 s14, v6',
          's_cmp_eq_u32 s12, 0','s_cselect_b32 s15, 1, 0',
          'v_mov_b32 v11, s13','v_mov_b32 v12, s14','v_mov_b32 v10, s15','v_mov_b32 v8, 16384','ds_write_b96 v8, v[10:12]','s_waitcnt lgkmcnt(0)')
        k('ch_reg_wait:','s_barrier','v_mov_b32 v8, 16384','ds_read_b96 v[12:14], v8','s_waitcnt lgkmcnt(0)',
          'v_readfirstlane_b32 s15, v12','v_readfirstlane_b32 s41, v13','v_readfirstlane_b32 s14, v14','s_cmp_eq_u32 s15, 1','s_cbranch_scc0 ch_slow')
        chain_body(k,True,'f')
        k('ch_slow:','s_lshr_b32 s40, s14, 5','s_and_b32 s41, s14, 31')
    else:
        k('s_lshr_b32 s40, s2, 5','s_and_b32 s41, s2, 31')
    chain_body(k,False,'s')
    k('chain_done:')
    return k,16448+20480
```

```python
from common import *
def ln_wave(k, src_srd, src_off_s, dst_off_s, pfx=''):
    k('v_and_b32 v1, 15, v0','v_lshrrev_b32 v2, 4, v0',
      'v_mul_u32_u24 v3, 1280, v1','v_lshl_add_u32 v3, v2, 4, v3',
      'v_lshlrev_b32 v4, 4, v0')
    for ks in range(20):
        k(f'buffer_load_dwordx4 {vr(8+4*ks)}, v3, s[{src_srd}:{src_srd+3}], s{src_off_s} offen offset:{ks*64}')
    k('v_mov_b32 v5, 0','v_mov_b32 v6, 0')
    for ks in range(20):
        k(f's_waitcnt vmcnt({19-ks})')
        for d in range(4):
            r=8+4*ks+d
            k(f'v_lshlrev_b32 v90, 16, v{r}',f'v_and_b32 v91, 0xffff0000, v{r}','v_add_f32 v5, v5, v90','v_add_f32 v6, v6, v91')
    k('v_add_f32 v5, v5, v6')
    def xred(r):
        k(f'v_mov_b32 v90, v{r}','s_nop 1',f'v_permlane32_swap_b32 v90, v{r}','s_nop 1',f'v_add_f32 v{r}, v{r}, v90',
          f'v_mov_b32 v90, v{r}','s_nop 1',f'v_permlane16_swap_b32 v90, v{r}','s_nop 1',f'v_add_f32 v{r}, v{r}, v90')
    xred(5)
    k('v_mul_f32 v5, 0x3acccccd, v5')
    k('v_mov_b32 v6, 0','v_mov_b32 v7, 0')
    for r in range(8,88):
        k(f'v_lshlrev_b32 v90, 16, v{r}',f'v_and_b32 v91, 0xffff0000, v{r}','v_sub_f32 v90, v90, v5','v_sub_f32 v91, v91, v5',
          'v_fmac_f32 v6, v90, v90','v_fmac_f32 v7, v91, v91')
    k('v_add_f32 v6, v6, v7')
    xred(6)
    k('v_mov_b32 v7, 0x3727c5ac','v_fmac_f32 v7, 0x3acccccd, v6','v_rsq_f32 v7, v7','s_nop 0')
    for ks in range(20):
        for d in range(4):
            r=8+4*ks+d
            k(f'v_lshlrev_b32 v90, 16, v{r}',f'v_and_b32 v91, 0xffff0000, v{r}','v_sub_f32 v90, v90, v5','v_sub_f32 v91, v91, v5',
              'v_mul_f32 v90, v90, v7','v_mul_f32 v91, v91, v7',f'v_cvt_pk_bf16_f32 v{r}, v90, v91')
        k(f's_add_u32 s20, s{dst_off_s}, {ks*1024}',
          f'buffer_store_dwordx4 {vr(8+4*ks)}, v4, s[8:11], s20 offen')

SEGS=[
 ('Wq',4096,20,OFF['WQKV'],2,0),('Wk',4096,20,OFF['WQKV']+256*20*KB,2,0),('Wv',4096,20,OFF['WQKV']+512*20*KB,2,0),
 ('Wo',640,128,OFF['WO'],2,0),('w1',1728,20,OFF['W13'],4,0),('w3',1728,20,OFF['W13'],4,2),('w2',640,54,OFF['W2'],2,0)]
def gen_k0():
    k=K('prep_kernel',vgpr=96,sgpr=40)
    k.srd(8,'ws',WS_BYTES)
    k('v_lshrrev_b32 v1, 6, v0','s_nop 0','v_readfirstlane_b32 s3, v1','v_and_b32 v0, 63, v0')
    start=0
    k('s_mov_b32 s4, s2')
    nxt=k.lab('seg')
    k('s_cmp_ge_u32 s4, 32',f's_cbranch_scc1 {nxt}')
    k.srd(12,'x',2048*1280)
    k('s_lshl_b32 s5, s4, 2','s_add_u32 s5, s5, s3',f's_mul_i32 s6, s5, {16*1280}',f's_mul_i32 s7, s5, {20*KB}',f's_add_u32 s7, s7, {OFF["XN"]}')
    ln_wave(k,12,6,7)
    k('s_endpgm',f'{nxt}:','s_sub_u32 s4, s4, 32'); start+=32
    for (arg,N,KS,dst,DM,DO) in SEGS:
        NQ=N//64; units=NQ*KS; assert units%4==0; cnt=units//4
        nxt=k.lab('seg')
        k(f's_cmp_ge_u32 s4, {cnt}',f's_cbranch_scc1 {nxt}')
        k.srd(12,arg,KS*32*N*2)
        k('s_lshl_b32 s5, s4, 2','s_add_u32 s5, s5, s3')
        if NQ==64: k('s_lshr_b32 s7, s5, 6','s_and_b32 s6, s5, 63')
        else:
            mg=(65536+NQ-1)//NQ
            assert all((u*mg)>>16==u//NQ for u in range(units))
            k(f's_mul_i32 s7, s5, {mg}','s_lshr_b32 s7, s7, 16',f's_mul_i32 s6, s7, {NQ}','s_sub_u32 s6, s5, s6')
        k('v_and_b32 v1, 15, v0','v_lshrrev_b32 v2, 4, v0',f's_mov_b32 s21, {8*N*2}','v_mul_lo_u32 v3, v2, s21','v_lshl_add_u32 v3, v1, 3, v3',
          f's_mul_i32 s20, s7, {32*N*2}','s_lshl_b32 s18, s6, 7','s_add_u32 s20, s20, s18')
        for j in range(8):
            k(f'buffer_load_dwordx2 {vr(16+2*j,2)}, v3, s[12:15], s20 offen',f's_add_u32 s20, s20, {N*2}')
        k('v_lshrrev_b32 v4, 3, v1',f'v_mul_u32_u24 v4, {DM}, v4','v_and_b32 v5, 1, v1','v_add_u32 v4, v4, v5',f'v_mul_u32_u24 v4, {KS*KB}, v4',
          'v_lshl_add_u32 v4, v2, 8, v4','v_bfe_u32 v5, v1, 1, 2','v_lshl_add_u32 v4, v5, 6, v4')
        k(f's_mul_i32 s19, s6, {2*DM}',f's_add_u32 s19, s19, {DO}',f's_mul_i32 s19, s19, {KS}','s_add_u32 s19, s19, s7','s_lshl_b32 s19, s19, 10',f's_add_u32 s19, s19, {dst}')
        k('s_mov_b32 s22, 0x05040100','s_mov_b32 s23, 0x07060302','s_waitcnt vmcnt(0)')
        for f in range(4):
            for q in range(4):
                k(f'v_perm_b32 v{32+4*f+q}, v{16+4*q+2+(f>>1)}, v{16+4*q+(f>>1)}, s{22+(f&1)}')
            k(f'buffer_store_dwordx4 {vr(32+4*f)}, v4, s[8:11], s19 offen offset:{16*f}')
        k('s_endpgm',f'{nxt}:',f's_sub_u32 s4, s4, {cnt}')
        start+=cnt
    nxt=k.lab('seg')
    k('s_cmp_ge_u32 s4, 1',f's_cbranch_scc1 {nxt}')
    k.srd(12,'mem0',8*1280)
    k('v_and_b32 v1, 7, v0','v_lshrrev_b32 v2, 3, v0','v_mul_u32_u24 v3, 1280, v1','v_lshl_add_u32 v3, v2, 4, v3','v_lshlrev_b32 v4, 4, v0')
    for i in range(10): k(f'buffer_load_dwordx4 {vr(8+4*i)}, v3, s[12:15], 0 offen offset:{i*128}')
    k(f's_mul_i32 s5, s3, {2*10240}',f's_add_u32 s5, s5, {OFF["MEM"]}','s_waitcnt vmcnt(0)')
    for g in range(2):
        for i in range(10):
            k(f'buffer_store_dwordx4 {vr(8+4*i)}, v4, s[8:11], s5 offen',f's_add_u32 s5, s5, 1024')
    k('s_endpgm',f'{nxt}:','s_sub_u32 s4, s4, 1'); start+=1
    import os
    NF=int(os.environ.get('NFILL','8'))
    for (f0,sz) in ((OFF['MEM']+8*10240,(NF-1)*8*10240),(OFF['QKVM'],NF*32*6144),(OFF['PART'],NF*8*20*KB))+(((OFF['QK'],4<<20),(OFF['VT'],2<<20)) if os.environ.get('NPRE','1')=='1' else ()):
        fn=sz//16384; assert fn*16384==sz
        nxt=k.lab('seg')
        k(f's_cmp_ge_u32 s4, {fn}',f's_cbranch_scc1 {nxt}')
        k('s_lshl_b32 s5, s4, 14','s_lshl_b32 s6, s3, 10','s_add_u32 s5, s5, s6',f's_add_u32 s5, s5, {f0}','v_lshlrev_b32 v4, 4, v0')
        for i in range(4): k(f'v_mov_b32 v{8+i}, -1')
        for i in range(4): k('buffer_store_dwordx4 v[8:11], v4, s[8:11], s5 offen','s_add_u32 s5, s5, 4096')
        k('s_endpgm',f'{nxt}:',f's_sub_u32 s4, s4, {fn}'); start+=fn
    k('prep_done:')
    return k,start
def gen_ln():
    k=K('ln_kernel',vgpr=96,sgpr=40)
    k('s_cmp_ge_u32 s2, 128','s_cbranch_scc1 ln_done')
    k.srd(8,'ws',WS_BYTES)
    k(f's_mul_i32 s6, s2, {16*1280}',f's_add_u32 s6, s6, {OFF["H"]}',f's_mul_i32 s7, s2, {20*KB}',f's_add_u32 s7, s7, {OFF["HN"]}')
    ln_wave(k,8,6,7)
    k('ln_done:')
    return k
```

```python
from common import *
def gemm_lds(k, NT, MT, WN, WM, KS, wbase, abase, NB, swapped, epi, NBUF=4, idsub=0, end='s_endpgm'):
    ntw=NT//WN; mtw=MT//WM; F=NT+MT; FPW=F//8; assert F%8==0 and WN*WM==8
    ST=F*KB; D=NBUF-1
    k(f's_sub_u32 s4, s2, {idsub}')
    if NB&(NB-1)==0:
        k(f's_and_b32 s5, s4, {NB-1}',f's_lshr_b32 s6, s4, {NB.bit_length()-1}')
    else:
        k(f's_mul_i32 s6, s4, {(65536+NB-1)//NB}','s_lshr_b32 s6, s6, 16',f's_mul_i32 s5, s6, {NB}','s_sub_u32 s5, s4, s5')
    k('v_lshrrev_b32 v1, 6, v0','s_nop 0','v_readfirstlane_b32 s3, v1','v_and_b32 v0, 63, v0','v_lshlrev_b32 v2, 4, v0')
    for i in range(FPW):
        l1=k.lab(); l2=k.lab()
        k(f's_mul_i32 s7, s3, {FPW}',f's_add_u32 s7, s7, {i}',f's_cmp_lt_u32 s7, {NT}',f's_cbranch_scc0 {l1}',
          f's_mul_i32 s12, s5, {NT}','s_add_u32 s12, s12, s7',f's_mul_i32 s12, s12, {KS*KB}',f's_add_u32 s{24+i}, s12, {wbase}',f's_branch {l2}',f'{l1}:',
          f's_mul_i32 s12, s6, {MT}','s_add_u32 s12, s12, s7',f's_sub_u32 s12, s12, {NT}',f's_mul_i32 s12, s12, {KS*KB}',f's_add_u32 s{24+i}, s12, {abase}',f'{l2}:')
    k(f's_mul_i32 s13, s3, {FPW*KB}')
    k(f's_lshr_b32 s14, s3, {WM.bit_length()-1}',f's_and_b32 s15, s3, {WM-1}')
    k(f's_mul_i32 s16, s14, {ntw*KB}',f's_mul_i32 s17, s15, {mtw*KB}',f's_add_u32 s17, s17, {NT*KB}',
      'v_add_u32 v3, s16, v2','v_add_u32 v4, s17, v2','v_mov_b32 v5, v2','v_add_u32 v6, 0x10000, v3','v_add_u32 v7, 0x10000, v4')
    def issue(s):
        b=s%NBUF
        for i in range(FPW):
            k(f's_add_u32 m0, s13, {b*ST+i*KB}','s_nop 0',f'buffer_load_dwordx4 v5, s[8:11], s{24+i} offen lds')
        k('v_add_u32 v5, 1024, v5')
    WF=16; AF=WF+4*ntw; ACC=AF+4*mtw
    k.vgpr=max(k.vgpr,ACC+4*ntw*mtw)
    for s in range(min(D,KS)): issue(s)
    for s in range(KS):
        rem=min(D-1,KS-1-s)
        k(f's_waitcnt vmcnt({rem*FPW})','s_barrier')
        if s+D<KS: issue(s+D)
        b=(s%NBUF)*ST
        order=[('a',j) for j in range(mtw)]+[('w',i) for i in range(ntw)]
        order=[order[0],order[mtw]]+order[1:mtw]+order[mtw+1:]
        for t,i in order:
            off=b+i*KB; hi=off>=65536
            if hi: off-=65536
            if t=='a': k(f'ds_read_b128 {vr(AF+4*i)}, {"v7" if hi else "v4"} offset:{off}')
            else: k(f'ds_read_b128 {vr(WF+4*i)}, {"v6" if hi else "v3"} offset:{off}')
        pos={x:n for n,x in enumerate(order)}; tot=len(order); last=-1
        for i in range(ntw):
            for j in range(mtw):
                need=max(pos[('w',i)],pos[('a',j)])
                if need>last: k(f's_waitcnt lgkmcnt({tot-1-need})'); last=need
                acc=vr(ACC+4*(i*mtw+j)); c=acc if s>0 else '0'
                A,B=(vr(WF+4*i),vr(AF+4*j)) if not swapped else (vr(AF+4*j),vr(WF+4*i))
                k(f'v_mfma_f32_16x16x32_bf16 {acc}, {A}, {B}, {c}')
    k('s_nop 15')
    k(f's_mul_i32 s18, s5, {NT}',f's_mul_i32 s12, s14, {ntw}','s_add_u32 s18, s18, s12',
      f's_mul_i32 s19, s6, {MT}',f's_mul_i32 s12, s15, {mtw}','s_add_u32 s19, s19, s12')
    T=WF
    def a(i,j): return ACC+4*(i*mtw+j)
    if epi=='qk':
        for j in range(mtw):
            for c in range(ntw//2):
                r0,r1=a(2*c,j),a(2*c+1,j); t=T+4*((j*ntw//2+c)%4)
                k(f'v_cvt_pk_bf16_f32 v{t}, v{r0}, v{r0+1}',f'v_cvt_pk_bf16_f32 v{t+1}, v{r0+2}, v{r0+3}',
                  f'v_cvt_pk_bf16_f32 v{t+2}, v{r1}, v{r1+1}',f'v_cvt_pk_bf16_f32 v{t+3}, v{r1+2}, v{r1+3}',
                  f's_add_u32 s12, s19, {j}','s_lshl_b32 s12, s12, 8','s_lshr_b32 s20, s18, 1','s_add_u32 s12, s12, s20',f's_add_u32 s12, s12, {c}',
                  's_lshl_b32 s12, s12, 10',f's_add_u32 s12, s12, {OFF["QK"]}',
                  f'buffer_store_dwordx4 {vr(t)}, v2, s[8:11], s12 offen')
    elif epi=='v':
        for jp in range(mtw//2):
            for i in range(ntw):
                r0,r1=a(i,2*jp),a(i,2*jp+1); t=T+4*((jp*ntw+i)%4)
                k(f'v_cvt_pk_bf16_f32 v{t}, v{r0}, v{r0+1}',f'v_cvt_pk_bf16_f32 v{t+1}, v{r0+2}, v{r0+3}',
                  f'v_cvt_pk_bf16_f32 v{t+2}, v{r1}, v{r1+1}',f'v_cvt_pk_bf16_f32 v{t+3}, v{r1+2}, v{r1+3}',
                  's_lshr_b32 s12, s19, 1',f's_add_u32 s12, s12, {jp}','s_lshl_b32 s12, s12, 8','s_add_u32 s12, s12, s18',f's_add_u32 s12, s12, {i}',
                  's_lshl_b32 s12, s12, 10',f's_add_u32 s12, s12, {OFF["VT"]}',
                  f'buffer_store_dwordx4 {vr(t)}, v2, s[8:11], s12 offen')
    elif epi=='swiglu':
        assert ntw==4
        k('s_mov_b32 s21, 0xbfb8aa3b')
        for j in range(mtw):
            t=T+4*(j%4)
            for tt in range(2):
                g=a(tt,j); u=a(2+tt,j)
                for i in range(4):
                    k(f'v_mul_f32 v6, s21, v{g+i}','v_exp_f32 v6, v6','s_nop 0','v_add_f32 v6, 1.0, v6','v_rcp_f32 v6, v6',
                      f'v_mul_f32 v{g+i}, v{g+i}, v{u+i}',f'v_mul_f32 v{g+i}, v{g+i}, v6')
                k(f'v_cvt_pk_bf16_f32 v{t+2*tt}, v{g}, v{g+1}',f'v_cvt_pk_bf16_f32 v{t+2*tt+1}, v{g+2}, v{g+3}')
            k(f's_add_u32 s12, s19, {j}','s_mul_i32 s12, s12, 54','s_lshr_b32 s20, s18, 2','s_add_u32 s12, s12, s20',
              's_lshl_b32 s12, s12, 10',f's_add_u32 s12, s12, {OFF["HH"]}',
              f'buffer_store_dwordx4 {vr(t)}, v2, s[8:11], s12 offen')
    k(end)
    return NBUF*ST
def gen_g1():
    k=K('qkv_kernel',vgpr=64,sgpr=40)
    k('s_cmp_ge_u32 s2, 512','s_cbranch_scc1 qkv_done')
    k.srd(8,'ws',WS_BYTES)
    k('s_cmp_ge_u32 s2, 256','s_cbranch_scc1 qkv_v')
    l1=gemm_lds(k,16,16,2,4,20,OFF['WQKV'],OFF['XN'],32,False,'qk',NBUF=4)
    k('qkv_v:')
    l2=gemm_lds(k,16,8,4,2,20,OFF['WQKV']+512*20*KB,OFF['XN'],16,True,'v',NBUF=4,idsub=256)
    k('qkv_done:')
    return k,max(l1,l2)
def gen_g3():
    k=K('ffn1_kernel',vgpr=64,sgpr=40)
    k('s_cmp_ge_u32 s2, 216','s_cbranch_scc1 ffn1_done')
    k.srd(8,'ws',WS_BYTES)
    l=gemm_lds(k,8,16,2,4,20,OFF['W13'],OFF['HN'],27,False,'swiglu',NBUF=4)
    k('ffn1_done:')
    return k,l

def gen_direct(name, KS, wbase, abase, res_arg, res_off, out_arg, out_off):
    NT,MT,NS=5,4,4
    k=K(name,vgpr=256,sgpr=40)
    k('s_cmp_ge_u32 s2, 256',f's_cbranch_scc1 {name}_done')
    k.srd(8,'ws',WS_BYTES)
    k('s_and_b32 s5, s2, 7','s_lshl_b32 s5, s5, 2','s_lshr_b32 s6, s2, 3','s_and_b32 s6, s6, 3','s_add_u32 s6, s5, s6','s_lshr_b32 s5, s2, 5')
    k('v_lshrrev_b32 v1, 6, v0','s_nop 0','v_readfirstlane_b32 s3, v1','v_and_b32 v0, 63, v0','v_lshlrev_b32 v2, 4, v0')
    for i in range(NT): k(f's_mul_i32 s12, s5, {NT}',f's_add_u32 s12, s12, {i}',f's_mul_i32 s12, s12, {KS*KB}',f's_add_u32 s{24+i}, s12, {wbase}')
    for j in range(MT): k(f's_mul_i32 s12, s6, {MT}',f's_add_u32 s12, s12, {j}',f's_mul_i32 s12, s12, {KS*KB}',f's_add_u32 s{24+NT+j}, s12, {abase}')
    k('s_lshl_b32 s12, s3, 10','v_add_u32 v5, s12, v2')
    k(f's_sub_u32 s13, {KS+3}, s3','s_lshr_b32 s13, s13, 2')
    FR=8; ACC=FR+NS*36
    def issue(st):
        for i in range(NT+MT): k(f'buffer_load_dwordx4 {vr(FR+st*36+4*i)}, v5, s[8:11], s{24+i} offen')
        k('v_add_u32 v5, 4096, v5')
    for i in range(80): k(f'v_mov_b32 v{ACC+i}, 0')
    for st in range(NS-1): issue(st)
    lp=f'{name}_lp'; fin=f'{name}_fin'
    k(f'{lp}:')
    for st in range(NS):
        issue((st+NS-1)%NS)
        k(f's_waitcnt vmcnt({(NS-1)*9})')
        for i in range(NT):
            for j in range(MT):
                acc=vr(ACC+4*(i*MT+j))
                k(f'v_mfma_f32_16x16x32_bf16 {acc}, {vr(FR+st*36+4*i)}, {vr(FR+st*36+4*(NT+j))}, {acc}')
        k('s_sub_u32 s13, s13, 1','s_cmp_eq_u32 s13, 0',f's_cbranch_scc1 {fin}')
    k(f's_branch {lp}',f'{fin}:','s_nop 15','s_waitcnt vmcnt(0)')
    for j in range(MT):
        sk=k.lab('sk')
        k(f's_cmp_eq_u32 s3, {j}',f's_cbranch_scc1 {sk}',f's_sub_u32 s12, s3, {j+1}','s_and_b32 s12, s12, 3',f's_add_u32 s12, s12, {j*3}','s_mul_i32 s12, s12, 5120','v_add_u32 v3, s12, v2')
        for i in range(NT): k(f'ds_write_b128 v3, {vr(ACC+4*(i*MT+j))} offset:{i*KB}')
        k(f'{sk}:')
    k('s_waitcnt lgkmcnt(0)','s_barrier')
    R=FR
    for j in range(MT):
        sk=k.lab('sk')
        k(f's_cmp_eq_u32 s3, {j}',f's_cbranch_scc0 {sk}')
        for i in range(NT):
            for q in range(4): k(f'v_mov_b32 v{R+4*i+q}, v{ACC+4*(i*MT+j)+q}')
        k(f'{sk}:')
    k('s_mul_i32 s12, s3, 15360','v_add_u32 v3, s12, v2')
    S=R+20
    for sidx in range(3):
        for i in range(NT): k(f'ds_read_b128 {vr(S+20*sidx+4*i)}, v3 offset:{(sidx*5+i)*KB}')
    k.srd(12,res_arg,2048*1280,add=res_off)
    k.srd(16,out_arg,2048*1280,add=out_off)
    k('s_lshl_b32 s22, s6, 2','s_add_u32 s22, s22, s3',f's_mul_i32 s22, s22, {16*1280}',
      'v_and_b32 v3, 15, v0','v_mul_u32_u24 v3, 1280, v3','v_lshrrev_b32 v4, 4, v0','v_lshl_add_u32 v3, v4, 4, v3','v_add_u32 v3, s22, v3')
    X=S+60
    for i in range(NT):
        k(f's_mul_i32 s20, s5, {NT}',f's_add_u32 s20, s20, {i}','s_lshr_b32 s21, s20, 1','s_lshl_b32 s21, s21, 6','s_and_b32 s20, s20, 1','s_lshl_b32 s20, s20, 3',f's_add_u32 s{24+i}, s20, s21',
          f'buffer_load_dwordx2 {vr(X+2*i,2)}, v3, s[12:15], s{24+i} offen')
    k('s_waitcnt lgkmcnt(0)')
    for sidx in range(3):
        for q in range(20): k(f'v_add_f32 v{R+q}, v{R+q}, v{S+20*sidx+q}')
    k('s_waitcnt vmcnt(0)')
    for i in range(NT):
        r=R+4*i; x=X+2*i
        k(f'v_cvt_pk_bf16_f32 v{r}, v{r}, v{r+1}',f'v_cvt_pk_bf16_f32 v{r+1}, v{r+2}, v{r+3}')
        for d in range(2):
            k(f'v_lshlrev_b32 v4, 16, v{r+d}',f'v_and_b32 v5, 0xffff0000, v{r+d}',f'v_lshlrev_b32 v6, 16, v{x+d}',f'v_and_b32 v7, 0xffff0000, v{x+d}',
              'v_add_f32 v4, v4, v6','v_add_f32 v5, v5, v7',f'v_cvt_pk_bf16_f32 v{x+d}, v4, v5')
        k(f'buffer_store_dwordx2 {vr(x,2)}, v3, s[16:19], s{24+i} offen')
    k(f'{name}_done:')
    return k,61440

import os
HACK=os.environ.get('HACK','')
def gen_g1b():
    k=K('qkv_kernel',vgpr=256,agpr=256,sgpr=48)
    KS=20; ST=40*KB; NB=3
    k('s_cmp_ge_u32 s2, 256','s_cbranch_scc1 qkv_done')
    k.srd(8,'ws',WS_BYTES)
    if 'clk' in HACK: k('s_memtime s[40:41]')
    k('s_and_b32 s5, s2, 31','s_lshr_b32 s6, s2, 5')
    k('v_lshrrev_b32 v1, 6, v0','s_nop 0','v_readfirstlane_b32 s3, v1','v_and_b32 v0, 63, v0','v_lshlrev_b32 v2, 4, v0')
    for i in range(10):
        l1=k.lab(); l2=k.lab(); l3=k.lab()
        k('s_mul_i32 s7, s3, 10',f's_add_u32 s7, s7, {i}','s_cmp_lt_u32 s7, 16',f's_cbranch_scc0 {l1}',
          's_lshl_b32 s12, s5, 4','s_add_u32 s12, s12, s7',f's_mul_i32 s12, s12, {KS*KB}',f's_add_u32 s{24+i}, s12, {OFF["WQKV"]}',f's_branch {l3}',f'{l1}:',
          's_cmp_lt_u32 s7, 24',f's_cbranch_scc0 {l2}',
          's_lshl_b32 s12, s5, 3','s_add_u32 s12, s12, s7',f's_add_u32 s12, s12, {512-16}',f's_mul_i32 s12, s12, {KS*KB}',f's_add_u32 s{24+i}, s12, {OFF["WQKV"]}',f's_branch {l3}',f'{l2}:',
          's_lshl_b32 s12, s6, 4','s_add_u32 s12, s12, s7','s_sub_u32 s12, s12, 24',f's_mul_i32 s12, s12, {KS*KB}',f's_add_u32 s{24+i}, s12, {OFF["XN"]}',f'{l3}:')
    k(f's_mul_i32 s13, s3, {10*KB}','s_lshr_b32 s14, s3, 1','s_and_b32 s15, s3, 1')
    k('s_lshl_b32 s16, s14, 13','s_lshl_b32 s17, s14, 12',f's_add_u32 s17, s17, {16*KB}','s_lshl_b32 s18, s15, 13',f's_add_u32 s18, s18, {24*KB}',
      'v_add_u32 v3, s16, v2','v_add_u32 v8, s17, v2','v_add_u32 v4, s18, v2','v_mov_b32 v5, v2',
      'v_add_u32 v6, 0x10000, v3','v_add_u32 v9, 0x10000, v8','v_add_u32 v7, 0x10000, v4')
    def issue(s):
        b=s%NB
        if 'nodma' in HACK and s>2: return
        for i in range(10): k(f's_add_u32 m0, s13, {b*ST+i*KB}','s_nop 0',f'buffer_load_dwordx4 v5, s[8:11], s{24+i} offen lds')
        k('v_add_u32 v5, 1024, v5')
    WS0=12; A0=64; VA=128
    def rdw(s,i,slot):
        off=(s%NB)*ST+(i if i<4 else i-4)*KB; lo,hi=('v8','v9') if i<4 else ('v3','v6')
        r=lo
        if off>=65536: off-=65536; r=hi
        k(f'ds_read_b128 {vr(WS0+4*slot)}, {r} offset:{off}')
    def rda(s,j):
        off=(s%NB)*ST+j*KB; r='v4'
        if off>=65536: off-=65536; r='v7'
        k(f'ds_read_b128 {vr(A0+32*(s%2)+4*j)}, {r} offset:{off}')
    def acc(i,j): return vr(VA+4*(i*8+j)) if i<4 else ar(4*((i-4)*8+j))
    for s in range(3): issue(s)
    k('s_waitcnt vmcnt(20)','s_barrier')
    sig=list(range(12)); free=12
    for i in range(12): rdw(0,i,i)
    for j in range(8): rda(0,j)
    for s in range(KS):
        nxt=s+1<KS
        k(f's_waitcnt vmcnt({10 if s+2<KS else 0}) lgkmcnt(0)','s_barrier')
        if s+3<KS: issue(s+3)
        nsig=[free]+sig[:11]; nfree=sig[11]
        if nxt:
            rdw(s+1,0,nsig[0])
        for i in range(12):
            for j in range(8):
                W=vr(WS0+4*sig[i]); A=vr(A0+32*(s%2)+4*j); c=acc(i,j) if s else '0'
                X,Y=(A,W) if i<4 else (W,A)
                k(f'v_mfma_f32_16x16x32_bf16 {acc(i,j)}, {X}, {Y}, {c}')
                if nxt and i==0: rda(s+1,j)
            if nxt and i<11: rdw(s+1,i+1,nsig[i+1])
        sig,free=nsig,nfree
    k('s_lshl_b32 s18, s5, 3','s_lshl_b32 s12, s14, 2','s_add_u32 s17, s18, s12','s_add_u32 s18, s18, s12','s_lshl_b32 s19, s6, 4','s_lshl_b32 s12, s15, 3','s_add_u32 s19, s19, s12')
    n=0
    if 'clk' in HACK:
        k('s_nop 15','s_memtime s[42:43]','s_waitcnt lgkmcnt(0)','s_sub_u32 s42, s42, s40','s_lshl_b32 s43, s2, 2','s_add_u32 s43, s43, s3','s_lshl_b32 s43, s43, 2','v_mov_b32 v12, s42','v_mov_b32 v13, s43')
        k.srd(44,'dbg',4096)
        k('buffer_store_dword v12, v13, s[44:47], 0 offen')
    if 'nost' in HACK: k('s_endpgm')
    for jp in range(4):
        for i in range(4):
            r0=VA+4*(i*8+2*jp); r1=r0+4; t=12+4*(n%8); n+=1
            k(f'v_cvt_pk_bf16_f32 v{t}, v{r0}, v{r0+1}',f'v_cvt_pk_bf16_f32 v{t+1}, v{r0+2}, v{r0+3}',
              f'v_cvt_pk_bf16_f32 v{t+2}, v{r1}, v{r1+1}',f'v_cvt_pk_bf16_f32 v{t+3}, v{r1+2}, v{r1+3}',
              's_lshr_b32 s12, s19, 1',f's_add_u32 s12, s12, {jp}','s_lshl_b32 s12, s12, 8','s_add_u32 s12, s12, s17',f's_add_u32 s12, s12, {i}',
              's_lshl_b32 s12, s12, 10',f's_add_u32 s12, s12, {OFF["VT"]}',f'buffer_store_dwordx4 {vr(t)}, v2, s[8:11], s12 offen')
    k('s_nop 15')
    for c in range(4):
        for j in range(8):
            a0=4*((2*c)*8+j); a1=4*((2*c+1)*8+j); t=12+4*(n%8); u=64+8*(n%4); n+=1
            for q in range(4): k(f'v_accvgpr_read_b32 v{u+q}, a{a0+q}',f'v_accvgpr_read_b32 v{u+4+q}, a{a1+q}')
            k(f'v_cvt_pk_bf16_f32 v{t}, v{u}, v{u+1}',f'v_cvt_pk_bf16_f32 v{t+1}, v{u+2}, v{u+3}',
              f'v_cvt_pk_bf16_f32 v{t+2}, v{u+4}, v{u+5}',f'v_cvt_pk_bf16_f32 v{t+3}, v{u+6}, v{u+7}',
              f's_add_u32 s12, s19, {j}','s_lshl_b32 s12, s12, 8','s_add_u32 s12, s12, s18',f's_add_u32 s12, s12, {c}',
              's_lshl_b32 s12, s12, 10',f's_add_u32 s12, s12, {OFF["QK"]}',f'buffer_store_dwordx4 {vr(t)}, v2, s[8:11], s12 offen')
    k('qkv_done:')
    return k,NB*ST
```

```python
from common import *
from attn import *
NSTEP=64
SPIN=1<<16
TRACE=False
CSLEEP=0
NOPF=0
PSLEEP=0
WARM=2
PIPE=0
PIPEA=0
BSLEEP=4
TATT=1
RING=8
PFILL=1
def chain_body(k, fast, tag):
    def ts(i):
        if TRACE: k(f's_memtime s[{72+2*i}:{73+2*i}]')
    LS='' if fast else ' sc1'
    started=[False]
    M=64; Q=192; KM=208; VM=224; S=112; P=124; O=132; T=8; MM=3; OB=164; D=180; PT=188; ONE=240; SM=244; MB0=16448; MF=96
    L=lambda n: f'ch_{tag}_{n}'
    MB=36
    lane_consts(k,MB,MM,T)
    k('v_and_b32 v12, 7, v0','v_lshrrev_b32 v13, 4, v0','v_lshlrev_b32 v12, 4, v12','v_lshl_add_u32 v12, v13, 7, v12')
    k('v_and_b32 v14, 15, v0','v_and_b32 v15, 1, v13','v_lshlrev_b32 v14, 4, v14','v_lshl_add_u32 v14, v15, 8, v14')
    k('v_lshrrev_b32 v18, 5, v0','v_bfe_u32 v19, v0, 3, 2','v_and_b32 v20, 7, v0',
      'v_lshlrev_b32 v16, 10, v18','v_lshl_add_u32 v16, v19, 8, v16','v_lshl_add_u32 v16, v20, 4, v16',
      'v_lshlrev_b32 v17, 7, v19','v_lshl_add_u32 v17, v20, 4, v17','v_lshl_add_u32 v17, v18, 3, v17')
    k('v_mov_b32 v21, -2')
    for i in range(4): k(f'v_mov_b32 v{56+i}, -1')
    k('v_and_b32 v18, 8, v0','v_cmp_eq_u32 s[50:51], 0, v18','s_mov_b32 s52, -1','s_mov_b32 s53, 0')
    k('s_lshr_b32 s42, s41, 3','s_and_b32 s43, s41, 7','s_lshl_b32 s44, s40, 2','s_add_u32 s45, s44, s42')
    k('s_cmp_eq_u32 s3, 3',f's_cbranch_scc1 {L("nowa")}')
    k('s_lshl_b32 s12, s3, 8','s_lshl_b32 s13, s45, 3','s_add_u32 s12, s12, s13','s_add_u32 s12, s12, s43',f's_mul_i32 s12, s12, {20*KB}',f's_add_u32 s12, s12, {OFF["WQKV"]}')
    for ks in range(20):
        if ks%4==0 and ks: k('s_add_u32 s12, s12, 4096')
        k(f'buffer_load_dwordx4 {ar(4*ks)}, v2, s[8:11], s12 offen offset:{(ks%4)*KB}')
    k(f'{L("nowa")}:')
    k('s_add_u32 s46, s44, s3')
    k('s_cmp_ge_u32 s41, 20',f's_cbranch_scc1 {L("nowo")}')
    for t in range(2):
        k('s_lshl_b32 s12, s41, 1',f's_add_u32 s12, s12, {t}','s_lshl_b32 s12, s12, 7','s_lshl_b32 s13, s46, 2','s_add_u32 s12, s12, s13','s_lshl_b32 s12, s12, 10',f's_add_u32 s12, s12, {OFF["WO"]}')
        for c in range(4): k(f'buffer_load_dwordx4 {ar(80+16*t+4*c)}, v2, s[8:11], s12 offen offset:{c*KB}')
    k('s_lshl_b32 s54, s46, 12',f's_add_u32 s54, s54, {OFF["QK"]+128*KB}','s_lshl_b32 s55, s46, 13',f's_add_u32 s55, s55, {OFF["VT"]}')
    def pf_k():
        if NOPF and started[0]: return
        for kt in range(2):
            k(f's_add_u32 s12, s54, {kt*256*KB}')
            for ks in range(4): k(f'buffer_load_dwordx4 {ar(112+16*kt+4*ks)}, v2, s[8:11], s12 offen offset:{ks*KB}')
        k(f's_add_u32 s54, s54, {512*KB}')
    def pf_v():
        if NOPF and started[0]: return
        for hf in range(2):
            k(f's_add_u32 s12, s55, {hf*4096}')
            for e in range(4): k(f'buffer_load_dwordx4 {ar(144+16*hf+4*e)}, v2, s[8:11], s12 offen offset:{e*KB}')
        k(f's_add_u32 s55, s55, {256*KB}')
    pf_k(); pf_v()
    started[0]=True
    k(f'{L("nowo")}:')
    k(f's_mul_i32 s92, s40, 10240',f's_add_u32 s92, s92, {OFF["MEM"]}')
    k(f's_mul_i32 s93, s45, 6144',f's_add_u32 s93, s93, {OFF["QKVM"]}')
    k(f's_mul_i32 s94, s46, 6144',f's_add_u32 s94, s94, {OFF["QKVM"]}')
    k(f's_lshl_b32 s95, s41, 10',f's_add_u32 s95, s95, {OFF["PART"]}')
    TQ=64; TK=96; TKM=128; TV=144; TVM=176; TS=192; TP=204; TO=212
    k('s_sub_u32 s12, s41, 20','s_lshr_b32 s12, s12, 1','s_add_u32 s12, s12, s44','s_and_b32 s91, s41, 1',
      's_lshl_b32 s13, s12, 12','s_lshl_b32 s14, s91, 18','s_add_u32 s68, s13, s14',f's_add_u32 s68, s68, {OFF["QK"]}',f's_add_u32 s69, s13, {OFF["QK"]+128*KB}',
      's_lshl_b32 s70, s12, 13',f's_add_u32 s70, s70, {OFF["VT"]}','s_mul_i32 s71, s12, 6144',f's_add_u32 s71, s71, {OFF["QKVM"]}',
      's_lshl_b32 s14, s91, 17','s_add_u32 s88, s13, s14',f's_add_u32 s88, s88, {OFF["O"]}','s_mov_b32 s89, 0','s_mov_b32 s90, 0')
    def tpf():
        for ks in range(4): k(f'buffer_load_dwordx4 {vr(TQ+4*ks)}, v2, s[8:11], s68 offen offset:{ks*KB}')
        for kt in range(2):
            k(f's_add_u32 s12, s69, {kt*256*KB}')
            for ks in range(4): k(f'buffer_load_dwordx4 {vr(TK+16*kt+4*ks)}, v2, s[8:11], s12 offen offset:{ks*KB}')
        for hf in range(2):
            k(f's_add_u32 s12, s70, {hf*4096}')
            for e in range(4): k(f'buffer_load_dwordx4 {vr(TV+16*hf+4*e)}, v2, s[8:11], s12 offen offset:{e*KB}')
        k(f's_add_u32 s68, s68, {512*KB}',f's_add_u32 s69, s69, {512*KB}',f's_add_u32 s70, s70, {256*KB}')
    if TATT:
        k('s_cmp_eq_u32 s3, 3',f's_cbranch_scc0 {L("not")}','s_cmp_lt_u32 s41, 20',f's_cbranch_scc1 {L("not")}','s_cmp_ge_u32 s41, 28',f's_cbranch_scc1 {L("not")}','s_mov_b32 s90, 1')
        tpf()
        k(f'{L("not")}:')
    k('s_lshr_b32 s12, s43, 1','s_lshl_b32 s12, s12, 9','s_and_b32 s13, s43, 1','s_lshl_b32 s13, s13, 3','s_add_u32 s12, s12, s13','s_lshl_b32 s13, s3, 11','s_add_u32 s12, s12, s13')
    k('s_cmp_eq_u32 s3, 2',f's_cbranch_scc1 {L("vo")}','v_add_u32 v22, s12, v12',f's_branch {L("vo2")}',f'{L("vo")}:','v_add_u32 v22, s12, v14',f'{L("vo2")}:')
    k('s_mov_b32 s60, 0')
    for i in range(48): k(f'v_mov_b32 v{Q+i}, 0')
    for i in range(4): k(f'v_mov_b32 v{ONE+i}, 0x3f803f80')
    k('s_lshl_b32 s62, s3, 10','v_add_u32 v23, s62, v2','s_cmp_eq_u32 s3, 0','s_cselect_b32 s67, 9216, 0','s_waitcnt vmcnt(0)')
    k(f'{L("loop")}:')
    ts(0)
    k(f's_and_b32 s12, s60, {RING-1}',f's_mul_i32 s13, s12, {8*10240}','s_add_u32 s56, s92, s13',f's_mul_i32 s13, s12, {32*6144}','s_add_u32 s57, s93, s13','s_add_u32 s58, s94, s13',
      f's_mul_i32 s13, s12, {8*20*KB}','s_add_u32 s59, s95, s13',f's_add_u32 s47, s60, {WARM}',f's_and_b32 s47, s47, {RING-1}')
    k('s_and_b32 s12, s60, 1','s_mul_i32 s63, s12, 10240',f's_add_u32 s63, s63, {MB0}','v_add_u32 v18, s63, v23')
    if WARM:
        k('s_cmp_eq_u32 s3, 3',f's_cbranch_scc0 {L("nw")}',f's_cmp_gt_u32 s60, {63-WARM}',f's_cbranch_scc1 {L("nw")}')
        k(f's_mul_i32 s12, s47, {32*6144}',f's_mul_i32 s13, s44, 6144','s_add_u32 s12, s12, s13',f's_add_u32 s12, s12, {OFF["QKVM"]}','s_lshl_b32 s13, s41, 10','s_add_u32 s12, s12, s13')
        k(f's_mul_i32 s15, s47, {8*10240}','s_add_u32 s15, s15, s92')
        k(f's_sub_u32 s14, s15, {24*1024}','s_add_u32 s14, s14, s13','s_cmp_lt_u32 s41, 24','s_cselect_b32 s12, s12, s14',
          f'buffer_store_dwordx4 v[56:59], v2, s[8:11], s12 offen{LS}',
          's_add_u32 s14, s15, 8192','s_and_b32 s13, s13, 1024','s_add_u32 s14, s14, s13',f'buffer_store_dwordx4 v[56:59], v2, s[8:11], s14 offen{LS}','s_waitcnt vmcnt(0)')
        k(f'{L("nw")}:')
    k('s_cmp_eq_u32 s3, 3',f's_cbranch_scc1 {L("A3")}')
    k('s_add_u32 s64, s56, 3072','s_add_u32 s65, s56, 6144','s_add_u32 s66, s56, s67')
    def aiss(st):
        b0=M+16*st
        k(f'buffer_load_dwordx4 {vr(b0)}, v23, s[8:11], s56 offen sc1',f'buffer_load_dwordx4 {vr(b0+4)}, v23, s[8:11], s64 offen sc1',
          f'buffer_load_dwordx4 {vr(b0+8)}, v23, s[8:11], s65 offen sc1',f'buffer_load_dwordx4 {vr(b0+12)}, v23, s[8:11], s66 offen sc1')
    if PIPEA: aiss(0)
    k(f's_mov_b32 s61, {SPIN}',f'{L("Ap")}:')
    for st in range(2):
        b0=M+16*st
        aiss(1-st) if PIPEA else aiss(st)
        k('s_waitcnt vmcnt(4)' if PIPEA else 's_waitcnt vmcnt(0)',f'v_max3_u32 v{T}, v{b0}, v{b0+2}, v{b0+4}',f'v_max3_u32 v{T+1}, v{b0+6}, v{b0+8}, v{b0+10}',f'v_max3_u32 v{T}, v{T}, v{b0+12}, v{b0+14}',f'v_max_u32 v{T}, v{T}, v{T+1}')
        k(f'v_cmp_eq_u32 vcc, -1, v{T}','s_sub_u32 s61, s61, 1','s_cmp_eq_u32 s61, 0',f's_cbranch_scc1 {L("Ad%d"%st)}',f's_cbranch_vccz {L("Ad%d"%st)}')
    k(f's_branch {L("Ap")}')
    for st in range(2):
        b0=M+16*st
        k(f'{L("Ad%d"%st)}:',f'ds_write_b128 v18, {vr(b0)}',f'ds_write_b128 v18, {vr(b0+4)} offset:3072',f'ds_write_b128 v18, {vr(b0+8)} offset:6144',
          's_cmp_eq_u32 s3, 0',f's_cbranch_scc0 {L("A3")}',f'ds_write_b128 v18, {vr(b0+12)} offset:9216',f's_branch {L("A3")}')
    k(f'{L("A3")}:')
    if TRACE: k('s_cmp_eq_u32 s3, 3',f's_cbranch_scc1 {L("t4")}',f's_sub_u32 s84, {SPIN}, s61',f'{L("t4")}:')
    k('v_add_u32 v18, s63, v12','s_waitcnt lgkmcnt(0)','s_barrier')
    ts(1)
    k('s_cmp_eq_u32 s3, 3',f's_cbranch_scc1 {L("B")}')
    if TRACE: k('s_waitcnt lgkmcnt(0)')
    for ks in range(12): k(f'ds_read_b128 {vr(MF+4*ks)}, v18 offset:{ks*512}')
    for sw in (0,1):
        if sw==0: k('s_cmp_eq_u32 s3, 2',f's_cbranch_scc1 {L("Av")}')
        else: k(f'{L("Av")}:')
        for ks in range(20):
            k(f's_waitcnt lgkmcnt({min(11,19-ks)})')
            A,B=(ar(4*ks),vr(MF+4*(ks%12))) if sw==0 else (vr(MF+4*(ks%12)),ar(4*ks))
            k(f'v_mfma_f32_16x16x32_bf16 {vr(D)}, {A}, {B}, {vr(D) if ks else 0}')
            if ks+12<20: k(f'ds_read_b128 {vr(MF+4*ks)}, v18 offset:{(ks+12)*512}')
        k('s_nop 7',f'v_cvt_pk_bf16_f32 v{PT}, v{D}, v{D+1}',f'v_cvt_pk_bf16_f32 v{PT+1}, v{D+2}, v{D+3}',f'v_min_u32 v{PT}, v{PT}, v21')
        k(f's_mov_b64 exec, s[{50 if sw==0 else 52}:{51 if sw==0 else 53}]',f'buffer_store_dwordx2 {vr(PT,2)}, v22, s[8:11], s57 offen{LS}','s_mov_b64 exec, -1')
        if sw==0: k(f's_branch {L("B")}')
    k(f'{L("B")}:','s_cmp_ge_u32 s41, 20',f's_cbranch_scc1 {L("hi")}',f's_cmp_eq_u32 s60, {NSTEP-1}',f's_cbranch_scc1 {L("end")}')
    ts(2)
    k(f's_sleep {BSLEEP}') if BSLEEP else None
    k(f's_mov_b32 s61, {SPIN}',f'{L("Bp")}:','s_mov_b64 exec, s[50:51]')
    for ks in range(4): k(f'buffer_load_dwordx4 {vr(Q+4*ks)}, v12, s[8:11], s58 offen offset:{ks*512} sc1')
    for ks in range(4): k(f'buffer_load_dwordx4 {vr(KM+4*ks)}, v12, s[8:11], s58 offen offset:{2048+ks*512} sc1')
    k('s_add_u32 s12, s58, 4096','s_mov_b64 exec, s[52:53]')
    for ep in range(4): k(f'buffer_load_dwordx4 {vr(VM+4*ep)}, v14, s[8:11], s12 offen offset:{ep*512} sc1')
    k('s_mov_b64 exec, -1')
    for i in range(12):
        k(f's_waitcnt vmcnt({11-i})')
        b=Q+4*i
        if i==0: k(f'v_max_u32 v{T}, v{b}, v{b+2}')
        else: k(f'v_max3_u32 v{T}, v{T}, v{b}, v{b+2}')
        if i<4:
            for t in range(2): k(f'v_mfma_f32_16x16x32_bf16 {vr(S+4*t)}, {ar(112+16*t+4*i)}, {vr(Q+4*i)}, {vr(S+4*t) if i else 0}')
        elif i<8:
            k(f'v_mfma_f32_16x16x32_bf16 {vr(S+8)}, {vr(KM+4*(i-4))}, {vr(Q+4*(i-4))}, {vr(S+8) if i>4 else 0}')
    k(f'v_cmp_eq_u32 vcc, -1, v{T}','s_sub_u32 s61, s61, 1','s_cmp_eq_u32 s61, 0',f's_cbranch_scc1 {L("Bd")}',f's_cbranch_vccnz {L("Bp")}',f'{L("Bd")}:')
    ts(3)
    if TRACE: k('s_cmp_eq_u32 s3, 3',f's_cbranch_scc1 {L("t3")}',f's_sub_u32 s82, {SPIN}, s61',f'{L("t3")}:')
    vals=[S+i for i in range(12)]
    for i in range(4): k(f'v_add_f32 v{S+8+i}, v{S+8+i}, v{MM}')
    m=T
    k(f'v_max3_f32 v{m}, v{S}, v{S+1}, v{S+2}',f'v_max3_f32 v{m+1}, v{S+3}, v{S+4}, v{S+5}',f'v_max3_f32 v{m}, v{m}, v{S+6}, v{S+7}',f'v_max3_f32 v{m+1}, v{m+1}, v{S+8}, v{S+9}',
      f'v_max3_f32 v{m}, v{m}, v{S+10}, v{S+11}',f'v_max_f32 v{m}, v{m}, v{m+1}')
    xred(k,'v_max_f32',m,T+1)
    k(f'v_mul_f32 v{m}, 0x{CS:x}, v{m}',f's_mov_b32 s39, 0x{CS:x}')
    for v in vals: k(f'v_fma_f32 v{v}, v{v}, s39, -v{m}')
    for v in vals: k(f'v_exp_f32 v{v}, v{v}')
    k('s_nop 0')
    for t in range(3): k(f'v_cvt_pk_bf16_f32 v{P+2*t}, v{S+4*t}, v{S+4*t+1}',f'v_cvt_pk_bf16_f32 v{P+2*t+1}, v{S+4*t+2}, v{S+4*t+3}')
    k('s_nop 1')
    def pv1(et): k(f'v_mfma_f32_16x16x32_bf16 {vr(O+4*et)}, {ar(144+4*et)}, {vr(P)}, 0')
    def pv2(et): k(f'v_mfma_f32_16x16x16_bf16 {vr(O+4*et)}, {vr(VM+2*et,2)}, {vr(P+4,2)}, {vr(O+4*et)}')
    def cv(c):
        r0=O+8*c; t=OB+4*c
        k(f'v_cvt_pk_bf16_f32 v{t}, v{r0}, v{r0+1}',f'v_cvt_pk_bf16_f32 v{t+1}, v{r0+2}, v{r0+3}',
          f'v_cvt_pk_bf16_f32 v{t+2}, v{r0+4}, v{r0+5}',f'v_cvt_pk_bf16_f32 v{t+3}, v{r0+6}, v{r0+7}')
    def wo(c):
        for t in range(2): k(f'v_mfma_f32_16x16x32_bf16 {vr(D+4*t)}, {ar(80+16*t+4*c)}, {vr(OB+4*c)}, {vr(D+4*t) if c else 0}')
    for et in range(8): pv1(et)
    k(f'v_mfma_f32_16x16x32_bf16 {vr(SM)}, {vr(ONE)}, {vr(P)}, 0')
    for et in range(8): pv2(et)
    k(f'v_mfma_f32_16x16x16_bf16 {vr(SM)}, {vr(ONE,2)}, {vr(P+4,2)}, {vr(SM)}')
    k('s_nop 1'); cv(0); cv(1); wo(0); cv(2); wo(1); k(f'v_rcp_f32 v{T}, v{SM}'); cv(3); wo(2); k('s_nop 0'); wo(3)
    k('s_nop 7')
    for i in range(8): k(f'v_mul_f32 v{D+i}, v{D+i}, v{T}')
    k('s_and_b32 s12, s60, 1','s_lshl_b32 s12, s12, 13','s_lshl_b32 s13, s3, 11','s_add_u32 s13, s13, s12','v_add_u32 v18, s13, v2')
    k(f'ds_write_b128 v18, {vr(D)}',f'ds_write_b128 v18, {vr(D+4)} offset:1024','s_waitcnt lgkmcnt(0)','s_barrier')
    ts(4)
    k('s_cmp_eq_u32 s3, 3',f's_cbranch_scc0 {L("pf")}')
    k('v_add_u32 v18, s12, v16')
    for hh in range(4): k(f'ds_read_b128 {vr(M+4*hh)}, v18 offset:{hh*2048}')
    k('s_waitcnt lgkmcnt(0)')
    for q in range(4): k(f'v_add_f32 v{M+q}, v{M+q}, v{M+4+q}',f'v_add_f32 v{M+8+q}, v{M+8+q}, v{M+12+q}',f'v_add_f32 v{M+q}, v{M+q}, v{M+8+q}')
    k(f'v_min_u32 v{M}, v{M}, v21',f's_mul_i32 s12, s40, {20*KB}','s_add_u32 s12, s12, s59',f'buffer_store_dwordx4 {vr(M)}, v2, s[8:11], s12 offen sc1')
    ts(5)
    k('s_add_u32 s48, s60, 1',f's_and_b32 s48, s48, {RING-1}',f's_mul_i32 s48, s48, {8*10240}','s_add_u32 s48, s48, s92')
    pf_k(); pf_v()
    if CSLEEP: k(f's_sleep {CSLEEP}')
    def ciss(st):
        k('s_mov_b32 s12, s59')
        for x in range(8): k(f'buffer_load_dwordx4 {vr(M+16+32*st+4*x)}, v2, s[8:11], s12 offen sc1',f's_add_u32 s12, s12, {20*KB}')
    if PIPE: ciss(0)
    k(f's_mov_b32 s61, {SPIN}',f'{L("Cp")}:')
    for st in range(2):
        b=M+16+32*st
        ciss(1-st) if PIPE else ciss(st)
        k('s_waitcnt vmcnt(8)' if PIPE else 's_waitcnt vmcnt(0)')
        k(f'v_max3_u32 v{T}, v{b}, v{b+4}, v{b+8}',f'v_max3_u32 v{T+1}, v{b+12}, v{b+16}, v{b+20}',f'v_max3_u32 v{T}, v{T}, v{b+24}, v{b+28}',f'v_max_u32 v{T}, v{T}, v{T+1}')
        k(f'v_cmp_eq_u32 vcc, -1, v{T}','s_sub_u32 s61, s61, 1','s_cmp_eq_u32 s61, 0',f's_cbranch_scc1 {L("Cd%d"%st)}',f's_cbranch_vccz {L("Cd%d"%st)}')
    k(f's_branch {L("Cp")}')
    for st in range(2):
        b=M+16+32*st
        k(f'{L("Cd%d"%st)}:')
        ts(6)
        for q in range(4):
            k(f'v_add_f32 v{b+q}, v{b+q}, v{b+4+q}',f'v_add_f32 v{b+8+q}, v{b+8+q}, v{b+12+q}',f'v_add_f32 v{b+16+q}, v{b+16+q}, v{b+20+q}',f'v_add_f32 v{b+24+q}, v{b+24+q}, v{b+28+q}',
              f'v_add_f32 v{b+q}, v{b+q}, v{b+8+q}',f'v_add_f32 v{b+16+q}, v{b+16+q}, v{b+24+q}',f'v_add_f32 v{b+q}, v{b+q}, v{b+16+q}')
        k(f'v_cvt_pk_bf16_f32 v{PT}, v{b}, v{b+1}',f'v_cvt_pk_bf16_f32 v{PT+1}, v{b+2}, v{b+3}',f'v_min_u32 v{PT}, v{PT}, v21')
        if st==0: k(f's_branch {L("Ce")}')
    k(f'{L("Ce")}:')
    k('s_lshl_b32 s12, s41, 9','s_add_u32 s12, s12, s48',f'buffer_store_dwordx2 {vr(PT,2)}, v17, s[8:11], s12 offen{LS}')
    k(f's_branch {L("next")}',f'{L("pf")}:')
    if PSLEEP: k(f's_sleep {PSLEEP}')
    if WARM and PFILL:
        k('s_cmp_eq_u32 s3, 0',f's_cbranch_scc0 {L("npf")}',f's_cmp_gt_u32 s60, {63-WARM}',f's_cbranch_scc1 {L("npf")}',
          f's_mul_i32 s12, s40, {20*KB}','s_add_u32 s12, s12, s95',f's_mul_i32 s13, s47, {8*20*KB}','s_add_u32 s12, s12, s13','buffer_store_dwordx4 v[56:59], v2, s[8:11], s12 offen sc1',f'{L("npf")}:')
    pf_k(); pf_v()
    k(f'{L("next")}:')
    if TRACE:
        ts(7)
        k('s_waitcnt lgkmcnt(0)')
        k('s_lshl_b32 s12, s40, 5','s_add_u32 s12, s12, s41','s_lshl_b32 s12, s12, 2','s_add_u32 s12, s12, s3','s_lshl_b32 s12, s12, 11','s_lshl_b32 s13, s60, 5','s_add_u32 s12, s12, s13',f's_add_u32 s12, s12, {OFF["TR"]}')
        for i in range(8): k(f'v_mov_b32 v{24+i}, s{72+2*i}')
        k('v_mov_b32 v32, 0','s_mov_b64 exec, 1','buffer_store_dwordx4 v[24:27], v32, s[8:11], s12 offen','buffer_store_dwordx4 v[28:31], v32, s[8:11], s12 offen offset:16','s_mov_b64 exec, -1')
    k('s_add_u32 s60, s60, 1',f's_branch {L("loop")}')
    k(f'{L("end")}:','s_endpgm')
    k(f'{L("hi")}:')
    if TATT:
        k('s_cmp_eq_u32 s90, 0',f's_cbranch_scc1 {L("hid")}','s_cmp_eq_u32 s60, 0',f's_cbranch_scc1 {L("hid")}')
        k(f'{L("tl")}:',f's_mov_b32 s61, {SPIN}',f's_and_b32 s49, s89, {RING-1}',f's_mul_i32 s49, s49, {32*6144}','s_add_u32 s49, s49, s71',f'{L("tp")}:')
        for ks in range(4): k(f'buffer_load_dwordx4 {vr(TKM+4*ks)}, v12, s[8:11], s49 offen offset:{2048+ks*512} sc1')
        k('s_add_u32 s12, s49, 4096')
        for ep in range(4): k(f'buffer_load_dwordx4 {vr(TVM+4*ep)}, v14, s[8:11], s12 offen offset:{ep*512} sc1')
        k('s_waitcnt vmcnt(0)')
        regs=[TKM+4*i for i in range(4)]+[TVM+4*i for i in range(4)]
        for i,b in enumerate(regs):
            if i==0: k(f'v_max_u32 v{T}, v{b}, v{b+2}')
            else: k(f'v_max3_u32 v{T}, v{T}, v{b}, v{b+2}')
        k(f'v_cmp_eq_u32 vcc, -1, v{T}','s_sub_u32 s61, s61, 1','s_cmp_eq_u32 s61, 0',f's_cbranch_scc1 {L("td")}',f's_cbranch_vccnz {L("tp")}',f'{L("td")}:')
        k('s_cmp_eq_u32 s91, 0',f's_cbranch_scc0 {L("tq1")}')
        attn_core(k,TQ,TK,TKM,TV,TVM,TS,TP,TO,T,[0],0,MB,MM)
        k(f's_branch {L("tq2")}',f'{L("tq1")}:')
        attn_core(k,TQ,TK,TKM,TV,TVM,TS,TP,TO,T,[0,1],1,MB,MM)
        k(f'{L("tq2")}:')
        for c in range(4):
            r0=TO+8*c; t=TKM+4*c
            k(f'v_cvt_pk_bf16_f32 v{t}, v{r0}, v{r0+1}',f'v_cvt_pk_bf16_f32 v{t+1}, v{r0+2}, v{r0+3}',
              f'v_cvt_pk_bf16_f32 v{t+2}, v{r0+4}, v{r0+5}',f'v_cvt_pk_bf16_f32 v{t+3}, v{r0+6}, v{r0+7}',
              f'buffer_store_dwordx4 {vr(t)}, v2, s[8:11], s88 offen offset:{c*KB}')
        k(f's_add_u32 s88, s88, {256*KB}','s_add_u32 s89, s89, 1','s_cmp_ge_u32 s89, 64',f's_cbranch_scc1 {L("end")}')
        tpf()
        k(f's_cmp_eq_u32 s60, {NSTEP-1}',f's_cbranch_scc1 {L("tl")}')
        k(f'{L("hid")}:')
    k(f's_cmp_eq_u32 s60, {NSTEP-1}',f's_cbranch_scc1 {L("end")}',f's_branch {L("next")}')
def gen_chain(use_fast=False):
    k=K('chain_kernel',vgpr=248,agpr=176,sgpr=96)
    k('s_cmp_ge_u32 s2, 256','s_cbranch_scc1 chain_done')
    k.srd(8,'ws',WS_BYTES)
    k('v_lshrrev_b32 v1, 6, v0','s_nop 0','v_readfirstlane_b32 s3, v1','v_and_b32 v0, 63, v0','v_lshlrev_b32 v2, 4, v0')
    if use_fast:
        k.srd(64,'dbg',256)
        k('s_getreg_b32 s40, hwreg(HW_REG_XCC_ID)','s_and_b32 s40, s40, 7')
        k('s_cmp_eq_u32 s3, 0','s_cbranch_scc0 ch_reg_wait')
        k('v_mov_b32 v4, 1','s_lshl_b32 s12, s40, 2','v_mov_b32 v5, s12','s_mov_b64 exec, 1',
          'buffer_atomic_add v4, v5, s[64:67], 0 offen sc0 sc1','s_waitcnt vmcnt(0)',
          'v_mov_b32 v6, 1','v_mov_b32 v7, 32','buffer_atomic_add v6, v7, s[64:67], 0 offen sc0 sc1','s_waitcnt vmcnt(0)',
          's_mov_b64 exec, -1')
        k(f's_mov_b32 s61, {SPIN}','v_lshlrev_b32 v8, 2, v0','ch_reg_poll:','buffer_load_dword v9, v8, s[64:67], 0 offen sc1','s_waitcnt vmcnt(0)',
          'v_readlane_b32 s12, v9, 8','s_sub_u32 s61, s61, 1','s_cmp_eq_u32 s61, 0','s_cbranch_scc1 ch_reg_got','s_cmp_lt_u32 s12, 256','s_cbranch_scc1 ch_reg_poll','ch_reg_got:')
        k('v_cmp_ne_u32 vcc, 32, v9','s_nop 1','s_and_b32 s12, vcc_lo, 0xff','v_readfirstlane_b32 s13, v4','v_readfirstlane_b32 s14, v6',
          's_cmp_eq_u32 s12, 0','s_cselect_b32 s15, 1, 0',
          'v_mov_b32 v11, s13','v_mov_b32 v12, s14','v_mov_b32 v10, s15','v_mov_b32 v8, 16384','ds_write_b96 v8, v[10:12]','s_waitcnt lgkmcnt(0)')
        k('ch_reg_wait:','s_barrier','v_mov_b32 v8, 16384','ds_read_b96 v[12:14], v8','s_waitcnt lgkmcnt(0)',
          'v_readfirstlane_b32 s15, v12','v_readfirstlane_b32 s41, v13','v_readfirstlane_b32 s14, v14','s_cmp_eq_u32 s15, 1','s_cbranch_scc0 ch_slow')
        chain_body(k,True,'f')
        k('ch_slow:','s_lshr_b32 s40, s14, 5','s_and_b32 s41, s14, 31')
    else:
        k('s_lshr_b32 s40, s2, 5','s_and_b32 s41, s2, 31')
    chain_body(k,False,'s')
    k('chain_done:')
    return k,16448+20480
```

```python
from common import *
from attn import *
NSTEP=64
SPIN=1<<16
TRACE=False
CSLEEP=0
NOPF=0
PSLEEP=0
WARM=2
PIPE=0
PIPEA=0
BSLEEP=4
TATT=1
TOK=1
HSLEEP=16
XB0=40960
RING=8
PFILL=1
def chain_body(k, fast, tag):
    def ts(i):
        if TRACE: k(f's_memtime s[{72+2*i}:{73+2*i}]')
    LS='' if fast else ' sc1'
    started=[False]
    M=64; Q=192; KM=208; VM=224; S=112; P=124; O=132; T=8; MM=3; OB=164; D=180; PT=188; ONE=240; SM=244; MB0=16448; MF=96
    L=lambda n: f'ch_{tag}_{n}'
    MB=36
    lane_consts(k,MB,MM,T)
    k('v_and_b32 v12, 7, v0','v_lshrrev_b32 v13, 4, v0','v_lshlrev_b32 v12, 4, v12','v_lshl_add_u32 v12, v13, 7, v12')
    k('v_and_b32 v14, 15, v0','v_and_b32 v15, 1, v13','v_lshlrev_b32 v14, 4, v14','v_lshl_add_u32 v14, v15, 8, v14')
    k('v_lshrrev_b32 v18, 5, v0','v_bfe_u32 v19, v0, 3, 2','v_and_b32 v20, 7, v0',
      'v_lshlrev_b32 v16, 10, v18','v_lshl_add_u32 v16, v19, 8, v16','v_lshl_add_u32 v16, v20, 4, v16',
      'v_lshlrev_b32 v17, 7, v19','v_lshl_add_u32 v17, v20, 4, v17','v_lshl_add_u32 v17, v18, 3, v17')
    k('v_mov_b32 v21, -2')
    for i in range(4): k(f'v_mov_b32 v{56+i}, -1')
    k('v_and_b32 v18, 8, v0','v_cmp_eq_u32 s[50:51], 0, v18','s_mov_b32 s52, -1','s_mov_b32 s53, 0')
    k('s_lshr_b32 s42, s41, 3','s_and_b32 s43, s41, 7','s_lshl_b32 s44, s40, 2','s_add_u32 s45, s44, s42')
    k('s_cmp_eq_u32 s3, 3',f's_cbranch_scc1 {L("nowa")}')
    k('s_lshl_b32 s12, s3, 8','s_lshl_b32 s13, s45, 3','s_add_u32 s12, s12, s13','s_add_u32 s12, s12, s43',f's_mul_i32 s12, s12, {20*KB}',f's_add_u32 s12, s12, {OFF["WQKV"]}')
    for ks in range(20):
        if ks%4==0 and ks: k('s_add_u32 s12, s12, 4096')
        k(f'buffer_load_dwordx4 {ar(4*ks)}, v2, s[8:11], s12 offen offset:{(ks%4)*KB}')
    k(f'{L("nowa")}:')
    k('s_add_u32 s46, s44, s3')
    k('s_cmp_ge_u32 s41, 20',f's_cbranch_scc1 {L("nowo")}')
    for t in range(2):
        k('s_lshl_b32 s12, s41, 1',f's_add_u32 s12, s12, {t}','s_lshl_b32 s12, s12, 7','s_lshl_b32 s13, s46, 2','s_add_u32 s12, s12, s13','s_lshl_b32 s12, s12, 10',f's_add_u32 s12, s12, {OFF["WO"]}')
        for c in range(4): k(f'buffer_load_dwordx4 {ar(80+16*t+4*c)}, v2, s[8:11], s12 offen offset:{c*KB}')
    k('s_lshl_b32 s54, s46, 12',f's_add_u32 s54, s54, {OFF["QK"]+128*KB}','s_lshl_b32 s55, s46, 13',f's_add_u32 s55, s55, {OFF["VT"]}')
    def pf_k():
        if NOPF and started[0]: return
        for kt in range(2):
            k(f's_add_u32 s12, s54, {kt*256*KB}')
            for ks in range(4): k(f'buffer_load_dwordx4 {ar(112+16*kt+4*ks)}, v2, s[8:11], s12 offen offset:{ks*KB}')
        k(f's_add_u32 s54, s54, {512*KB}')
    def pf_v():
        if NOPF and started[0]: return
        for hf in range(2):
            k(f's_add_u32 s12, s55, {hf*4096}')
            for e in range(4): k(f'buffer_load_dwordx4 {ar(144+16*hf+4*e)}, v2, s[8:11], s12 offen offset:{e*KB}')
        k(f's_add_u32 s55, s55, {256*KB}')
    k(f'{L("nowo")}:')
    k(f's_mov_b32 s20, {OFF["XN"]}',f's_mul_i32 s21, s3, {14*KB}','s_mov_b32 s24, 0','s_mov_b32 s25, 0')
    k('s_lshl_b32 s12, s45, 2','s_lshr_b32 s13, s43, 1','s_add_u32 s12, s12, s13','s_lshl_b32 s13, s3, 7','s_add_u32 s12, s12, s13','s_lshl_b32 s12, s12, 10',f's_add_u32 s22, s12, {OFF["QK"]}',
      's_lshl_b32 s12, s45, 3','s_add_u32 s12, s12, s43','s_lshl_b32 s12, s12, 10',f's_add_u32 s23, s12, {OFF["VT"]}',
      's_and_b32 s12, s43, 1','s_lshl_b32 s12, s12, 3','v_add_u32 v42, s12, v2')
    def dma1(i):
        k(f's_add_u32 s12, s21, {i*KB}',f's_min_u32 s12, s12, {39*KB}','s_add_u32 m0, s12, s26','s_add_u32 s12, s12, s20','buffer_load_dwordx4 v2, s[8:11], s12 offen lds')
    def dma_pre(): k('s_and_b32 s26, s25, 1','s_mul_i32 s26, s26, 40960',f's_add_u32 s26, s26, {XB0}')
    def dma_post(): k('s_add_u32 s20, s20, 40960','s_add_u32 s25, s25, 1')
    def tok(dma,tg):
        TX=96; D0=144
        k('s_and_b32 s12, s24, 1','s_mul_i32 s12, s12, 40960',f's_add_u32 s12, s12, {XB0}','v_add_u32 v40, s12, v2')
        if dma: dma_pre()
        seq=[(ks,mt) for ks in range(20) for mt in range(2)]
        rd=lambda n: k(f'ds_read_b128 {vr(TX+4*(n%12))}, v40 offset:{(seq[n][1]*20+seq[n][0])*KB}')
        for n in range(12): rd(n)
        for sw in (0,1):
            if sw==0: k('s_cmp_eq_u32 s3, 2',f's_cbranch_scc1 {L("tv"+tg)}')
            else: k(f'{L("tv"+tg)}:')
            for n,(ks,mt) in enumerate(seq):
                k(f's_waitcnt lgkmcnt({min(11,39-n)})')
                X=vr(TX+4*(n%12)); A,B=(ar(4*ks),X) if sw==0 else (X,ar(4*ks))
                k(f'v_mfma_f32_16x16x32_bf16 {vr(D0+4*mt)}, {A}, {B}, {vr(D0+4*mt) if ks else 0}')
                if n+12<40: rd(n+12)
                if dma and n%2==1 and n//2<14: dma1(n//2)
            k('s_nop 7','s_nop 7')
            for q in range(4): k(f'v_cvt_pk_bf16_f32 v{D0+8+q}, v{D0+2*q}, v{D0+2*q+1}')
            if sw==0:
                k(f'buffer_store_dwordx2 {vr(D0+8,2)}, v42, s[8:11], s22 offen{LS}',f's_add_u32 s12, s22, {256*KB}',f'buffer_store_dwordx2 {vr(D0+10,2)}, v42, s[8:11], s12 offen{LS}',f's_branch {L("te"+tg)}')
            else: k(f'buffer_store_dwordx4 {vr(D0+8)}, v2, s[8:11], s23 offen{LS}',f'{L("te"+tg)}:')
        k(f's_add_u32 s22, s22, {512*KB}',f's_add_u32 s23, s23, {256*KB}','s_add_u32 s24, s24, 1')
        if dma: dma_post()
    def window(tg):
        k('s_cmp_gt_u32 s60, 61',f's_cbranch_scc1 {L("wx"+tg)}','s_cmp_eq_u32 s60, 61',f's_cbranch_scc1 {L("wn"+tg)}')
        tok(True,tg+'a')
        k(f's_branch {L("wx"+tg)}',f'{L("wn"+tg)}:')
        tok(False,tg+'b')
        k(f'{L("wx"+tg)}:')
    if TOK:
        k('s_cmp_eq_u32 s3, 3',f's_cbranch_scc1 {L("p1")}')
        for j in range(2):
            dma_pre()
            for i in range(14): dma1(i)
            dma_post()
        k(f'{L("p1")}:','s_waitcnt vmcnt(0)','s_barrier','s_cmp_eq_u32 s3, 3',f's_cbranch_scc1 {L("p2")}')
        tok(False,'p0'); tok(False,'p1')
        k(f'{L("p2")}:','s_waitcnt vmcnt(0)','s_barrier','s_cmp_eq_u32 s3, 3',f's_cbranch_scc1 {L("p3")}')
        dma_pre()
        for i in range(14): dma1(i)
        dma_post()
        k('s_cmp_eq_u32 s3, 0',f's_cbranch_scc0 {L("p3")}')
        k('s_lshl_b32 s12, s40, 2','s_add_u32 s12, s12, 64','v_mov_b32 v44, 1','v_mov_b32 v45, s12','s_mov_b64 exec, 1','buffer_atomic_add v44, v45, s[64:67], 0 offen sc1',
          f's_mov_b32 s61, {SPIN}',f'{L("sy")}:','buffer_load_dword v46, v45, s[64:67], 0 offen sc1','s_waitcnt vmcnt(0)','v_readfirstlane_b32 s12, v46',
          's_sub_u32 s61, s61, 1','s_cmp_eq_u32 s61, 0',f's_cbranch_scc1 {L("sy2")}','s_cmp_lt_u32 s12, 32',f's_cbranch_scc1 {L("sy")}',f'{L("sy2")}:','s_mov_b64 exec, -1')
        k(f'{L("p3")}:','s_barrier')
    k('s_cmp_ge_u32 s41, 20',f's_cbranch_scc1 {L("nopf0")}')
    pf_k(); pf_v()
    started[0]=True
    k(f'{L("nopf0")}:')
    k(f's_mul_i32 s92, s40, 10240',f's_add_u32 s92, s92, {OFF["MEM"]}')
    k(f's_mul_i32 s93, s45, 6144',f's_add_u32 s93, s93, {OFF["QKVM"]}')
    k(f's_mul_i32 s94, s46, 6144',f's_add_u32 s94, s94, {OFF["QKVM"]}')
    k(f's_lshl_b32 s95, s41, 10',f's_add_u32 s95, s95, {OFF["PART"]}')
    TQ=64; TK=96; TKM=128; TV=144; TVM=176; TS=192; TP=204; TO=212
    k('s_sub_u32 s12, s41, 20','s_lshr_b32 s12, s12, 1','s_add_u32 s12, s12, s44','s_and_b32 s91, s41, 1',
      's_lshl_b32 s13, s12, 12','s_lshl_b32 s14, s91, 18','s_add_u32 s68, s13, s14',f's_add_u32 s68, s68, {OFF["QK"]}',f's_add_u32 s69, s13, {OFF["QK"]+128*KB}',
      's_lshl_b32 s70, s12, 13',f's_add_u32 s70, s70, {OFF["VT"]}','s_mul_i32 s71, s12, 6144',f's_add_u32 s71, s71, {OFF["QKVM"]}',
      's_lshl_b32 s14, s91, 17','s_add_u32 s88, s13, s14',f's_add_u32 s88, s88, {OFF["O"]}','s_mov_b32 s89, 0','s_mov_b32 s90, 0')
    def tpf():
        for ks in range(4): k(f'buffer_load_dwordx4 {vr(TQ+4*ks)}, v2, s[8:11], s68 offen offset:{ks*KB}')
        for kt in range(2):
            k(f's_add_u32 s12, s69, {kt*256*KB}')
            for ks in range(4): k(f'buffer_load_dwordx4 {vr(TK+16*kt+4*ks)}, v2, s[8:11], s12 offen offset:{ks*KB}')
        for hf in range(2):
            k(f's_add_u32 s12, s70, {hf*4096}')
            for e in range(4): k(f'buffer_load_dwordx4 {vr(TV+16*hf+4*e)}, v2, s[8:11], s12 offen offset:{e*KB}')
        k(f's_add_u32 s68, s68, {512*KB}',f's_add_u32 s69, s69, {512*KB}',f's_add_u32 s70, s70, {256*KB}')
    if TATT:
        k('s_cmp_eq_u32 s3, 3',f's_cbranch_scc0 {L("not")}','s_cmp_lt_u32 s41, 20',f's_cbranch_scc1 {L("not")}','s_cmp_ge_u32 s41, 28',f's_cbranch_scc1 {L("not")}','s_mov_b32 s90, 1')
        tpf()
        k(f'{L("not")}:')
    k('s_lshr_b32 s12, s43, 1','s_lshl_b32 s12, s12, 9','s_and_b32 s13, s43, 1','s_lshl_b32 s13, s13, 3','s_add_u32 s12, s12, s13','s_lshl_b32 s13, s3, 11','s_add_u32 s12, s12, s13')
    k('s_cmp_eq_u32 s3, 2',f's_cbranch_scc1 {L("vo")}','v_add_u32 v22, s12, v12',f's_branch {L("vo2")}',f'{L("vo")}:','v_add_u32 v22, s12, v14',f'{L("vo2")}:')
    k('s_mov_b32 s60, 0')
    for i in range(48): k(f'v_mov_b32 v{Q+i}, 0')
    for i in range(4): k(f'v_mov_b32 v{ONE+i}, 0x3f803f80')
    k('s_lshl_b32 s62, s3, 10','v_add_u32 v23, s62, v2','s_cmp_eq_u32 s3, 0','s_cselect_b32 s67, 9216, 0','s_waitcnt vmcnt(0)')
    k(f'{L("loop")}:')
    ts(0)
    k(f's_and_b32 s12, s60, {RING-1}',f's_mul_i32 s13, s12, {8*10240}','s_add_u32 s56, s92, s13',f's_mul_i32 s13, s12, {32*6144}','s_add_u32 s57, s93, s13','s_add_u32 s58, s94, s13',
      f's_mul_i32 s13, s12, {8*20*KB}','s_add_u32 s59, s95, s13',f's_add_u32 s47, s60, {WARM}',f's_and_b32 s47, s47, {RING-1}')
    k('s_and_b32 s12, s60, 1','s_mul_i32 s63, s12, 10240',f's_add_u32 s63, s63, {MB0}','v_add_u32 v18, s63, v23')
    if WARM:
        k('s_cmp_eq_u32 s3, 3',f's_cbranch_scc0 {L("nw")}',f's_cmp_gt_u32 s60, {63-WARM}',f's_cbranch_scc1 {L("nw")}')
        k(f's_mul_i32 s12, s47, {32*6144}',f's_mul_i32 s13, s44, 6144','s_add_u32 s12, s12, s13',f's_add_u32 s12, s12, {OFF["QKVM"]}','s_lshl_b32 s13, s41, 10','s_add_u32 s12, s12, s13')
        k(f's_mul_i32 s15, s47, {8*10240}','s_add_u32 s15, s15, s92')
        k(f's_sub_u32 s14, s15, {24*1024}','s_add_u32 s14, s14, s13','s_cmp_lt_u32 s41, 24','s_cselect_b32 s12, s12, s14',
          f'buffer_store_dwordx4 v[56:59], v2, s[8:11], s12 offen{LS}',
          's_add_u32 s14, s15, 8192','s_and_b32 s13, s13, 1024','s_add_u32 s14, s14, s13',f'buffer_store_dwordx4 v[56:59], v2, s[8:11], s14 offen{LS}','s_waitcnt vmcnt(0)')
        k(f'{L("nw")}:')
    k('s_cmp_eq_u32 s3, 3',f's_cbranch_scc1 {L("A3")}')
    k('s_add_u32 s64, s56, 3072','s_add_u32 s65, s56, 6144','s_add_u32 s66, s56, s67')
    def aiss(st):
        b0=M+16*st
        k(f'buffer_load_dwordx4 {vr(b0)}, v23, s[8:11], s56 offen sc1',f'buffer_load_dwordx4 {vr(b0+4)}, v23, s[8:11], s64 offen sc1',
          f'buffer_load_dwordx4 {vr(b0+8)}, v23, s[8:11], s65 offen sc1',f'buffer_load_dwordx4 {vr(b0+12)}, v23, s[8:11], s66 offen sc1')
    if PIPEA: aiss(0)
    k(f's_mov_b32 s61, {SPIN}',f'{L("Ap")}:')
    for st in range(2):
        b0=M+16*st
        aiss(1-st) if PIPEA else aiss(st)
        k('s_waitcnt vmcnt(4)' if PIPEA else 's_waitcnt vmcnt(0)',f'v_max3_u32 v{T}, v{b0}, v{b0+2}, v{b0+4}',f'v_max3_u32 v{T+1}, v{b0+6}, v{b0+8}, v{b0+10}',f'v_max3_u32 v{T}, v{T}, v{b0+12}, v{b0+14}',f'v_max_u32 v{T}, v{T}, v{T+1}')
        k(f'v_cmp_eq_u32 vcc, -1, v{T}','s_sub_u32 s61, s61, 1','s_cmp_eq_u32 s61, 0',f's_cbranch_scc1 {L("Ad%d"%st)}',f's_cbranch_vccz {L("Ad%d"%st)}')
    k(f's_branch {L("Ap")}')
    for st in range(2):
        b0=M+16*st
        k(f'{L("Ad%d"%st)}:',f'ds_write_b128 v18, {vr(b0)}',f'ds_write_b128 v18, {vr(b0+4)} offset:3072',f'ds_write_b128 v18, {vr(b0+8)} offset:6144',
          's_cmp_eq_u32 s3, 0',f's_cbranch_scc0 {L("A3")}',f'ds_write_b128 v18, {vr(b0+12)} offset:9216',f's_branch {L("A3")}')
    k(f'{L("A3")}:')
    if TRACE: k('s_cmp_eq_u32 s3, 3',f's_cbranch_scc1 {L("t4")}',f's_sub_u32 s84, {SPIN}, s61',f'{L("t4")}:')
    k('v_add_u32 v18, s63, v12','s_waitcnt lgkmcnt(0)','s_barrier')
    ts(1)
    k('s_cmp_eq_u32 s3, 3',f's_cbranch_scc1 {L("B")}')
    if TRACE: k('s_waitcnt lgkmcnt(0)')
    for ks in range(12): k(f'ds_read_b128 {vr(MF+4*ks)}, v18 offset:{ks*512}')
    for sw in (0,1):
        if sw==0: k('s_cmp_eq_u32 s3, 2',f's_cbranch_scc1 {L("Av")}')
        else: k(f'{L("Av")}:')
        for ks in range(20):
            k(f's_waitcnt lgkmcnt({min(11,19-ks)})')
            A,B=(ar(4*ks),vr(MF+4*(ks%12))) if sw==0 else (vr(MF+4*(ks%12)),ar(4*ks))
            k(f'v_mfma_f32_16x16x32_bf16 {vr(D)}, {A}, {B}, {vr(D) if ks else 0}')
            if ks+12<20: k(f'ds_read_b128 {vr(MF+4*ks)}, v18 offset:{(ks+12)*512}')
        k('s_nop 7',f'v_cvt_pk_bf16_f32 v{PT}, v{D}, v{D+1}',f'v_cvt_pk_bf16_f32 v{PT+1}, v{D+2}, v{D+3}',f'v_min_u32 v{PT}, v{PT}, v21')
        k(f's_mov_b64 exec, s[{50 if sw==0 else 52}:{51 if sw==0 else 53}]',f'buffer_store_dwordx2 {vr(PT,2)}, v22, s[8:11], s57 offen{LS}','s_mov_b64 exec, -1')
        if sw==0: k(f's_branch {L("B")}')
    k(f'{L("B")}:','s_cmp_ge_u32 s41, 20',f's_cbranch_scc1 {L("hi")}',f's_cmp_eq_u32 s60, {NSTEP-1}',f's_cbranch_scc1 {L("end")}')
    ts(2)
    k(f's_sleep {BSLEEP}') if BSLEEP else None
    k(f's_mov_b32 s61, {SPIN}',f'{L("Bp")}:','s_mov_b64 exec, s[50:51]')
    for ks in range(4): k(f'buffer_load_dwordx4 {vr(Q+4*ks)}, v12, s[8:11], s58 offen offset:{ks*512} sc1')
    for ks in range(4): k(f'buffer_load_dwordx4 {vr(KM+4*ks)}, v12, s[8:11], s58 offen offset:{2048+ks*512} sc1')
    k('s_add_u32 s12, s58, 4096','s_mov_b64 exec, s[52:53]')
    for ep in range(4): k(f'buffer_load_dwordx4 {vr(VM+4*ep)}, v14, s[8:11], s12 offen offset:{ep*512} sc1')
    k('s_mov_b64 exec, -1')
    for i in range(12):
        k(f's_waitcnt vmcnt({11-i})')
        b=Q+4*i
        if i==0: k(f'v_max_u32 v{T}, v{b}, v{b+2}')
        else: k(f'v_max3_u32 v{T}, v{T}, v{b}, v{b+2}')
        if i<4:
            for t in range(2): k(f'v_mfma_f32_16x16x32_bf16 {vr(S+4*t)}, {ar(112+16*t+4*i)}, {vr(Q+4*i)}, {vr(S+4*t) if i else 0}')
        elif i<8:
            k(f'v_mfma_f32_16x16x32_bf16 {vr(S+8)}, {vr(KM+4*(i-4))}, {vr(Q+4*(i-4))}, {vr(S+8) if i>4 else 0}')
    k(f'v_cmp_eq_u32 vcc, -1, v{T}','s_sub_u32 s61, s61, 1','s_cmp_eq_u32 s61, 0',f's_cbranch_scc1 {L("Bd")}',f's_cbranch_vccnz {L("Bp")}',f'{L("Bd")}:')
    ts(3)
    if TRACE: k('s_cmp_eq_u32 s3, 3',f's_cbranch_scc1 {L("t3")}',f's_sub_u32 s82, {SPIN}, s61',f'{L("t3")}:')
    vals=[S+i for i in range(12)]
    for i in range(4): k(f'v_add_f32 v{S+8+i}, v{S+8+i}, v{MM}')
    m=T
    k(f'v_max3_f32 v{m}, v{S}, v{S+1}, v{S+2}',f'v_max3_f32 v{m+1}, v{S+3}, v{S+4}, v{S+5}',f'v_max3_f32 v{m}, v{m}, v{S+6}, v{S+7}',f'v_max3_f32 v{m+1}, v{m+1}, v{S+8}, v{S+9}',
      f'v_max3_f32 v{m}, v{m}, v{S+10}, v{S+11}',f'v_max_f32 v{m}, v{m}, v{m+1}')
    xred(k,'v_max_f32',m,T+1)
    k(f'v_mul_f32 v{m}, 0x{CS:x}, v{m}',f's_mov_b32 s39, 0x{CS:x}')
    for v in vals: k(f'v_fma_f32 v{v}, v{v}, s39, -v{m}')
    for v in vals: k(f'v_exp_f32 v{v}, v{v}')
    k('s_nop 0')
    for t in range(3): k(f'v_cvt_pk_bf16_f32 v{P+2*t}, v{S+4*t}, v{S+4*t+1}',f'v_cvt_pk_bf16_f32 v{P+2*t+1}, v{S+4*t+2}, v{S+4*t+3}')
    k('s_nop 1')
    def pv1(et): k(f'v_mfma_f32_16x16x32_bf16 {vr(O+4*et)}, {ar(144+4*et)}, {vr(P)}, 0')
    def pv2(et): k(f'v_mfma_f32_16x16x16_bf16 {vr(O+4*et)}, {vr(VM+2*et,2)}, {vr(P+4,2)}, {vr(O+4*et)}')
    def cv(c):
        r0=O+8*c; t=OB+4*c
        k(f'v_cvt_pk_bf16_f32 v{t}, v{r0}, v{r0+1}',f'v_cvt_pk_bf16_f32 v{t+1}, v{r0+2}, v{r0+3}',
          f'v_cvt_pk_bf16_f32 v{t+2}, v{r0+4}, v{r0+5}',f'v_cvt_pk_bf16_f32 v{t+3}, v{r0+6}, v{r0+7}')
    def wo(c):
        for t in range(2): k(f'v_mfma_f32_16x16x32_bf16 {vr(D+4*t)}, {ar(80+16*t+4*c)}, {vr(OB+4*c)}, {vr(D+4*t) if c else 0}')
    for et in range(8): pv1(et)
    k(f'v_mfma_f32_16x16x32_bf16 {vr(SM)}, {vr(ONE)}, {vr(P)}, 0')
    for et in range(8): pv2(et)
    k(f'v_mfma_f32_16x16x16_bf16 {vr(SM)}, {vr(ONE,2)}, {vr(P+4,2)}, {vr(SM)}')
    k('s_nop 1'); cv(0); cv(1); wo(0); cv(2); wo(1); k(f'v_rcp_f32 v{T}, v{SM}'); cv(3); wo(2); k('s_nop 0'); wo(3)
    k('s_nop 7')
    for i in range(8): k(f'v_mul_f32 v{D+i}, v{D+i}, v{T}')
    k('s_and_b32 s12, s60, 1','s_lshl_b32 s12, s12, 13','s_lshl_b32 s13, s3, 11','s_add_u32 s13, s13, s12','v_add_u32 v18, s13, v2')
    k(f'ds_write_b128 v18, {vr(D)}',f'ds_write_b128 v18, {vr(D+4)} offset:1024','s_waitcnt lgkmcnt(0)','s_barrier')
    ts(4)
    k('s_cmp_eq_u32 s3, 3',f's_cbranch_scc0 {L("pf")}')
    k('v_add_u32 v18, s12, v16')
    for hh in range(4): k(f'ds_read_b128 {vr(M+4*hh)}, v18 offset:{hh*2048}')
    k('s_waitcnt lgkmcnt(0)')
    for q in range(4): k(f'v_add_f32 v{M+q}, v{M+q}, v{M+4+q}',f'v_add_f32 v{M+8+q}, v{M+8+q}, v{M+12+q}',f'v_add_f32 v{M+q}, v{M+q}, v{M+8+q}')
    k(f'v_min_u32 v{M}, v{M}, v21',f's_mul_i32 s12, s40, {20*KB}','s_add_u32 s12, s12, s59',f'buffer_store_dwordx4 {vr(M)}, v2, s[8:11], s12 offen sc1')
    ts(5)
    k('s_add_u32 s48, s60, 1',f's_and_b32 s48, s48, {RING-1}',f's_mul_i32 s48, s48, {8*10240}','s_add_u32 s48, s48, s92')
    pf_k(); pf_v()
    if CSLEEP: k(f's_sleep {CSLEEP}')
    def ciss(st):
        k('s_mov_b32 s12, s59')
        for x in range(8): k(f'buffer_load_dwordx4 {vr(M+16+32*st+4*x)}, v2, s[8:11], s12 offen sc1',f's_add_u32 s12, s12, {20*KB}')
    if PIPE: ciss(0)
    k(f's_mov_b32 s61, {SPIN}',f'{L("Cp")}:')
    for st in range(2):
        b=M+16+32*st
        ciss(1-st) if PIPE else ciss(st)
        k('s_waitcnt vmcnt(8)' if PIPE else 's_waitcnt vmcnt(0)')
        k(f'v_max3_u32 v{T}, v{b}, v{b+4}, v{b+8}',f'v_max3_u32 v{T+1}, v{b+12}, v{b+16}, v{b+20}',f'v_max3_u32 v{T}, v{T}, v{b+24}, v{b+28}',f'v_max_u32 v{T}, v{T}, v{T+1}')
        k(f'v_cmp_eq_u32 vcc, -1, v{T}','s_sub_u32 s61, s61, 1','s_cmp_eq_u32 s61, 0',f's_cbranch_scc1 {L("Cd%d"%st)}',f's_cbranch_vccz {L("Cd%d"%st)}')
    k(f's_branch {L("Cp")}')
    for st in range(2):
        b=M+16+32*st
        k(f'{L("Cd%d"%st)}:')
        ts(6)
        for q in range(4):
            k(f'v_add_f32 v{b+q}, v{b+q}, v{b+4+q}',f'v_add_f32 v{b+8+q}, v{b+8+q}, v{b+12+q}',f'v_add_f32 v{b+16+q}, v{b+16+q}, v{b+20+q}',f'v_add_f32 v{b+24+q}, v{b+24+q}, v{b+28+q}',
              f'v_add_f32 v{b+q}, v{b+q}, v{b+8+q}',f'v_add_f32 v{b+16+q}, v{b+16+q}, v{b+24+q}',f'v_add_f32 v{b+q}, v{b+q}, v{b+16+q}')
        k(f'v_cvt_pk_bf16_f32 v{PT}, v{b}, v{b+1}',f'v_cvt_pk_bf16_f32 v{PT+1}, v{b+2}, v{b+3}',f'v_min_u32 v{PT}, v{PT}, v21')
        if st==0: k(f's_branch {L("Ce")}')
    k(f'{L("Ce")}:')
    k('s_lshl_b32 s12, s41, 9','s_add_u32 s12, s12, s48',f'buffer_store_dwordx2 {vr(PT,2)}, v17, s[8:11], s12 offen{LS}')
    k(f's_branch {L("next")}',f'{L("pf")}:')
    if PSLEEP: k(f's_sleep {PSLEEP}')
    if WARM and PFILL:
        k('s_cmp_eq_u32 s3, 0',f's_cbranch_scc0 {L("npf")}',f's_cmp_gt_u32 s60, {63-WARM}',f's_cbranch_scc1 {L("npf")}',
          f's_mul_i32 s12, s40, {20*KB}','s_add_u32 s12, s12, s95',f's_mul_i32 s13, s47, {8*20*KB}','s_add_u32 s12, s12, s13','buffer_store_dwordx4 v[56:59], v2, s[8:11], s12 offen sc1',f'{L("npf")}:')
    pf_k(); pf_v()
    if TOK: window('lo')
    k(f'{L("next")}:')
    if TRACE:
        ts(7)
        k('s_waitcnt lgkmcnt(0)')
        k('s_lshl_b32 s12, s40, 5','s_add_u32 s12, s12, s41','s_lshl_b32 s12, s12, 2','s_add_u32 s12, s12, s3','s_lshl_b32 s12, s12, 11','s_lshl_b32 s13, s60, 5','s_add_u32 s12, s12, s13',f's_add_u32 s12, s12, {OFF["TR"]}')
        for i in range(8): k(f'v_mov_b32 v{24+i}, s{72+2*i}')
        k('v_mov_b32 v32, 0','s_mov_b64 exec, 1','buffer_store_dwordx4 v[24:27], v32, s[8:11], s12 offen','buffer_store_dwordx4 v[28:31], v32, s[8:11], s12 offen offset:16','s_mov_b64 exec, -1')
    k('s_add_u32 s60, s60, 1',f's_branch {L("loop")}')
    k(f'{L("end")}:','s_endpgm')
    k(f'{L("hi")}:')
    if TOK:
        k('s_cmp_eq_u32 s3, 3',f's_cbranch_scc1 {L("hi3")}')
        if HSLEEP: k(f's_sleep {HSLEEP}')
        window('hi')
        k(f's_branch {L("hid")}',f'{L("hi3")}:')
    if TATT:
        k('s_cmp_eq_u32 s90, 0',f's_cbranch_scc1 {L("hid")}','s_cmp_eq_u32 s60, 0',f's_cbranch_scc1 {L("hid")}')
        k(f'{L("tl")}:',f's_mov_b32 s61, {SPIN}',f's_and_b32 s49, s89, {RING-1}',f's_mul_i32 s49, s49, {32*6144}','s_add_u32 s49, s49, s71',f'{L("tp")}:')
        for ks in range(4): k(f'buffer_load_dwordx4 {vr(TKM+4*ks)}, v12, s[8:11], s49 offen offset:{2048+ks*512} sc1')
        k('s_add_u32 s12, s49, 4096')
        for ep in range(4): k(f'buffer_load_dwordx4 {vr(TVM+4*ep)}, v14, s[8:11], s12 offen offset:{ep*512} sc1')
        k('s_waitcnt vmcnt(0)')
        regs=[TKM+4*i for i in range(4)]+[TVM+4*i for i in range(4)]
        for i,b in enumerate(regs):
            if i==0: k(f'v_max_u32 v{T}, v{b}, v{b+2}')
            else: k(f'v_max3_u32 v{T}, v{T}, v{b}, v{b+2}')
        k(f'v_cmp_eq_u32 vcc, -1, v{T}','s_sub_u32 s61, s61, 1','s_cmp_eq_u32 s61, 0',f's_cbranch_scc1 {L("td")}',f's_cbranch_vccnz {L("tp")}',f'{L("td")}:')
        k('s_cmp_eq_u32 s91, 0',f's_cbranch_scc0 {L("tq1")}')
        attn_core(k,TQ,TK,TKM,TV,TVM,TS,TP,TO,T,[0],0,MB,MM)
        k(f's_branch {L("tq2")}',f'{L("tq1")}:')
        attn_core(k,TQ,TK,TKM,TV,TVM,TS,TP,TO,T,[0,1],1,MB,MM)
        k(f'{L("tq2")}:')
        for c in range(4):
            r0=TO+8*c; t=TKM+4*c
            k(f'v_cvt_pk_bf16_f32 v{t}, v{r0}, v{r0+1}',f'v_cvt_pk_bf16_f32 v{t+1}, v{r0+2}, v{r0+3}',
              f'v_cvt_pk_bf16_f32 v{t+2}, v{r0+4}, v{r0+5}',f'v_cvt_pk_bf16_f32 v{t+3}, v{r0+6}, v{r0+7}',
              f'buffer_store_dwordx4 {vr(t)}, v2, s[8:11], s88 offen offset:{c*KB}')
        k(f's_add_u32 s88, s88, {256*KB}','s_add_u32 s89, s89, 1','s_cmp_ge_u32 s89, 64',f's_cbranch_scc1 {L("end")}')
        tpf()
        k(f's_cmp_eq_u32 s60, {NSTEP-1}',f's_cbranch_scc1 {L("tl")}')
    k(f'{L("hid")}:',f's_cmp_eq_u32 s60, {NSTEP-1}',f's_cbranch_scc1 {L("end")}',f's_branch {L("next")}')
def gen_chain(use_fast=False):
    k=K('chain_kernel',vgpr=248,agpr=176,sgpr=96)
    k('s_cmp_ge_u32 s2, 256','s_cbranch_scc1 chain_done')
    k.srd(8,'ws',WS_BYTES)
    k('v_lshrrev_b32 v1, 6, v0','s_nop 0','v_readfirstlane_b32 s3, v1','v_and_b32 v0, 63, v0','v_lshlrev_b32 v2, 4, v0')
    if use_fast:
        k.srd(64,'dbg',256)
        k('s_getreg_b32 s40, hwreg(HW_REG_XCC_ID)','s_and_b32 s40, s40, 7')
        k('s_cmp_eq_u32 s3, 0','s_cbranch_scc0 ch_reg_wait')
        k('v_mov_b32 v4, 1','s_lshl_b32 s12, s40, 2','v_mov_b32 v5, s12','s_mov_b64 exec, 1',
          'buffer_atomic_add v4, v5, s[64:67], 0 offen sc0 sc1','s_waitcnt vmcnt(0)',
          'v_mov_b32 v6, 1','v_mov_b32 v7, 32','buffer_atomic_add v6, v7, s[64:67], 0 offen sc0 sc1','s_waitcnt vmcnt(0)',
          's_mov_b64 exec, -1')
        k(f's_mov_b32 s61, {SPIN}','v_lshlrev_b32 v8, 2, v0','ch_reg_poll:','buffer_load_dword v9, v8, s[64:67], 0 offen sc1','s_waitcnt vmcnt(0)',
          'v_readlane_b32 s12, v9, 8','s_sub_u32 s61, s61, 1','s_cmp_eq_u32 s61, 0','s_cbranch_scc1 ch_reg_got','s_cmp_lt_u32 s12, 256','s_cbranch_scc1 ch_reg_poll','ch_reg_got:')
        k('v_cmp_ne_u32 vcc, 32, v9','s_nop 1','s_and_b32 s12, vcc_lo, 0xff','v_readfirstlane_b32 s13, v4','v_readfirstlane_b32 s14, v6',
          's_cmp_eq_u32 s12, 0','s_cselect_b32 s15, 1, 0',
          'v_mov_b32 v11, s13','v_mov_b32 v12, s14','v_mov_b32 v10, s15','v_mov_b32 v8, 16384','ds_write_b96 v8, v[10:12]','s_waitcnt lgkmcnt(0)')
        k('ch_reg_wait:','s_barrier','v_mov_b32 v8, 16384','ds_read_b96 v[12:14], v8','s_waitcnt lgkmcnt(0)',
          'v_readfirstlane_b32 s15, v12','v_readfirstlane_b32 s41, v13','v_readfirstlane_b32 s14, v14','s_cmp_eq_u32 s15, 1','s_cbranch_scc0 ch_slow')
        chain_body(k,True,'f')
        k('ch_slow:','s_lshr_b32 s40, s14, 5','s_and_b32 s41, s14, 31')
    else:
        k('s_lshr_b32 s40, s2, 5','s_and_b32 s41, s2, 31')
    chain_body(k,False,'s')
    k('chain_done:')
    return k,(XB0+81920 if TOK else 16448+20480)
```

```python
from common import *
from attn import *
NSTEP=64
SPIN=1<<16
TRACE=False
CSLEEP=0
NOPF=0
PSLEEP=4
WARM=2
PIPE=0
PIPEA=0
BSLEEP=4
TATT=1
QRING=1
TOK=1
HSLEEP=32
XB0=40960
RING=8
PFILL=1
def chain_body(k, fast, tag):
    def ts(i):
        if TRACE: k(f's_memtime s[{72+2*i}:{73+2*i}]')
    LS='' if fast else ' sc1'
    started=[False]
    M=64; Q=192; KM=208; VM=224; S=112; P=124; O=132; T=8; MM=3; OB=164; D=180; PT=188; ONE=240; SM=244; MB0=16448; MF=96
    L=lambda n: f'ch_{tag}_{n}'
    MB=36
    lane_consts(k,MB,MM,T)
    k('v_and_b32 v12, 7, v0','v_lshrrev_b32 v13, 4, v0','v_lshlrev_b32 v12, 4, v12','v_lshl_add_u32 v12, v13, 7, v12')
    k('v_and_b32 v14, 15, v0','v_and_b32 v15, 1, v13','v_lshlrev_b32 v14, 4, v14','v_lshl_add_u32 v14, v15, 8, v14')
    k('v_lshrrev_b32 v18, 5, v0','v_bfe_u32 v19, v0, 3, 2','v_and_b32 v20, 7, v0',
      'v_lshlrev_b32 v16, 10, v18','v_lshl_add_u32 v16, v19, 8, v16','v_lshl_add_u32 v16, v20, 4, v16',
      'v_lshlrev_b32 v17, 7, v19','v_lshl_add_u32 v17, v20, 4, v17','v_lshl_add_u32 v17, v18, 3, v17')
    k('v_mov_b32 v21, -2')
    for i in range(4): k(f'v_mov_b32 v{56+i}, -1')
    k('v_and_b32 v18, 8, v0','v_cmp_eq_u32 s[50:51], 0, v18','s_mov_b32 s52, -1','s_mov_b32 s53, 0')
    k('s_lshr_b32 s42, s41, 3','s_and_b32 s43, s41, 7','s_lshl_b32 s44, s40, 2','s_add_u32 s45, s44, s42')
    k('s_cmp_eq_u32 s3, 3',f's_cbranch_scc1 {L("nowa")}')
    k('s_lshl_b32 s12, s3, 8','s_lshl_b32 s13, s45, 3','s_add_u32 s12, s12, s13','s_add_u32 s12, s12, s43',f's_mul_i32 s12, s12, {20*KB}',f's_add_u32 s12, s12, {OFF["WQKV"]}')
    for ks in range(20):
        if ks%4==0 and ks: k('s_add_u32 s12, s12, 4096')
        k(f'buffer_load_dwordx4 {ar(4*ks)}, v2, s[8:11], s12 offen offset:{(ks%4)*KB}')
    k(f'{L("nowa")}:')
    k('s_add_u32 s46, s44, s3')
    k('s_cmp_ge_u32 s41, 20',f's_cbranch_scc1 {L("nowo")}')
    for t in range(2):
        k('s_lshl_b32 s12, s41, 1',f's_add_u32 s12, s12, {t}','s_lshl_b32 s12, s12, 7','s_lshl_b32 s13, s46, 2','s_add_u32 s12, s12, s13','s_lshl_b32 s12, s12, 10',f's_add_u32 s12, s12, {OFF["WO"]}')
        for c in range(4): k(f'buffer_load_dwordx4 {ar(80+16*t+4*c)}, v2, s[8:11], s12 offen offset:{c*KB}')
    k('s_lshl_b32 s54, s46, 12',f's_add_u32 s54, s54, {OFF["QK"]+128*KB}','s_lshl_b32 s55, s46, 13',f's_add_u32 s55, s55, {OFF["VT"]}')
    def pf_k():
        if NOPF and started[0]: return
        for kt in range(2):
            k(f's_add_u32 s12, s54, {kt*256*KB}')
            for ks in range(4): k(f'buffer_load_dwordx4 {ar(112+16*kt+4*ks)}, v2, s[8:11], s12 offen offset:{ks*KB}')
        k(f's_add_u32 s54, s54, {512*KB}')
        if QRING: k('s_bitset0_b32 s54, 22')
    def pf_v():
        if NOPF and started[0]: return
        for hf in range(2):
            k(f's_add_u32 s12, s55, {hf*4096}')
            for e in range(4): k(f'buffer_load_dwordx4 {ar(144+16*hf+4*e)}, v2, s[8:11], s12 offen offset:{e*KB}')
        k(f's_add_u32 s55, s55, {256*KB}')
        if QRING: k('s_bitset0_b32 s55, 21')
    k(f'{L("nowo")}:')
    k(f's_mov_b32 s20, {OFF["XN"]}',f's_mul_i32 s21, s3, {14*KB}','s_mov_b32 s24, 0','s_mov_b32 s25, 0')
    k('s_lshl_b32 s12, s45, 2','s_lshr_b32 s13, s43, 1','s_add_u32 s12, s12, s13','s_lshl_b32 s13, s3, 7','s_add_u32 s12, s12, s13','s_lshl_b32 s12, s12, 10',f's_add_u32 s22, s12, {OFF["QK"]}',
      's_lshl_b32 s12, s45, 3','s_add_u32 s12, s12, s43','s_lshl_b32 s12, s12, 10',f's_add_u32 s23, s12, {OFF["VT"]}',
      's_and_b32 s12, s43, 1','s_lshl_b32 s12, s12, 3','v_add_u32 v42, s12, v2')
    def dma1(i):
        k(f's_add_u32 s12, s21, {i*KB}',f's_min_u32 s12, s12, {39*KB}','s_add_u32 m0, s12, s26','s_add_u32 s12, s12, s20','buffer_load_dwordx4 v2, s[8:11], s12 offen lds')
    def dma_pre(): k('s_and_b32 s26, s25, 1','s_mul_i32 s26, s26, 40960',f's_add_u32 s26, s26, {XB0}')
    def dma_post(): k('s_add_u32 s20, s20, 40960','s_add_u32 s25, s25, 1')
    def tok(dma,tg):
        TX=96; D0=144
        k('s_and_b32 s12, s24, 1','s_mul_i32 s12, s12, 40960',f's_add_u32 s12, s12, {XB0}','v_add_u32 v40, s12, v2')
        if dma: dma_pre()
        seq=[(ks,mt) for ks in range(20) for mt in range(2)]
        rd=lambda n: k(f'ds_read_b128 {vr(TX+4*(n%12))}, v40 offset:{(seq[n][1]*20+seq[n][0])*KB}')
        for n in range(12): rd(n)
        for sw in (0,1):
            if sw==0: k('s_cmp_eq_u32 s3, 2',f's_cbranch_scc1 {L("tv"+tg)}')
            else: k(f'{L("tv"+tg)}:')
            for n,(ks,mt) in enumerate(seq):
                k(f's_waitcnt lgkmcnt({min(11,39-n)})')
                X=vr(TX+4*(n%12)); A,B=(ar(4*ks),X) if sw==0 else (X,ar(4*ks))
                k(f'v_mfma_f32_16x16x32_bf16 {vr(D0+4*mt)}, {A}, {B}, {vr(D0+4*mt) if ks else 0}')
                if n+12<40: rd(n+12)
                if dma and n%2==1 and n//2<14: dma1(n//2)
            k('s_nop 7','s_nop 7')
            for q in range(4): k(f'v_cvt_pk_bf16_f32 v{D0+8+q}, v{D0+2*q}, v{D0+2*q+1}')
            if sw==0:
                k(f'buffer_store_dwordx2 {vr(D0+8,2)}, v42, s[8:11], s22 offen{LS}',f's_add_u32 s12, s22, {256*KB}',f'buffer_store_dwordx2 {vr(D0+10,2)}, v42, s[8:11], s12 offen{LS}',f's_branch {L("te"+tg)}')
            else: k(f'buffer_store_dwordx4 {vr(D0+8)}, v2, s[8:11], s23 offen{LS}',f'{L("te"+tg)}:')
        k(f's_add_u32 s22, s22, {512*KB}',f's_add_u32 s23, s23, {256*KB}','s_add_u32 s24, s24, 1')
        if QRING: k('s_bitset0_b32 s22, 22','s_bitset0_b32 s23, 21')
        if dma: dma_post()
    def window(tg):
        k('s_cmp_gt_u32 s60, 61',f's_cbranch_scc1 {L("wx"+tg)}','s_cmp_eq_u32 s60, 61',f's_cbranch_scc1 {L("wn"+tg)}')
        tok(True,tg+'a')
        k(f's_branch {L("wx"+tg)}',f'{L("wn"+tg)}:')
        tok(False,tg+'b')
        k(f'{L("wx"+tg)}:')
    if TOK:
        k('s_cmp_eq_u32 s3, 3',f's_cbranch_scc1 {L("p1")}')
        for j in range(2):
            dma_pre()
            for i in range(14): dma1(i)
            dma_post()
        k(f'{L("p1")}:','s_waitcnt vmcnt(0)','s_barrier','s_cmp_eq_u32 s3, 3',f's_cbranch_scc1 {L("p2")}')
        tok(False,'p0'); tok(False,'p1')
        k(f'{L("p2")}:','s_waitcnt vmcnt(0)','s_barrier','s_cmp_eq_u32 s3, 3',f's_cbranch_scc1 {L("p3")}')
        dma_pre()
        for i in range(14): dma1(i)
        dma_post()
        k('s_cmp_eq_u32 s3, 0',f's_cbranch_scc0 {L("p3")}')
        k('s_lshl_b32 s12, s40, 2','s_add_u32 s12, s12, 64','v_mov_b32 v44, 1','v_mov_b32 v45, s12','s_mov_b64 exec, 1','buffer_atomic_add v44, v45, s[64:67], 0 offen sc1',
          f's_mov_b32 s61, {SPIN}',f'{L("sy")}:','buffer_load_dword v46, v45, s[64:67], 0 offen sc1','s_waitcnt vmcnt(0)','v_readfirstlane_b32 s12, v46',
          's_sub_u32 s61, s61, 1','s_cmp_eq_u32 s61, 0',f's_cbranch_scc1 {L("sy2")}','s_cmp_lt_u32 s12, 32',f's_cbranch_scc1 {L("sy")}',f'{L("sy2")}:','s_mov_b64 exec, -1')
        k(f'{L("p3")}:','s_barrier')
    k('s_cmp_ge_u32 s41, 20',f's_cbranch_scc1 {L("nopf0")}')
    pf_k(); pf_v()
    started[0]=True
    k(f'{L("nopf0")}:')
    k(f's_mul_i32 s92, s40, 10240',f's_add_u32 s92, s92, {OFF["MEM"]}')
    k(f's_mul_i32 s93, s45, 6144',f's_add_u32 s93, s93, {OFF["QKVM"]}')
    k(f's_mul_i32 s94, s46, 6144',f's_add_u32 s94, s94, {OFF["QKVM"]}')
    k(f's_lshl_b32 s95, s41, 10',f's_add_u32 s95, s95, {OFF["PART"]}')
    TQ=64; TK=96; TKM=128; TV=144; TVM=176; TS=192; TP=204; TO=212
    k('s_sub_u32 s12, s41, 20','s_lshr_b32 s12, s12, 1','s_add_u32 s12, s12, s44','s_and_b32 s91, s41, 1',
      's_lshl_b32 s13, s12, 12','s_lshl_b32 s14, s91, 18','s_add_u32 s68, s13, s14',f's_add_u32 s68, s68, {OFF["QK"]}',f's_add_u32 s69, s13, {OFF["QK"]+128*KB}',
      's_lshl_b32 s70, s12, 13',f's_add_u32 s70, s70, {OFF["VT"]}','s_mul_i32 s71, s12, 6144',f's_add_u32 s71, s71, {OFF["QKVM"]}',
      's_lshl_b32 s14, s91, 17','s_add_u32 s88, s13, s14',f's_add_u32 s88, s88, {OFF["O"]}','s_mov_b32 s89, 0','s_mov_b32 s90, 0')
    def tpf():
        for ks in range(4): k(f'buffer_load_dwordx4 {vr(TQ+4*ks)}, v2, s[8:11], s68 offen offset:{ks*KB}')
        for kt in range(2):
            k(f's_add_u32 s12, s69, {kt*256*KB}')
            for ks in range(4): k(f'buffer_load_dwordx4 {vr(TK+16*kt+4*ks)}, v2, s[8:11], s12 offen offset:{ks*KB}')
        for hf in range(2):
            k(f's_add_u32 s12, s70, {hf*4096}')
            for e in range(4): k(f'buffer_load_dwordx4 {vr(TV+16*hf+4*e)}, v2, s[8:11], s12 offen offset:{e*KB}')
        k(f's_add_u32 s68, s68, {512*KB}',f's_add_u32 s69, s69, {512*KB}',f's_add_u32 s70, s70, {256*KB}')
        if QRING: k('s_bitset0_b32 s68, 22','s_bitset0_b32 s69, 22','s_bitset0_b32 s70, 21')
    if TATT:
        k('s_cmp_eq_u32 s3, 3',f's_cbranch_scc0 {L("not")}','s_cmp_lt_u32 s41, 20',f's_cbranch_scc1 {L("not")}','s_cmp_ge_u32 s41, 28',f's_cbranch_scc1 {L("not")}','s_mov_b32 s90, 1')
        tpf()
        k(f'{L("not")}:')
    k('s_lshr_b32 s12, s43, 1','s_lshl_b32 s12, s12, 9','s_and_b32 s13, s43, 1','s_lshl_b32 s13, s13, 3','s_add_u32 s12, s12, s13','s_lshl_b32 s13, s3, 11','s_add_u32 s12, s12, s13')
    k('s_cmp_eq_u32 s3, 2',f's_cbranch_scc1 {L("vo")}','v_add_u32 v22, s12, v12',f's_branch {L("vo2")}',f'{L("vo")}:','v_add_u32 v22, s12, v14',f'{L("vo2")}:')
    k('s_mov_b32 s60, 0')
    for i in range(48): k(f'v_mov_b32 v{Q+i}, 0')
    for i in range(4): k(f'v_mov_b32 v{ONE+i}, 0x3f803f80')
    k('s_lshl_b32 s62, s3, 10','v_add_u32 v23, s62, v2','s_cmp_eq_u32 s3, 0','s_cselect_b32 s67, 9216, 0','s_waitcnt vmcnt(0)')
    k(f'{L("loop")}:')
    ts(0)
    k(f's_and_b32 s12, s60, {RING-1}',f's_mul_i32 s13, s12, {8*10240}','s_add_u32 s56, s92, s13',f's_mul_i32 s13, s12, {32*6144}','s_add_u32 s57, s93, s13','s_add_u32 s58, s94, s13',
      f's_mul_i32 s13, s12, {8*20*KB}','s_add_u32 s59, s95, s13',f's_add_u32 s47, s60, {WARM}',f's_and_b32 s47, s47, {RING-1}')
    k('s_and_b32 s12, s60, 1','s_mul_i32 s63, s12, 10240',f's_add_u32 s63, s63, {MB0}','v_add_u32 v18, s63, v23')
    if WARM:
        k('s_cmp_eq_u32 s3, 3',f's_cbranch_scc0 {L("nw")}',f's_cmp_gt_u32 s60, {63-WARM}',f's_cbranch_scc1 {L("nw")}')
        k(f's_mul_i32 s12, s47, {32*6144}',f's_mul_i32 s13, s44, 6144','s_add_u32 s12, s12, s13',f's_add_u32 s12, s12, {OFF["QKVM"]}','s_lshl_b32 s13, s41, 10','s_add_u32 s12, s12, s13')
        k(f's_mul_i32 s15, s47, {8*10240}','s_add_u32 s15, s15, s92')
        k(f's_sub_u32 s14, s15, {24*1024}','s_add_u32 s14, s14, s13','s_cmp_lt_u32 s41, 24','s_cselect_b32 s12, s12, s14',
          f'buffer_store_dwordx4 v[56:59], v2, s[8:11], s12 offen{LS}',
          's_add_u32 s14, s15, 8192','s_and_b32 s13, s13, 1024','s_add_u32 s14, s14, s13',f'buffer_store_dwordx4 v[56:59], v2, s[8:11], s14 offen{LS}','s_waitcnt vmcnt(0)')
        k(f'{L("nw")}:')
    k('s_cmp_eq_u32 s3, 3',f's_cbranch_scc1 {L("A3")}')
    k('s_add_u32 s64, s56, 3072','s_add_u32 s65, s56, 6144','s_add_u32 s66, s56, s67')
    def aiss(st):
        b0=M+16*st
        k(f'buffer_load_dwordx4 {vr(b0)}, v23, s[8:11], s56 offen sc1',f'buffer_load_dwordx4 {vr(b0+4)}, v23, s[8:11], s64 offen sc1',
          f'buffer_load_dwordx4 {vr(b0+8)}, v23, s[8:11], s65 offen sc1',f'buffer_load_dwordx4 {vr(b0+12)}, v23, s[8:11], s66 offen sc1')
    if PIPEA: aiss(0)
    k(f's_mov_b32 s61, {SPIN}',f'{L("Ap")}:')
    for st in range(2):
        b0=M+16*st
        aiss(1-st) if PIPEA else aiss(st)
        k('s_waitcnt vmcnt(4)' if PIPEA else 's_waitcnt vmcnt(0)',f'v_max3_u32 v{T}, v{b0}, v{b0+2}, v{b0+4}',f'v_max3_u32 v{T+1}, v{b0+6}, v{b0+8}, v{b0+10}',f'v_max3_u32 v{T}, v{T}, v{b0+12}, v{b0+14}',f'v_max_u32 v{T}, v{T}, v{T+1}')
        k(f'v_cmp_eq_u32 vcc, -1, v{T}','s_sub_u32 s61, s61, 1','s_cmp_eq_u32 s61, 0',f's_cbranch_scc1 {L("Ad%d"%st)}',f's_cbranch_vccz {L("Ad%d"%st)}')
    k(f's_branch {L("Ap")}')
    for st in range(2):
        b0=M+16*st
        k(f'{L("Ad%d"%st)}:',f'ds_write_b128 v18, {vr(b0)}',f'ds_write_b128 v18, {vr(b0+4)} offset:3072',f'ds_write_b128 v18, {vr(b0+8)} offset:6144',
          's_cmp_eq_u32 s3, 0',f's_cbranch_scc0 {L("A3")}',f'ds_write_b128 v18, {vr(b0+12)} offset:9216',f's_branch {L("A3")}')
    k(f'{L("A3")}:')
    if TRACE: k('s_cmp_eq_u32 s3, 3',f's_cbranch_scc1 {L("t4")}',f's_sub_u32 s84, {SPIN}, s61',f'{L("t4")}:')
    k('v_add_u32 v18, s63, v12','s_waitcnt lgkmcnt(0)','s_barrier')
    ts(1)
    k('s_cmp_eq_u32 s3, 3',f's_cbranch_scc1 {L("B")}')
    if TRACE: k('s_waitcnt lgkmcnt(0)')
    for ks in range(12): k(f'ds_read_b128 {vr(MF+4*ks)}, v18 offset:{ks*512}')
    for sw in (0,1):
        if sw==0: k('s_cmp_eq_u32 s3, 2',f's_cbranch_scc1 {L("Av")}')
        else: k(f'{L("Av")}:')
        for ks in range(20):
            k(f's_waitcnt lgkmcnt({min(11,19-ks)})')
            A,B=(ar(4*ks),vr(MF+4*(ks%12))) if sw==0 else (vr(MF+4*(ks%12)),ar(4*ks))
            k(f'v_mfma_f32_16x16x32_bf16 {vr(D)}, {A}, {B}, {vr(D) if ks else 0}')
            if ks+12<20: k(f'ds_read_b128 {vr(MF+4*ks)}, v18 offset:{(ks+12)*512}')
        k('s_nop 7',f'v_cvt_pk_bf16_f32 v{PT}, v{D}, v{D+1}',f'v_cvt_pk_bf16_f32 v{PT+1}, v{D+2}, v{D+3}',f'v_min_u32 v{PT}, v{PT}, v21')
        k(f's_mov_b64 exec, s[{50 if sw==0 else 52}:{51 if sw==0 else 53}]',f'buffer_store_dwordx2 {vr(PT,2)}, v22, s[8:11], s57 offen{LS}','s_mov_b64 exec, -1')
        if sw==0: k(f's_branch {L("B")}')
    k(f'{L("B")}:','s_cmp_ge_u32 s41, 20',f's_cbranch_scc1 {L("hi")}',f's_cmp_eq_u32 s60, {NSTEP-1}',f's_cbranch_scc1 {L("end")}')
    ts(2)
    k(f's_sleep {BSLEEP}') if BSLEEP else None
    k(f's_mov_b32 s61, {SPIN}',f'{L("Bp")}:','s_mov_b64 exec, s[50:51]')
    for ks in range(4): k(f'buffer_load_dwordx4 {vr(Q+4*ks)}, v12, s[8:11], s58 offen offset:{ks*512} sc1')
    for ks in range(4): k(f'buffer_load_dwordx4 {vr(KM+4*ks)}, v12, s[8:11], s58 offen offset:{2048+ks*512} sc1')
    k('s_add_u32 s12, s58, 4096','s_mov_b64 exec, s[52:53]')
    for ep in range(4): k(f'buffer_load_dwordx4 {vr(VM+4*ep)}, v14, s[8:11], s12 offen offset:{ep*512} sc1')
    k('s_mov_b64 exec, -1')
    for i in range(12):
        k(f's_waitcnt vmcnt({11-i})')
        b=Q+4*i
        if i==0: k(f'v_max_u32 v{T}, v{b}, v{b+2}')
        else: k(f'v_max3_u32 v{T}, v{T}, v{b}, v{b+2}')
        if i<4:
            for t in range(2): k(f'v_mfma_f32_16x16x32_bf16 {vr(S+4*t)}, {ar(112+16*t+4*i)}, {vr(Q+4*i)}, {vr(S+4*t) if i else 0}')
        elif i<8:
            k(f'v_mfma_f32_16x16x32_bf16 {vr(S+8)}, {vr(KM+4*(i-4))}, {vr(Q+4*(i-4))}, {vr(S+8) if i>4 else 0}')
    k(f'v_cmp_eq_u32 vcc, -1, v{T}','s_sub_u32 s61, s61, 1','s_cmp_eq_u32 s61, 0',f's_cbranch_scc1 {L("Bd")}',f's_cbranch_vccnz {L("Bp")}',f'{L("Bd")}:')
    ts(3)
    if TRACE: k('s_cmp_eq_u32 s3, 3',f's_cbranch_scc1 {L("t3")}',f's_sub_u32 s82, {SPIN}, s61',f'{L("t3")}:')
    vals=[S+i for i in range(12)]
    for i in range(4): k(f'v_add_f32 v{S+8+i}, v{S+8+i}, v{MM}')
    m=T
    k(f'v_max3_f32 v{m}, v{S}, v{S+1}, v{S+2}',f'v_max3_f32 v{m+1}, v{S+3}, v{S+4}, v{S+5}',f'v_max3_f32 v{m}, v{m}, v{S+6}, v{S+7}',f'v_max3_f32 v{m+1}, v{m+1}, v{S+8}, v{S+9}',
      f'v_max3_f32 v{m}, v{m}, v{S+10}, v{S+11}',f'v_max_f32 v{m}, v{m}, v{m+1}')
    xred(k,'v_max_f32',m,T+1)
    k(f'v_mul_f32 v{m}, 0x{CS:x}, v{m}',f's_mov_b32 s39, 0x{CS:x}')
    for v in vals: k(f'v_fma_f32 v{v}, v{v}, s39, -v{m}')
    for v in vals: k(f'v_exp_f32 v{v}, v{v}')
    k('s_nop 0')
    for t in range(3): k(f'v_cvt_pk_bf16_f32 v{P+2*t}, v{S+4*t}, v{S+4*t+1}',f'v_cvt_pk_bf16_f32 v{P+2*t+1}, v{S+4*t+2}, v{S+4*t+3}')
    k('s_nop 1')
    def pv1(et): k(f'v_mfma_f32_16x16x32_bf16 {vr(O+4*et)}, {ar(144+4*et)}, {vr(P)}, 0')
    def pv2(et): k(f'v_mfma_f32_16x16x16_bf16 {vr(O+4*et)}, {vr(VM+2*et,2)}, {vr(P+4,2)}, {vr(O+4*et)}')
    def cv(c):
        r0=O+8*c; t=OB+4*c
        k(f'v_cvt_pk_bf16_f32 v{t}, v{r0}, v{r0+1}',f'v_cvt_pk_bf16_f32 v{t+1}, v{r0+2}, v{r0+3}',
          f'v_cvt_pk_bf16_f32 v{t+2}, v{r0+4}, v{r0+5}',f'v_cvt_pk_bf16_f32 v{t+3}, v{r0+6}, v{r0+7}')
    def wo(c):
        for t in range(2): k(f'v_mfma_f32_16x16x32_bf16 {vr(D+4*t)}, {ar(80+16*t+4*c)}, {vr(OB+4*c)}, {vr(D+4*t) if c else 0}')
    for et in range(8): pv1(et)
    k(f'v_mfma_f32_16x16x32_bf16 {vr(SM)}, {vr(ONE)}, {vr(P)}, 0')
    for et in range(8): pv2(et)
    k(f'v_mfma_f32_16x16x16_bf16 {vr(SM)}, {vr(ONE,2)}, {vr(P+4,2)}, {vr(SM)}')
    k('s_nop 1'); cv(0); cv(1); wo(0); cv(2); wo(1); k(f'v_rcp_f32 v{T}, v{SM}'); cv(3); wo(2); k('s_nop 0'); wo(3)
    k('s_nop 7')
    for i in range(8): k(f'v_mul_f32 v{D+i}, v{D+i}, v{T}')
    k('s_and_b32 s12, s60, 1','s_lshl_b32 s12, s12, 13','s_lshl_b32 s13, s3, 11','s_add_u32 s13, s13, s12','v_add_u32 v18, s13, v2')
    k(f'ds_write_b128 v18, {vr(D)}',f'ds_write_b128 v18, {vr(D+4)} offset:1024','s_waitcnt lgkmcnt(0)','s_barrier')
    ts(4)
    k('s_cmp_eq_u32 s3, 3',f's_cbranch_scc0 {L("pf")}')
    k('v_add_u32 v18, s12, v16')
    for hh in range(4): k(f'ds_read_b128 {vr(M+4*hh)}, v18 offset:{hh*2048}')
    k('s_waitcnt lgkmcnt(0)')
    for q in range(4): k(f'v_add_f32 v{M+q}, v{M+q}, v{M+4+q}',f'v_add_f32 v{M+8+q}, v{M+8+q}, v{M+12+q}',f'v_add_f32 v{M+q}, v{M+q}, v{M+8+q}')
    k(f'v_min_u32 v{M}, v{M}, v21',f's_mul_i32 s12, s40, {20*KB}','s_add_u32 s12, s12, s59',f'buffer_store_dwordx4 {vr(M)}, v2, s[8:11], s12 offen sc1')
    ts(5)
    k('s_add_u32 s48, s60, 1',f's_and_b32 s48, s48, {RING-1}',f's_mul_i32 s48, s48, {8*10240}','s_add_u32 s48, s48, s92')
    pf_k(); pf_v()
    if CSLEEP: k(f's_sleep {CSLEEP}')
    def ciss(st):
        k('s_mov_b32 s12, s59')
        for x in range(8): k(f'buffer_load_dwordx4 {vr(M+16+32*st+4*x)}, v2, s[8:11], s12 offen sc1',f's_add_u32 s12, s12, {20*KB}')
    if PIPE: ciss(0)
    k(f's_mov_b32 s61, {SPIN}',f'{L("Cp")}:')
    for st in range(2):
        b=M+16+32*st
        ciss(1-st) if PIPE else ciss(st)
        k('s_waitcnt vmcnt(8)' if PIPE else 's_waitcnt vmcnt(0)')
        k(f'v_max3_u32 v{T}, v{b}, v{b+4}, v{b+8}',f'v_max3_u32 v{T+1}, v{b+12}, v{b+16}, v{b+20}',f'v_max3_u32 v{T}, v{T}, v{b+24}, v{b+28}',f'v_max_u32 v{T}, v{T}, v{T+1}')
        k(f'v_cmp_eq_u32 vcc, -1, v{T}','s_sub_u32 s61, s61, 1','s_cmp_eq_u32 s61, 0',f's_cbranch_scc1 {L("Cd%d"%st)}',f's_cbranch_vccz {L("Cd%d"%st)}')
    k(f's_branch {L("Cp")}')
    for st in range(2):
        b=M+16+32*st
        k(f'{L("Cd%d"%st)}:')
        ts(6)
        for q in range(4):
            k(f'v_add_f32 v{b+q}, v{b+q}, v{b+4+q}',f'v_add_f32 v{b+8+q}, v{b+8+q}, v{b+12+q}',f'v_add_f32 v{b+16+q}, v{b+16+q}, v{b+20+q}',f'v_add_f32 v{b+24+q}, v{b+24+q}, v{b+28+q}',
              f'v_add_f32 v{b+q}, v{b+q}, v{b+8+q}',f'v_add_f32 v{b+16+q}, v{b+16+q}, v{b+24+q}',f'v_add_f32 v{b+q}, v{b+q}, v{b+16+q}')
        k(f'v_cvt_pk_bf16_f32 v{PT}, v{b}, v{b+1}',f'v_cvt_pk_bf16_f32 v{PT+1}, v{b+2}, v{b+3}',f'v_min_u32 v{PT}, v{PT}, v21')
        if st==0: k(f's_branch {L("Ce")}')
    k(f'{L("Ce")}:')
    k('s_lshl_b32 s12, s41, 9','s_add_u32 s12, s12, s48',f'buffer_store_dwordx2 {vr(PT,2)}, v17, s[8:11], s12 offen{LS}')
    k(f's_branch {L("next")}',f'{L("pf")}:')
    if PSLEEP: k(f's_sleep {PSLEEP}')
    if WARM and PFILL:
        k('s_cmp_eq_u32 s3, 0',f's_cbranch_scc0 {L("npf")}',f's_cmp_gt_u32 s60, {63-WARM}',f's_cbranch_scc1 {L("npf")}',
          f's_mul_i32 s12, s40, {20*KB}','s_add_u32 s12, s12, s95',f's_mul_i32 s13, s47, {8*20*KB}','s_add_u32 s12, s12, s13','buffer_store_dwordx4 v[56:59], v2, s[8:11], s12 offen sc1',f'{L("npf")}:')
    pf_k(); pf_v()
    if TOK: window('lo')
    k(f'{L("next")}:')
    if TRACE:
        ts(7)
        k('s_waitcnt lgkmcnt(0)')
        k('s_lshl_b32 s12, s40, 5','s_add_u32 s12, s12, s41','s_lshl_b32 s12, s12, 2','s_add_u32 s12, s12, s3','s_lshl_b32 s12, s12, 11','s_lshl_b32 s13, s60, 5','s_add_u32 s12, s12, s13',f's_add_u32 s12, s12, {OFF["TR"]}')
        for i in range(8): k(f'v_mov_b32 v{24+i}, s{72+2*i}')
        k('v_mov_b32 v32, 0','s_mov_b64 exec, 1','buffer_store_dwordx4 v[24:27], v32, s[8:11], s12 offen','buffer_store_dwordx4 v[28:31], v32, s[8:11], s12 offen offset:16','s_mov_b64 exec, -1')
    k('s_add_u32 s60, s60, 1',f's_branch {L("loop")}')
    k(f'{L("end")}:','s_endpgm')
    k(f'{L("hi")}:')
    if TOK:
        k('s_cmp_eq_u32 s3, 3',f's_cbranch_scc1 {L("hi3")}')
        if HSLEEP: k(f's_sleep {HSLEEP}')
        window('hi')
        k(f's_branch {L("hid")}',f'{L("hi3")}:')
    if TATT:
        k('s_cmp_eq_u32 s90, 0',f's_cbranch_scc1 {L("hid")}','s_cmp_eq_u32 s60, 0',f's_cbranch_scc1 {L("hid")}')
        k(f'{L("tl")}:',f's_mov_b32 s61, {SPIN}',f's_and_b32 s49, s89, {RING-1}',f's_mul_i32 s49, s49, {32*6144}','s_add_u32 s49, s49, s71',f'{L("tp")}:')
        for ks in range(4): k(f'buffer_load_dwordx4 {vr(TKM+4*ks)}, v12, s[8:11], s49 offen offset:{2048+ks*512} sc1')
        k('s_add_u32 s12, s49, 4096')
        for ep in range(4): k(f'buffer_load_dwordx4 {vr(TVM+4*ep)}, v14, s[8:11], s12 offen offset:{ep*512} sc1')
        k('s_waitcnt vmcnt(0)')
        regs=[TKM+4*i for i in range(4)]+[TVM+4*i for i in range(4)]
        for i,b in enumerate(regs):
            if i==0: k(f'v_max_u32 v{T}, v{b}, v{b+2}')
            else: k(f'v_max3_u32 v{T}, v{T}, v{b}, v{b+2}')
        k(f'v_cmp_eq_u32 vcc, -1, v{T}','s_sub_u32 s61, s61, 1','s_cmp_eq_u32 s61, 0',f's_cbranch_scc1 {L("td")}',f's_cbranch_vccnz {L("tp")}',f'{L("td")}:')
        k('s_cmp_eq_u32 s91, 0',f's_cbranch_scc0 {L("tq1")}')
        attn_core(k,TQ,TK,TKM,TV,TVM,TS,TP,TO,T,[0],0,MB,MM)
        k(f's_branch {L("tq2")}',f'{L("tq1")}:')
        attn_core(k,TQ,TK,TKM,TV,TVM,TS,TP,TO,T,[0,1],1,MB,MM)
        k(f'{L("tq2")}:')
        for c in range(4):
            r0=TO+8*c; t=TKM+4*c
            k(f'v_cvt_pk_bf16_f32 v{t}, v{r0}, v{r0+1}',f'v_cvt_pk_bf16_f32 v{t+1}, v{r0+2}, v{r0+3}',
              f'v_cvt_pk_bf16_f32 v{t+2}, v{r0+4}, v{r0+5}',f'v_cvt_pk_bf16_f32 v{t+3}, v{r0+6}, v{r0+7}',
              f'buffer_store_dwordx4 {vr(t)}, v2, s[8:11], s88 offen offset:{c*KB}')
        k(f's_add_u32 s88, s88, {256*KB}','s_add_u32 s89, s89, 1','s_cmp_ge_u32 s89, 64',f's_cbranch_scc1 {L("end")}')
        tpf()
        k(f's_cmp_eq_u32 s60, {NSTEP-1}',f's_cbranch_scc1 {L("tl")}')
    k(f'{L("hid")}:',f's_cmp_eq_u32 s60, {NSTEP-1}',f's_cbranch_scc1 {L("end")}',f's_branch {L("next")}')
def gen_chain(use_fast=False):
    k=K('chain_kernel',vgpr=248,agpr=176,sgpr=96)
    k('s_cmp_ge_u32 s2, 256','s_cbranch_scc1 chain_done')
    k.srd(8,'ws',WS_BYTES)
    k('v_lshrrev_b32 v1, 6, v0','s_nop 0','v_readfirstlane_b32 s3, v1','v_and_b32 v0, 63, v0','v_lshlrev_b32 v2, 4, v0')
    if use_fast:
        k.srd(64,'dbg',256)
        k('s_getreg_b32 s40, hwreg(HW_REG_XCC_ID)','s_and_b32 s40, s40, 7')
        k('s_cmp_eq_u32 s3, 0','s_cbranch_scc0 ch_reg_wait')
        k('v_mov_b32 v4, 1','s_lshl_b32 s12, s40, 2','v_mov_b32 v5, s12','s_mov_b64 exec, 1',
          'buffer_atomic_add v4, v5, s[64:67], 0 offen sc0 sc1','s_waitcnt vmcnt(0)',
          'v_mov_b32 v6, 1','v_mov_b32 v7, 32','buffer_atomic_add v6, v7, s[64:67], 0 offen sc0 sc1','s_waitcnt vmcnt(0)',
          's_mov_b64 exec, -1')
        k(f's_mov_b32 s61, {SPIN}','v_lshlrev_b32 v8, 2, v0','ch_reg_poll:','buffer_load_dword v9, v8, s[64:67], 0 offen sc1','s_waitcnt vmcnt(0)',
          'v_readlane_b32 s12, v9, 8','s_sub_u32 s61, s61, 1','s_cmp_eq_u32 s61, 0','s_cbranch_scc1 ch_reg_got','s_cmp_lt_u32 s12, 256','s_cbranch_scc1 ch_reg_poll','ch_reg_got:')
        k('v_cmp_ne_u32 vcc, 32, v9','s_nop 1','s_and_b32 s12, vcc_lo, 0xff','v_readfirstlane_b32 s13, v4','v_readfirstlane_b32 s14, v6',
          's_cmp_eq_u32 s12, 0','s_cselect_b32 s15, 1, 0',
          'v_mov_b32 v11, s13','v_mov_b32 v12, s14','v_mov_b32 v10, s15','v_mov_b32 v8, 16384','ds_write_b96 v8, v[10:12]','s_waitcnt lgkmcnt(0)')
        k('ch_reg_wait:','s_barrier','v_mov_b32 v8, 16384','ds_read_b96 v[12:14], v8','s_waitcnt lgkmcnt(0)',
          'v_readfirstlane_b32 s15, v12','v_readfirstlane_b32 s41, v13','v_readfirstlane_b32 s14, v14','s_cmp_eq_u32 s15, 1','s_cbranch_scc0 ch_slow')
        chain_body(k,True,'f')
        k('ch_slow:','s_lshr_b32 s40, s14, 5','s_and_b32 s41, s14, 31')
    else:
        k('s_lshr_b32 s40, s2, 5','s_and_b32 s41, s2, 31')
    chain_body(k,False,'s')
    k('chain_done:')
    return k,(XB0+81920 if TOK else 16448+20480)
```

```python
KB=1024
OFF={}
_o=0
def _al(name,size,al=4096):
    global _o
    _o=(_o+al-1)//al*al
    OFF[name]=_o; _o+=(size+4095)//4096*4096
_al('WQKV',768*20*KB); _al('WO',40*128*KB); _al('W13',216*20*KB); _al('W2',40*54*KB)
_al('XN',128*20*KB); _al('QK',128*256*KB,8<<20); _al('VT',64*32*8*KB,4<<20)
_al('MEM',65*8*10240); _al('QKVM',64*32*6144); _al('PART',64*8*20*KB); _al('FILLEND',4096)
_al('O',128*128*KB); _al('H',2048*1280); _al('HN',128*20*KB); _al('HH',128*54*KB)
_al('TR',256*4*64*32)
WS_BYTES=268435456
ARG={'x':0,'mem0':8,'Wq':16,'Wk':24,'Wv':32,'Wo':40,'w1':64,'w3':72,'w2':80,'out':88,'dbg':96,'ws':104}
class K:
    def __init__(s,name,vgpr=256,agpr=0,sgpr=102):
        s.name=name; s.L=[]; s.vgpr=vgpr; s.agpr=agpr; s.sgpr=sgpr; s.n=0
    def __call__(s,*a):
        for x in a:
            for l in x.split('\n'):
                l=l.strip()
                if l: s.L.append(('' if l.endswith(':') else '  ')+l)
    def lab(s,p='L'):
        s.n+=1; return f'{s.name}_{p}{s.n}'
    def srd(s,d,arg,size,tmp=None,add=0):
        s(f's_load_dwordx2 s[{d}:{d+1}], s[0:1], {ARG[arg]}','s_waitcnt lgkmcnt(0)')
        if add: s(f's_add_u32 s{d}, s{d}, {add}',f's_addc_u32 s{d+1}, s{d+1}, 0')
        s(f's_and_b32 s{d+1}, s{d+1}, 0xffff',f's_mov_b32 s{d+2}, {size}',f's_mov_b32 s{d+3}, 0x20000')
    def text(s):
        acc=(s.vgpr+3)//4*4
        tot=acc+s.agpr if s.agpr else s.vgpr
        h=f'.text\n.globl {s.name}\n.p2align 8\n.type {s.name},@function\n{s.name}:\n'
        t=f'''\n  s_endpgm
.section .rodata,"a"
.p2align 6
.amdhsa_kernel {s.name}
  .amdhsa_next_free_vgpr {tot}
  .amdhsa_next_free_sgpr {s.sgpr}
  .amdhsa_accum_offset {acc}
  .amdhsa_group_segment_fixed_size 0
  .amdhsa_kernarg_size 112
  .amdhsa_user_sgpr_count 2
  .amdhsa_user_sgpr_kernarg_segment_ptr 1
  .amdhsa_system_sgpr_workgroup_id_x 1
.end_amdhsa_kernel
'''
        return h+'\n'.join(s.L)+t
def vr(b,n=4): return f'v[{b}:{b+n-1}]'
def ar(b,n=4): return f'a[{b}:{b+n-1}]'
```

```python
KB=1024
OFF={}
_o=0
def _al(name,size,al=4096):
    global _o
    _o=(_o+al-1)//al*al
    OFF[name]=_o; _o+=(size+4095)//4096*4096
_al('WQKV',768*20*KB); _al('XN',128*20*KB); _al('WO',40*128*KB); _al('W13',216*20*KB); _al('W2',40*54*KB)
_al('QK',128*256*KB,8<<20); _al('VT',64*32*8*KB,4<<20)
_al('MEM',65*8*10240); _al('QKVM',64*32*6144); _al('PART',64*8*20*KB); _al('FILLEND',4096)
_al('O',128*128*KB); _al('H',2048*1280); _al('HN',128*20*KB); _al('HH',128*54*KB)
_al('TR',256*4*64*32)
import os
if os.environ.get('ALIAS','0')=='1':
    assert OFF['WQKV']==0 and OFF['XN']==768*20*KB
    OFF['O']=0; OFF['HN']=0; OFF['HH']=4<<20; OFF['H']=OFF['QK']
WS_BYTES=268435456
ARG={'x':0,'mem0':8,'Wq':16,'Wk':24,'Wv':32,'Wo':40,'w1':64,'w3':72,'w2':80,'out':88,'dbg':96,'ws':104}
class K:
    def __init__(s,name,vgpr=256,agpr=0,sgpr=102):
        s.name=name; s.L=[]; s.vgpr=vgpr; s.agpr=agpr; s.sgpr=sgpr; s.n=0
    def __call__(s,*a):
        for x in a:
            for l in x.split('\n'):
                l=l.strip()
                if l: s.L.append(('' if l.endswith(':') else '  ')+l)
    def lab(s,p='L'):
        s.n+=1; return f'{s.name}_{p}{s.n}'
    def srd(s,d,arg,size,tmp=None,add=0):
        s(f's_load_dwordx2 s[{d}:{d+1}], s[0:1], {ARG[arg]}','s_waitcnt lgkmcnt(0)')
        if add: s(f's_add_u32 s{d}, s{d}, {add}',f's_addc_u32 s{d+1}, s{d+1}, 0')
        s(f's_and_b32 s{d+1}, s{d+1}, 0xffff',f's_mov_b32 s{d+2}, {size}',f's_mov_b32 s{d+3}, 0x20000')
    def text(s):
        acc=(s.vgpr+3)//4*4
        tot=acc+s.agpr if s.agpr else s.vgpr
        h=f'.text\n.globl {s.name}\n.p2align 8\n.type {s.name},@function\n{s.name}:\n'
        t=f'''\n  s_endpgm
.section .rodata,"a"
.p2align 6
.amdhsa_kernel {s.name}
  .amdhsa_next_free_vgpr {tot}
  .amdhsa_next_free_sgpr {s.sgpr}
  .amdhsa_accum_offset {acc}
  .amdhsa_group_segment_fixed_size 0
  .amdhsa_kernarg_size 112
  .amdhsa_user_sgpr_count 2
  .amdhsa_user_sgpr_kernarg_segment_ptr 1
  .amdhsa_system_sgpr_workgroup_id_x 1
.end_amdhsa_kernel
'''
        return h+'\n'.join(s.L)+t
def vr(b,n=4): return f'v[{b}:{b+n-1}]'
def ar(b,n=4): return f'a[{b}:{b+n-1}]'
```

```python
from common import *
from attn import *
NSTEP=64
SPIN=1<<16
TRACE=False
CSLEEP=0
NOPF=0
PSLEEP=4
WARM=2
PIPE=0
PIPEA=0
BSLEEP=4
TATT=1
EARLYK=1
QRING=1
TOK=1
HSLEEP=32
XB0=40960
RING=8
PFILL=1
def chain_body(k, fast, tag):
    def ts(i):
        if TRACE: k(f's_memtime s[{72+2*i}:{73+2*i}]')
    LS='' if fast else ' sc1'
    started=[False]
    M=64; Q=192; KM=208; VM=224; S=112; P=124; O=132; T=8; MM=3; OB=164; D=180; PT=188; ONE=240; SM=244; MB0=16448; MF=96
    L=lambda n: f'ch_{tag}_{n}'
    MB=36
    lane_consts(k,MB,MM,T)
    k('v_and_b32 v12, 7, v0','v_lshrrev_b32 v13, 4, v0','v_lshlrev_b32 v12, 4, v12','v_lshl_add_u32 v12, v13, 7, v12')
    k('v_and_b32 v14, 15, v0','v_and_b32 v15, 1, v13','v_lshlrev_b32 v14, 4, v14','v_lshl_add_u32 v14, v15, 8, v14')
    k('v_lshrrev_b32 v18, 5, v0','v_bfe_u32 v19, v0, 3, 2','v_and_b32 v20, 7, v0',
      'v_lshlrev_b32 v16, 10, v18','v_lshl_add_u32 v16, v19, 8, v16','v_lshl_add_u32 v16, v20, 4, v16',
      'v_lshlrev_b32 v17, 7, v19','v_lshl_add_u32 v17, v20, 4, v17','v_lshl_add_u32 v17, v18, 3, v17')
    k('v_mov_b32 v21, -2')
    for i in range(4): k(f'v_mov_b32 v{56+i}, -1')
    k('v_and_b32 v18, 8, v0','v_cmp_eq_u32 s[50:51], 0, v18','s_mov_b32 s52, -1','s_mov_b32 s53, 0')
    k('s_lshr_b32 s42, s41, 3','s_and_b32 s43, s41, 7','s_lshl_b32 s44, s40, 2','s_add_u32 s45, s44, s42')
    k('s_cmp_eq_u32 s3, 3',f's_cbranch_scc1 {L("nowa")}')
    k('s_lshl_b32 s12, s3, 8','s_lshl_b32 s13, s45, 3','s_add_u32 s12, s12, s13','s_add_u32 s12, s12, s43',f's_mul_i32 s12, s12, {20*KB}',f's_add_u32 s12, s12, {OFF["WQKV"]}')
    for ks in range(20):
        if ks%4==0 and ks: k('s_add_u32 s12, s12, 4096')
        k(f'buffer_load_dwordx4 {ar(4*ks)}, v2, s[8:11], s12 offen offset:{(ks%4)*KB}')
    k(f'{L("nowa")}:')
    k('s_add_u32 s46, s44, s3')
    k('s_cmp_ge_u32 s41, 20',f's_cbranch_scc1 {L("nowo")}')
    for t in range(2):
        k('s_lshl_b32 s12, s41, 1',f's_add_u32 s12, s12, {t}','s_lshl_b32 s12, s12, 7','s_lshl_b32 s13, s46, 2','s_add_u32 s12, s12, s13','s_lshl_b32 s12, s12, 10',f's_add_u32 s12, s12, {OFF["WO"]}')
        for c in range(4): k(f'buffer_load_dwordx4 {ar(80+16*t+4*c)}, v2, s[8:11], s12 offen offset:{c*KB}')
    k('s_lshl_b32 s54, s46, 12',f's_add_u32 s54, s54, {OFF["QK"]+128*KB}','s_lshl_b32 s55, s46, 13',f's_add_u32 s55, s55, {OFF["VT"]}')
    def pf_k():
        if NOPF and started[0]: return
        for kt in range(2):
            k(f's_add_u32 s12, s54, {kt*256*KB}')
            for ks in range(4): k(f'buffer_load_dwordx4 {ar(112+16*kt+4*ks)}, v2, s[8:11], s12 offen offset:{ks*KB}')
        k(f's_add_u32 s54, s54, {512*KB}')
        if QRING: k('s_bitset0_b32 s54, 22')
    def pf_v():
        if NOPF and started[0]: return
        for hf in range(2):
            k(f's_add_u32 s12, s55, {hf*4096}')
            for e in range(4): k(f'buffer_load_dwordx4 {ar(144+16*hf+4*e)}, v2, s[8:11], s12 offen offset:{e*KB}')
        k(f's_add_u32 s55, s55, {256*KB}')
        if QRING: k('s_bitset0_b32 s55, 21')
    k(f'{L("nowo")}:')
    k(f's_mov_b32 s20, {OFF["XN"]}',f's_mul_i32 s21, s3, {14*KB}','s_mov_b32 s24, 0','s_mov_b32 s25, 0')
    k('s_lshl_b32 s12, s45, 2','s_lshr_b32 s13, s43, 1','s_add_u32 s12, s12, s13','s_lshl_b32 s13, s3, 7','s_add_u32 s12, s12, s13','s_lshl_b32 s12, s12, 10',f's_add_u32 s22, s12, {OFF["QK"]}',
      's_lshl_b32 s12, s45, 3','s_add_u32 s12, s12, s43','s_lshl_b32 s12, s12, 10',f's_add_u32 s23, s12, {OFF["VT"]}',
      's_and_b32 s12, s43, 1','s_lshl_b32 s12, s12, 3','v_add_u32 v42, s12, v2')
    def dma1(i):
        k(f's_add_u32 s12, s21, {i*KB}',f's_min_u32 s12, s12, {39*KB}','s_add_u32 m0, s12, s26','s_add_u32 s12, s12, s20','buffer_load_dwordx4 v2, s[8:11], s12 offen lds')
    def dma_pre(): k('s_and_b32 s26, s25, 1','s_mul_i32 s26, s26, 40960',f's_add_u32 s26, s26, {XB0}')
    def dma_post(): k('s_add_u32 s20, s20, 40960','s_add_u32 s25, s25, 1')
    def tok(dma,tg):
        TX=96; D0=144
        k('s_and_b32 s12, s24, 1','s_mul_i32 s12, s12, 40960',f's_add_u32 s12, s12, {XB0}','v_add_u32 v40, s12, v2')
        if dma: dma_pre()
        seq=[(ks,mt) for ks in range(20) for mt in range(2)]
        rd=lambda n: k(f'ds_read_b128 {vr(TX+4*(n%12))}, v40 offset:{(seq[n][1]*20+seq[n][0])*KB}')
        for n in range(12): rd(n)
        for sw in (0,1):
            if sw==0: k('s_cmp_eq_u32 s3, 2',f's_cbranch_scc1 {L("tv"+tg)}')
            else: k(f'{L("tv"+tg)}:')
            for n,(ks,mt) in enumerate(seq):
                k(f's_waitcnt lgkmcnt({min(11,39-n)})')
                X=vr(TX+4*(n%12)); A,B=(ar(4*ks),X) if sw==0 else (X,ar(4*ks))
                k(f'v_mfma_f32_16x16x32_bf16 {vr(D0+4*mt)}, {A}, {B}, {vr(D0+4*mt) if ks else 0}')
                if n+12<40: rd(n+12)
                if dma and n%2==1 and n//2<14: dma1(n//2)
            k('s_nop 7','s_nop 7')
            for q in range(4): k(f'v_cvt_pk_bf16_f32 v{D0+8+q}, v{D0+2*q}, v{D0+2*q+1}')
            if sw==0:
                k(f'buffer_store_dwordx2 {vr(D0+8,2)}, v42, s[8:11], s22 offen{LS}',f's_add_u32 s12, s22, {256*KB}',f'buffer_store_dwordx2 {vr(D0+10,2)}, v42, s[8:11], s12 offen{LS}',f's_branch {L("te"+tg)}')
            else: k(f'buffer_store_dwordx4 {vr(D0+8)}, v2, s[8:11], s23 offen{LS}',f'{L("te"+tg)}:')
        k(f's_add_u32 s22, s22, {512*KB}',f's_add_u32 s23, s23, {256*KB}','s_add_u32 s24, s24, 1')
        if QRING: k('s_bitset0_b32 s22, 22','s_bitset0_b32 s23, 21')
        if dma: dma_post()
    def window(tg):
        k('s_cmp_gt_u32 s60, 61',f's_cbranch_scc1 {L("wx"+tg)}','s_cmp_eq_u32 s60, 61',f's_cbranch_scc1 {L("wn"+tg)}')
        tok(True,tg+'a')
        k(f's_branch {L("wx"+tg)}',f'{L("wn"+tg)}:')
        tok(False,tg+'b')
        k(f'{L("wx"+tg)}:')
    if TOK:
        k('s_cmp_eq_u32 s3, 3',f's_cbranch_scc1 {L("p1")}')
        for j in range(2):
            dma_pre()
            for i in range(14): dma1(i)
            dma_post()
        k(f'{L("p1")}:','s_waitcnt vmcnt(0)','s_barrier','s_cmp_eq_u32 s3, 3',f's_cbranch_scc1 {L("p2")}')
        tok(False,'p0'); tok(False,'p1')
        k(f'{L("p2")}:','s_waitcnt vmcnt(0)','s_barrier','s_cmp_eq_u32 s3, 3',f's_cbranch_scc1 {L("p3")}')
        dma_pre()
        for i in range(14): dma1(i)
        dma_post()
        k('s_cmp_eq_u32 s3, 0',f's_cbranch_scc0 {L("p3")}')
        k('s_lshl_b32 s12, s40, 2','s_add_u32 s12, s12, 64','v_mov_b32 v44, 1','v_mov_b32 v45, s12','s_mov_b64 exec, 1','buffer_atomic_add v44, v45, s[64:67], 0 offen sc1',
          f's_mov_b32 s61, {SPIN}',f'{L("sy")}:','buffer_load_dword v46, v45, s[64:67], 0 offen sc1','s_waitcnt vmcnt(0)','v_readfirstlane_b32 s12, v46',
          's_sub_u32 s61, s61, 1','s_cmp_eq_u32 s61, 0',f's_cbranch_scc1 {L("sy2")}','s_cmp_lt_u32 s12, 32',f's_cbranch_scc1 {L("sy")}',f'{L("sy2")}:','s_mov_b64 exec, -1')
        k(f'{L("p3")}:','s_barrier')
    k('s_cmp_ge_u32 s41, 20',f's_cbranch_scc1 {L("nopf0")}')
    pf_k(); pf_v()
    started[0]=True
    k(f'{L("nopf0")}:')
    k(f's_mul_i32 s92, s40, 10240',f's_add_u32 s92, s92, {OFF["MEM"]}')
    k(f's_mul_i32 s93, s45, 6144',f's_add_u32 s93, s93, {OFF["QKVM"]}')
    k(f's_mul_i32 s94, s46, 6144',f's_add_u32 s94, s94, {OFF["QKVM"]}')
    k(f's_lshl_b32 s95, s41, 10',f's_add_u32 s95, s95, {OFF["PART"]}')
    TQ=64; TK=96; TKM=128; TV=144; TVM=176; TS=192; TP=204; TO=212
    k('s_sub_u32 s12, s41, 20','s_lshr_b32 s12, s12, 1','s_add_u32 s12, s12, s44','s_and_b32 s91, s41, 1',
      's_lshl_b32 s13, s12, 12','s_lshl_b32 s14, s91, 18','s_add_u32 s68, s13, s14',f's_add_u32 s68, s68, {OFF["QK"]}',f's_add_u32 s69, s13, {OFF["QK"]+128*KB}',
      's_lshl_b32 s70, s12, 13',f's_add_u32 s70, s70, {OFF["VT"]}','s_mul_i32 s71, s12, 6144',f's_add_u32 s71, s71, {OFF["QKVM"]}',
      's_lshl_b32 s14, s91, 17','s_add_u32 s88, s13, s14',f's_add_u32 s88, s88, {OFF["O"]}','s_mov_b32 s89, 0','s_mov_b32 s90, 0')
    def tpf():
        for ks in range(4): k(f'buffer_load_dwordx4 {vr(TQ+4*ks)}, v2, s[8:11], s68 offen offset:{ks*KB}')
        for kt in range(2):
            k(f's_add_u32 s12, s69, {kt*256*KB}')
            for ks in range(4): k(f'buffer_load_dwordx4 {vr(TK+16*kt+4*ks)}, v2, s[8:11], s12 offen offset:{ks*KB}')
        for hf in range(2):
            k(f's_add_u32 s12, s70, {hf*4096}')
            for e in range(4): k(f'buffer_load_dwordx4 {vr(TV+16*hf+4*e)}, v2, s[8:11], s12 offen offset:{e*KB}')
        k(f's_add_u32 s68, s68, {512*KB}',f's_add_u32 s69, s69, {512*KB}',f's_add_u32 s70, s70, {256*KB}')
        if QRING: k('s_bitset0_b32 s68, 22','s_bitset0_b32 s69, 22','s_bitset0_b32 s70, 21')
    if TATT:
        k('s_cmp_eq_u32 s3, 3',f's_cbranch_scc0 {L("not")}','s_cmp_lt_u32 s41, 20',f's_cbranch_scc1 {L("not")}','s_cmp_ge_u32 s41, 28',f's_cbranch_scc1 {L("not")}','s_mov_b32 s90, 1')
        tpf()
        k(f'{L("not")}:')
    k('s_lshr_b32 s12, s43, 1','s_lshl_b32 s12, s12, 9','s_and_b32 s13, s43, 1','s_lshl_b32 s13, s13, 3','s_add_u32 s12, s12, s13','s_lshl_b32 s13, s3, 11','s_add_u32 s12, s12, s13')
    k('s_cmp_eq_u32 s3, 2',f's_cbranch_scc1 {L("vo")}','v_add_u32 v22, s12, v12',f's_branch {L("vo2")}',f'{L("vo")}:','v_add_u32 v22, s12, v14',f'{L("vo2")}:')
    k('s_mov_b32 s60, 0')
    for i in range(48): k(f'v_mov_b32 v{Q+i}, 0')
    for i in range(4): k(f'v_mov_b32 v{ONE+i}, 0x3f803f80')
    k('s_lshl_b32 s62, s3, 10','v_add_u32 v23, s62, v2','s_cmp_eq_u32 s3, 0','s_cselect_b32 s67, 9216, 0','s_waitcnt vmcnt(0)')
    k(f'{L("loop")}:')
    ts(0)
    k(f's_and_b32 s12, s60, {RING-1}',f's_mul_i32 s13, s12, {8*10240}','s_add_u32 s56, s92, s13',f's_mul_i32 s13, s12, {32*6144}','s_add_u32 s57, s93, s13','s_add_u32 s58, s94, s13',
      f's_mul_i32 s13, s12, {8*20*KB}','s_add_u32 s59, s95, s13',f's_add_u32 s47, s60, {WARM}',f's_and_b32 s47, s47, {RING-1}')
    k('s_and_b32 s12, s60, 1','s_mul_i32 s63, s12, 10240',f's_add_u32 s63, s63, {MB0}','v_add_u32 v18, s63, v23')
    if WARM:
        k('s_cmp_eq_u32 s3, 3',f's_cbranch_scc0 {L("nw")}',f's_cmp_gt_u32 s60, {63-WARM}',f's_cbranch_scc1 {L("nw")}')
        k(f's_mul_i32 s12, s47, {32*6144}',f's_mul_i32 s13, s44, 6144','s_add_u32 s12, s12, s13',f's_add_u32 s12, s12, {OFF["QKVM"]}','s_lshl_b32 s13, s41, 10','s_add_u32 s12, s12, s13')
        k(f's_mul_i32 s15, s47, {8*10240}','s_add_u32 s15, s15, s92')
        k(f's_sub_u32 s14, s15, {24*1024}','s_add_u32 s14, s14, s13','s_cmp_lt_u32 s41, 24','s_cselect_b32 s12, s12, s14',
          f'buffer_store_dwordx4 v[56:59], v2, s[8:11], s12 offen{LS}',
          's_add_u32 s14, s15, 8192','s_and_b32 s13, s13, 1024','s_add_u32 s14, s14, s13',f'buffer_store_dwordx4 v[56:59], v2, s[8:11], s14 offen{LS}','s_waitcnt vmcnt(0)')
        k(f'{L("nw")}:')
    k('s_cmp_eq_u32 s3, 3',f's_cbranch_scc1 {L("A3")}')
    k('s_add_u32 s64, s56, 3072','s_add_u32 s65, s56, 6144','s_add_u32 s66, s56, s67')
    def aiss(st):
        b0=M+16*st
        k(f'buffer_load_dwordx4 {vr(b0)}, v23, s[8:11], s56 offen sc1',f'buffer_load_dwordx4 {vr(b0+4)}, v23, s[8:11], s64 offen sc1',
          f'buffer_load_dwordx4 {vr(b0+8)}, v23, s[8:11], s65 offen sc1',f'buffer_load_dwordx4 {vr(b0+12)}, v23, s[8:11], s66 offen sc1')
    if PIPEA: aiss(0)
    k(f's_mov_b32 s61, {SPIN}',f'{L("Ap")}:')
    for st in range(2):
        b0=M+16*st
        aiss(1-st) if PIPEA else aiss(st)
        k('s_waitcnt vmcnt(4)' if PIPEA else 's_waitcnt vmcnt(0)',f'v_max3_u32 v{T}, v{b0}, v{b0+2}, v{b0+4}',f'v_max3_u32 v{T+1}, v{b0+6}, v{b0+8}, v{b0+10}',f'v_max3_u32 v{T}, v{T}, v{b0+12}, v{b0+14}',f'v_max_u32 v{T}, v{T}, v{T+1}')
        k(f'v_cmp_eq_u32 vcc, -1, v{T}','s_sub_u32 s61, s61, 1','s_cmp_eq_u32 s61, 0',f's_cbranch_scc1 {L("Ad%d"%st)}',f's_cbranch_vccz {L("Ad%d"%st)}')
    k(f's_branch {L("Ap")}')
    for st in range(2):
        b0=M+16*st
        k(f'{L("Ad%d"%st)}:',f'ds_write_b128 v18, {vr(b0)}',f'ds_write_b128 v18, {vr(b0+4)} offset:3072',f'ds_write_b128 v18, {vr(b0+8)} offset:6144',
          's_cmp_eq_u32 s3, 0',f's_cbranch_scc0 {L("A3")}',f'ds_write_b128 v18, {vr(b0+12)} offset:9216',f's_branch {L("A3")}')
    k(f'{L("A3")}:')
    if TRACE: k('s_cmp_eq_u32 s3, 3',f's_cbranch_scc1 {L("t4")}',f's_sub_u32 s84, {SPIN}, s61',f'{L("t4")}:')
    k('v_add_u32 v18, s63, v12','s_waitcnt lgkmcnt(0)','s_barrier')
    ts(1)
    k('s_cmp_eq_u32 s3, 3',f's_cbranch_scc1 {L("B")}')
    if TRACE: k('s_waitcnt lgkmcnt(0)')
    for ks in range(12): k(f'ds_read_b128 {vr(MF+4*ks)}, v18 offset:{ks*512}')
    for sw in (0,1):
        if sw==0: k('s_cmp_eq_u32 s3, 2',f's_cbranch_scc1 {L("Av")}')
        else: k(f'{L("Av")}:')
        for ks in range(20):
            k(f's_waitcnt lgkmcnt({min(11,19-ks)})')
            A,B=(ar(4*ks),vr(MF+4*(ks%12))) if sw==0 else (vr(MF+4*(ks%12)),ar(4*ks))
            k(f'v_mfma_f32_16x16x32_bf16 {vr(D)}, {A}, {B}, {vr(D) if ks else 0}')
            if ks+12<20: k(f'ds_read_b128 {vr(MF+4*ks)}, v18 offset:{(ks+12)*512}')
        k('s_nop 7',f'v_cvt_pk_bf16_f32 v{PT}, v{D}, v{D+1}',f'v_cvt_pk_bf16_f32 v{PT+1}, v{D+2}, v{D+3}',f'v_min_u32 v{PT}, v{PT}, v21')
        k(f's_mov_b64 exec, s[{50 if sw==0 else 52}:{51 if sw==0 else 53}]',f'buffer_store_dwordx2 {vr(PT,2)}, v22, s[8:11], s57 offen{LS}','s_mov_b64 exec, -1')
        if sw==0: k(f's_branch {L("B")}')
    k(f'{L("B")}:','s_cmp_ge_u32 s41, 20',f's_cbranch_scc1 {L("hi")}',f's_cmp_eq_u32 s60, {NSTEP-1}',f's_cbranch_scc1 {L("end")}')
    ts(2)
    k(f's_sleep {BSLEEP}') if BSLEEP else None
    k(f's_mov_b32 s61, {SPIN}',f'{L("Bp")}:','s_mov_b64 exec, s[50:51]')
    for ks in range(4): k(f'buffer_load_dwordx4 {vr(Q+4*ks)}, v12, s[8:11], s58 offen offset:{ks*512} sc1')
    for ks in range(4): k(f'buffer_load_dwordx4 {vr(KM+4*ks)}, v12, s[8:11], s58 offen offset:{2048+ks*512} sc1')
    k('s_add_u32 s12, s58, 4096','s_mov_b64 exec, s[52:53]')
    for ep in range(4): k(f'buffer_load_dwordx4 {vr(VM+4*ep)}, v14, s[8:11], s12 offen offset:{ep*512} sc1')
    k('s_mov_b64 exec, -1')
    for i in range(12):
        k(f's_waitcnt vmcnt({11-i})')
        b=Q+4*i
        if i==0: k(f'v_max_u32 v{T}, v{b}, v{b+2}')
        else: k(f'v_max3_u32 v{T}, v{T}, v{b}, v{b+2}')
        if i<4:
            for t in range(2): k(f'v_mfma_f32_16x16x32_bf16 {vr(S+4*t)}, {ar(112+16*t+4*i)}, {vr(Q+4*i)}, {vr(S+4*t) if i else 0}')
        elif i<8:
            k(f'v_mfma_f32_16x16x32_bf16 {vr(S+8)}, {vr(KM+4*(i-4))}, {vr(Q+4*(i-4))}, {vr(S+8) if i>4 else 0}')
    k(f'v_cmp_eq_u32 vcc, -1, v{T}','s_sub_u32 s61, s61, 1','s_cmp_eq_u32 s61, 0',f's_cbranch_scc1 {L("Bd")}',f's_cbranch_vccnz {L("Bp")}',f'{L("Bd")}:')
    ts(3)
    if TRACE: k('s_cmp_eq_u32 s3, 3',f's_cbranch_scc1 {L("t3")}',f's_sub_u32 s82, {SPIN}, s61',f'{L("t3")}:')
    if EARLYK: pf_k()
    vals=[S+i for i in range(12)]
    for i in range(4): k(f'v_add_f32 v{S+8+i}, v{S+8+i}, v{MM}')
    m=T
    k(f'v_max3_f32 v{m}, v{S}, v{S+1}, v{S+2}',f'v_max3_f32 v{m+1}, v{S+3}, v{S+4}, v{S+5}',f'v_max3_f32 v{m}, v{m}, v{S+6}, v{S+7}',f'v_max3_f32 v{m+1}, v{m+1}, v{S+8}, v{S+9}',
      f'v_max3_f32 v{m}, v{m}, v{S+10}, v{S+11}',f'v_max_f32 v{m}, v{m}, v{m+1}')
    xred(k,'v_max_f32',m,T+1)
    k(f'v_mul_f32 v{m}, 0x{CS:x}, v{m}',f's_mov_b32 s39, 0x{CS:x}')
    for v in vals: k(f'v_fma_f32 v{v}, v{v}, s39, -v{m}')
    for v in vals: k(f'v_exp_f32 v{v}, v{v}')
    k('s_nop 0')
    for t in range(3): k(f'v_cvt_pk_bf16_f32 v{P+2*t}, v{S+4*t}, v{S+4*t+1}',f'v_cvt_pk_bf16_f32 v{P+2*t+1}, v{S+4*t+2}, v{S+4*t+3}')
    k('s_nop 1')
    def pv1(et): k(f'v_mfma_f32_16x16x32_bf16 {vr(O+4*et)}, {ar(144+4*et)}, {vr(P)}, 0')
    def pv2(et): k(f'v_mfma_f32_16x16x16_bf16 {vr(O+4*et)}, {vr(VM+2*et,2)}, {vr(P+4,2)}, {vr(O+4*et)}')
    def cv(c):
        r0=O+8*c; t=OB+4*c
        k(f'v_cvt_pk_bf16_f32 v{t}, v{r0}, v{r0+1}',f'v_cvt_pk_bf16_f32 v{t+1}, v{r0+2}, v{r0+3}',
          f'v_cvt_pk_bf16_f32 v{t+2}, v{r0+4}, v{r0+5}',f'v_cvt_pk_bf16_f32 v{t+3}, v{r0+6}, v{r0+7}')
    def wo(c):
        for t in range(2): k(f'v_mfma_f32_16x16x32_bf16 {vr(D+4*t)}, {ar(80+16*t+4*c)}, {vr(OB+4*c)}, {vr(D+4*t) if c else 0}')
    for et in range(8): pv1(et)
    k(f'v_mfma_f32_16x16x32_bf16 {vr(SM)}, {vr(ONE)}, {vr(P)}, 0')
    for et in range(8): pv2(et)
    k(f'v_mfma_f32_16x16x16_bf16 {vr(SM)}, {vr(ONE,2)}, {vr(P+4,2)}, {vr(SM)}')
    k('s_nop 1'); cv(0); cv(1); wo(0); cv(2); wo(1); k(f'v_rcp_f32 v{T}, v{SM}'); cv(3); wo(2); k('s_nop 0'); wo(3)
    k('s_nop 7')
    for i in range(8): k(f'v_mul_f32 v{D+i}, v{D+i}, v{T}')
    k('s_and_b32 s12, s60, 1','s_lshl_b32 s12, s12, 13','s_lshl_b32 s13, s3, 11','s_add_u32 s13, s13, s12','v_add_u32 v18, s13, v2')
    k(f'ds_write_b128 v18, {vr(D)}',f'ds_write_b128 v18, {vr(D+4)} offset:1024','s_waitcnt lgkmcnt(0)','s_barrier')
    ts(4)
    k('s_cmp_eq_u32 s3, 3',f's_cbranch_scc0 {L("pf")}')
    k('v_add_u32 v18, s12, v16')
    for hh in range(4): k(f'ds_read_b128 {vr(M+4*hh)}, v18 offset:{hh*2048}')
    k('s_waitcnt lgkmcnt(0)')
    for q in range(4): k(f'v_add_f32 v{M+q}, v{M+q}, v{M+4+q}',f'v_add_f32 v{M+8+q}, v{M+8+q}, v{M+12+q}',f'v_add_f32 v{M+q}, v{M+q}, v{M+8+q}')
    k(f'v_min_u32 v{M}, v{M}, v21',f's_mul_i32 s12, s40, {20*KB}','s_add_u32 s12, s12, s59',f'buffer_store_dwordx4 {vr(M)}, v2, s[8:11], s12 offen sc1')
    ts(5)
    k('s_add_u32 s48, s60, 1',f's_and_b32 s48, s48, {RING-1}',f's_mul_i32 s48, s48, {8*10240}','s_add_u32 s48, s48, s92')
    if not EARLYK: pf_k()
    pf_v()
    if CSLEEP: k(f's_sleep {CSLEEP}')
    def ciss(st):
        k('s_mov_b32 s12, s59')
        for x in range(8): k(f'buffer_load_dwordx4 {vr(M+16+32*st+4*x)}, v2, s[8:11], s12 offen sc1',f's_add_u32 s12, s12, {20*KB}')
    if PIPE: ciss(0)
    k(f's_mov_b32 s61, {SPIN}',f'{L("Cp")}:')
    for st in range(2):
        b=M+16+32*st
        ciss(1-st) if PIPE else ciss(st)
        k('s_waitcnt vmcnt(8)' if PIPE else 's_waitcnt vmcnt(0)')
        k(f'v_max3_u32 v{T}, v{b}, v{b+4}, v{b+8}',f'v_max3_u32 v{T+1}, v{b+12}, v{b+16}, v{b+20}',f'v_max3_u32 v{T}, v{T}, v{b+24}, v{b+28}',f'v_max_u32 v{T}, v{T}, v{T+1}')
        k(f'v_cmp_eq_u32 vcc, -1, v{T}','s_sub_u32 s61, s61, 1','s_cmp_eq_u32 s61, 0',f's_cbranch_scc1 {L("Cd%d"%st)}',f's_cbranch_vccz {L("Cd%d"%st)}')
    k(f's_branch {L("Cp")}')
    for st in range(2):
        b=M+16+32*st
        k(f'{L("Cd%d"%st)}:')
        ts(6)
        for q in range(4):
            k(f'v_add_f32 v{b+q}, v{b+q}, v{b+4+q}',f'v_add_f32 v{b+8+q}, v{b+8+q}, v{b+12+q}',f'v_add_f32 v{b+16+q}, v{b+16+q}, v{b+20+q}',f'v_add_f32 v{b+24+q}, v{b+24+q}, v{b+28+q}',
              f'v_add_f32 v{b+q}, v{b+q}, v{b+8+q}',f'v_add_f32 v{b+16+q}, v{b+16+q}, v{b+24+q}',f'v_add_f32 v{b+q}, v{b+q}, v{b+16+q}')
        k(f'v_cvt_pk_bf16_f32 v{PT}, v{b}, v{b+1}',f'v_cvt_pk_bf16_f32 v{PT+1}, v{b+2}, v{b+3}',f'v_min_u32 v{PT}, v{PT}, v21')
        if st==0: k(f's_branch {L("Ce")}')
    k(f'{L("Ce")}:')
    k('s_lshl_b32 s12, s41, 9','s_add_u32 s12, s12, s48',f'buffer_store_dwordx2 {vr(PT,2)}, v17, s[8:11], s12 offen{LS}')
    k(f's_branch {L("next")}',f'{L("pf")}:')
    if PSLEEP: k(f's_sleep {PSLEEP}')
    if WARM and PFILL:
        k('s_cmp_eq_u32 s3, 0',f's_cbranch_scc0 {L("npf")}',f's_cmp_gt_u32 s60, {63-WARM}',f's_cbranch_scc1 {L("npf")}',
          f's_mul_i32 s12, s40, {20*KB}','s_add_u32 s12, s12, s95',f's_mul_i32 s13, s47, {8*20*KB}','s_add_u32 s12, s12, s13','buffer_store_dwordx4 v[56:59], v2, s[8:11], s12 offen sc1',f'{L("npf")}:')
    if not EARLYK: pf_k()
    pf_v()
    if TOK: window('lo')
    k(f'{L("next")}:')
    if TRACE:
        ts(7)
        k('s_waitcnt lgkmcnt(0)')
        k('s_lshl_b32 s12, s40, 5','s_add_u32 s12, s12, s41','s_lshl_b32 s12, s12, 2','s_add_u32 s12, s12, s3','s_lshl_b32 s12, s12, 11','s_lshl_b32 s13, s60, 5','s_add_u32 s12, s12, s13',f's_add_u32 s12, s12, {OFF["TR"]}')
        for i in range(8): k(f'v_mov_b32 v{24+i}, s{72+2*i}')
        k('v_mov_b32 v32, 0','s_mov_b64 exec, 1','buffer_store_dwordx4 v[24:27], v32, s[8:11], s12 offen','buffer_store_dwordx4 v[28:31], v32, s[8:11], s12 offen offset:16','s_mov_b64 exec, -1')
    k('s_add_u32 s60, s60, 1',f's_branch {L("loop")}')
    k(f'{L("end")}:','s_endpgm')
    k(f'{L("hi")}:')
    if TOK:
        k('s_cmp_eq_u32 s3, 3',f's_cbranch_scc1 {L("hi3")}')
        if HSLEEP: k(f's_sleep {HSLEEP}')
        window('hi')
        k(f's_branch {L("hid")}',f'{L("hi3")}:')
    if TATT:
        k('s_cmp_eq_u32 s90, 0',f's_cbranch_scc1 {L("hid")}','s_cmp_eq_u32 s60, 0',f's_cbranch_scc1 {L("hid")}')
        k(f'{L("tl")}:',f's_mov_b32 s61, {SPIN}',f's_and_b32 s49, s89, {RING-1}',f's_mul_i32 s49, s49, {32*6144}','s_add_u32 s49, s49, s71',f'{L("tp")}:')
        for ks in range(4): k(f'buffer_load_dwordx4 {vr(TKM+4*ks)}, v12, s[8:11], s49 offen offset:{2048+ks*512} sc1')
        k('s_add_u32 s12, s49, 4096')
        for ep in range(4): k(f'buffer_load_dwordx4 {vr(TVM+4*ep)}, v14, s[8:11], s12 offen offset:{ep*512} sc1')
        k('s_waitcnt vmcnt(0)')
        regs=[TKM+4*i for i in range(4)]+[TVM+4*i for i in range(4)]
        for i,b in enumerate(regs):
            if i==0: k(f'v_max_u32 v{T}, v{b}, v{b+2}')
            else: k(f'v_max3_u32 v{T}, v{T}, v{b}, v{b+2}')
        k(f'v_cmp_eq_u32 vcc, -1, v{T}','s_sub_u32 s61, s61, 1','s_cmp_eq_u32 s61, 0',f's_cbranch_scc1 {L("td")}',f's_cbranch_vccnz {L("tp")}',f'{L("td")}:')
        k('s_cmp_eq_u32 s91, 0',f's_cbranch_scc0 {L("tq1")}')
        attn_core(k,TQ,TK,TKM,TV,TVM,TS,TP,TO,T,[0],0,MB,MM)
        k(f's_branch {L("tq2")}',f'{L("tq1")}:')
        attn_core(k,TQ,TK,TKM,TV,TVM,TS,TP,TO,T,[0,1],1,MB,MM)
        k(f'{L("tq2")}:')
        for c in range(4):
            r0=TO+8*c; t=TKM+4*c
            k(f'v_cvt_pk_bf16_f32 v{t}, v{r0}, v{r0+1}',f'v_cvt_pk_bf16_f32 v{t+1}, v{r0+2}, v{r0+3}',
              f'v_cvt_pk_bf16_f32 v{t+2}, v{r0+4}, v{r0+5}',f'v_cvt_pk_bf16_f32 v{t+3}, v{r0+6}, v{r0+7}',
              f'buffer_store_dwordx4 {vr(t)}, v2, s[8:11], s88 offen offset:{c*KB}')
        k(f's_add_u32 s88, s88, {256*KB}','s_add_u32 s89, s89, 1','s_cmp_ge_u32 s89, 64',f's_cbranch_scc1 {L("end")}')
        tpf()
        k(f's_cmp_eq_u32 s60, {NSTEP-1}',f's_cbranch_scc1 {L("tl")}')
    k(f'{L("hid")}:',f's_cmp_eq_u32 s60, {NSTEP-1}',f's_cbranch_scc1 {L("end")}',f's_branch {L("next")}')
def gen_chain(use_fast=False):
    k=K('chain_kernel',vgpr=248,agpr=176,sgpr=96)
    k('s_cmp_ge_u32 s2, 256','s_cbranch_scc1 chain_done')
    k.srd(8,'ws',WS_BYTES)
    k('v_lshrrev_b32 v1, 6, v0','s_nop 0','v_readfirstlane_b32 s3, v1','v_and_b32 v0, 63, v0','v_lshlrev_b32 v2, 4, v0')
    if use_fast:
        k.srd(64,'dbg',256)
        k('s_getreg_b32 s40, hwreg(HW_REG_XCC_ID)','s_and_b32 s40, s40, 7')
        k('s_cmp_eq_u32 s3, 0','s_cbranch_scc0 ch_reg_wait')
        k('v_mov_b32 v4, 1','s_lshl_b32 s12, s40, 2','v_mov_b32 v5, s12','s_mov_b64 exec, 1',
          'buffer_atomic_add v4, v5, s[64:67], 0 offen sc0 sc1','s_waitcnt vmcnt(0)',
          'v_mov_b32 v6, 1','v_mov_b32 v7, 32','buffer_atomic_add v6, v7, s[64:67], 0 offen sc0 sc1','s_waitcnt vmcnt(0)',
          's_mov_b64 exec, -1')
        k(f's_mov_b32 s61, {SPIN}','v_lshlrev_b32 v8, 2, v0','ch_reg_poll:','buffer_load_dword v9, v8, s[64:67], 0 offen sc1','s_waitcnt vmcnt(0)',
          'v_readlane_b32 s12, v9, 8','s_sub_u32 s61, s61, 1','s_cmp_eq_u32 s61, 0','s_cbranch_scc1 ch_reg_got','s_cmp_lt_u32 s12, 256','s_cbranch_scc1 ch_reg_poll','ch_reg_got:')
        k('v_cmp_ne_u32 vcc, 32, v9','s_nop 1','s_and_b32 s12, vcc_lo, 0xff','v_readfirstlane_b32 s13, v4','v_readfirstlane_b32 s14, v6',
          's_cmp_eq_u32 s12, 0','s_cselect_b32 s15, 1, 0',
          'v_mov_b32 v11, s13','v_mov_b32 v12, s14','v_mov_b32 v10, s15','v_mov_b32 v8, 16384','ds_write_b96 v8, v[10:12]','s_waitcnt lgkmcnt(0)')
        k('ch_reg_wait:','s_barrier','v_mov_b32 v8, 16384','ds_read_b96 v[12:14], v8','s_waitcnt lgkmcnt(0)',
          'v_readfirstlane_b32 s15, v12','v_readfirstlane_b32 s41, v13','v_readfirstlane_b32 s14, v14','s_cmp_eq_u32 s15, 1','s_cbranch_scc0 ch_slow')
        chain_body(k,True,'f')
        k('ch_slow:','s_lshr_b32 s40, s14, 5','s_and_b32 s41, s14, 31')
    else:
        k('s_lshr_b32 s40, s2, 5','s_and_b32 s41, s2, 31')
    chain_body(k,False,'s')
    k('chain_done:')
    return k,(XB0+81920 if TOK else 16448+20480)
```

```python
from common import *
from attn import *
NSTEP=64
SPIN=1<<16
TRACE=False
CSLEEP=0
NOPF=0
PSLEEP=0
WARM=2
PIPE=0
PIPEA=0
BSLEEP=4
TATT=1
W3DMA=16
EARLYK=1
QRING=1
TOK=1
HSLEEP=32
XB0=40960
RING=8
PFILL=1
def chain_body(k, fast, tag):
    def ts(i):
        if TRACE: k(f's_memtime s[{72+2*i}:{73+2*i}]')
    LS='' if fast else ' sc1'
    started=[False]
    M=64; Q=192; KM=208; VM=224; S=112; P=124; O=132; T=8; MM=3; OB=164; D=180; PT=188; ONE=240; SM=244; MB0=16448; MF=96
    L=lambda n: f'ch_{tag}_{n}'
    MB=36
    lane_consts(k,MB,MM,T)
    k('v_and_b32 v12, 7, v0','v_lshrrev_b32 v13, 4, v0','v_lshlrev_b32 v12, 4, v12','v_lshl_add_u32 v12, v13, 7, v12')
    k('v_and_b32 v14, 15, v0','v_and_b32 v15, 1, v13','v_lshlrev_b32 v14, 4, v14','v_lshl_add_u32 v14, v15, 8, v14')
    k('v_lshrrev_b32 v18, 5, v0','v_bfe_u32 v19, v0, 3, 2','v_and_b32 v20, 7, v0',
      'v_lshlrev_b32 v16, 10, v18','v_lshl_add_u32 v16, v19, 8, v16','v_lshl_add_u32 v16, v20, 4, v16',
      'v_lshlrev_b32 v17, 7, v19','v_lshl_add_u32 v17, v20, 4, v17','v_lshl_add_u32 v17, v18, 3, v17')
    k('v_mov_b32 v21, -2')
    for i in range(4): k(f'v_mov_b32 v{56+i}, -1')
    k('v_and_b32 v18, 8, v0','v_cmp_eq_u32 s[50:51], 0, v18','s_mov_b32 s52, -1','s_mov_b32 s53, 0')
    k('s_lshr_b32 s42, s41, 3','s_and_b32 s43, s41, 7','s_lshl_b32 s44, s40, 2','s_add_u32 s45, s44, s42')
    k('s_cmp_eq_u32 s3, 3',f's_cbranch_scc1 {L("nowa")}')
    k('s_lshl_b32 s12, s3, 8','s_lshl_b32 s13, s45, 3','s_add_u32 s12, s12, s13','s_add_u32 s12, s12, s43',f's_mul_i32 s12, s12, {20*KB}',f's_add_u32 s12, s12, {OFF["WQKV"]}')
    for ks in range(20):
        if ks%4==0 and ks: k('s_add_u32 s12, s12, 4096')
        k(f'buffer_load_dwordx4 {ar(4*ks)}, v2, s[8:11], s12 offen offset:{(ks%4)*KB}')
    k(f'{L("nowa")}:')
    k('s_add_u32 s46, s44, s3')
    k('s_cmp_ge_u32 s41, 20',f's_cbranch_scc1 {L("nowo")}')
    for t in range(2):
        k('s_lshl_b32 s12, s41, 1',f's_add_u32 s12, s12, {t}','s_lshl_b32 s12, s12, 7','s_lshl_b32 s13, s46, 2','s_add_u32 s12, s12, s13','s_lshl_b32 s12, s12, 10',f's_add_u32 s12, s12, {OFF["WO"]}')
        for c in range(4): k(f'buffer_load_dwordx4 {ar(80+16*t+4*c)}, v2, s[8:11], s12 offen offset:{c*KB}')
    k('s_lshl_b32 s54, s46, 12',f's_add_u32 s54, s54, {OFF["QK"]+128*KB}','s_lshl_b32 s55, s46, 13',f's_add_u32 s55, s55, {OFF["VT"]}')
    def pf_k():
        if NOPF and started[0]: return
        for kt in range(2):
            k(f's_add_u32 s12, s54, {kt*256*KB}')
            for ks in range(4): k(f'buffer_load_dwordx4 {ar(112+16*kt+4*ks)}, v2, s[8:11], s12 offen offset:{ks*KB}')
        k(f's_add_u32 s54, s54, {512*KB}')
        if QRING: k('s_bitset0_b32 s54, 22')
    def pf_v():
        if NOPF and started[0]: return
        for hf in range(2):
            k(f's_add_u32 s12, s55, {hf*4096}')
            for e in range(4): k(f'buffer_load_dwordx4 {ar(144+16*hf+4*e)}, v2, s[8:11], s12 offen offset:{e*KB}')
        k(f's_add_u32 s55, s55, {256*KB}')
        if QRING: k('s_bitset0_b32 s55, 21')
    k(f'{L("nowo")}:')
    k(f's_mov_b32 s20, {OFF["XN"]}',f's_mul_i32 s21, s3, {14*KB}','s_mov_b32 s24, 0','s_mov_b32 s25, 0')
    k('s_lshl_b32 s12, s45, 2','s_lshr_b32 s13, s43, 1','s_add_u32 s12, s12, s13','s_lshl_b32 s13, s3, 7','s_add_u32 s12, s12, s13','s_lshl_b32 s12, s12, 10',f's_add_u32 s22, s12, {OFF["QK"]}',
      's_lshl_b32 s12, s45, 3','s_add_u32 s12, s12, s43','s_lshl_b32 s12, s12, 10',f's_add_u32 s23, s12, {OFF["VT"]}',
      's_and_b32 s12, s43, 1','s_lshl_b32 s12, s12, 3','v_add_u32 v42, s12, v2')
    def dma1(i,b='s21'):
        k(f's_add_u32 s12, {b}, {i*KB}',f's_min_u32 s12, s12, {39*KB}','s_add_u32 m0, s12, s26','s_add_u32 s12, s12, s20','buffer_load_dwordx4 v2, s[8:11], s12 offen lds')
    def dma_pre(): k('s_and_b32 s26, s25, 1','s_mul_i32 s26, s26, 40960',f's_add_u32 s26, s26, {XB0}')
    def dma_post(): k('s_add_u32 s20, s20, 40960','s_add_u32 s25, s25, 1')
    def tok(dma,tg):
        TX=96; D0=144
        k('s_and_b32 s12, s24, 1','s_mul_i32 s12, s12, 40960',f's_add_u32 s12, s12, {XB0}','v_add_u32 v40, s12, v2')
        if dma: dma_pre()
        nd=14 if dma!=2 else (40-W3DMA+2)//3
        if dma==2: k(f's_mul_i32 s27, s3, {nd*KB}',f's_add_u32 s27, s27, {W3DMA*KB}')
        seq=[(ks,mt) for ks in range(20) for mt in range(2)]
        rd=lambda n: k(f'ds_read_b128 {vr(TX+4*(n%12))}, v40 offset:{(seq[n][1]*20+seq[n][0])*KB}')
        for n in range(12): rd(n)
        for sw in (0,1):
            if sw==0: k('s_cmp_eq_u32 s3, 2',f's_cbranch_scc1 {L("tv"+tg)}')
            else: k(f'{L("tv"+tg)}:')
            for n,(ks,mt) in enumerate(seq):
                k(f's_waitcnt lgkmcnt({min(11,39-n)})')
                X=vr(TX+4*(n%12)); A,B=(ar(4*ks),X) if sw==0 else (X,ar(4*ks))
                k(f'v_mfma_f32_16x16x32_bf16 {vr(D0+4*mt)}, {A}, {B}, {vr(D0+4*mt) if ks else 0}')
                if n+12<40: rd(n+12)
                if dma and n%2==1 and n//2<nd: dma1(n//2,'s27' if dma==2 else 's21')
            k('s_nop 7','s_nop 7')
            for q in range(4): k(f'v_cvt_pk_bf16_f32 v{D0+8+q}, v{D0+2*q}, v{D0+2*q+1}')
            if sw==0:
                k(f'buffer_store_dwordx2 {vr(D0+8,2)}, v42, s[8:11], s22 offen{LS}',f's_add_u32 s12, s22, {256*KB}',f'buffer_store_dwordx2 {vr(D0+10,2)}, v42, s[8:11], s12 offen{LS}',f's_branch {L("te"+tg)}')
            else: k(f'buffer_store_dwordx4 {vr(D0+8)}, v2, s[8:11], s23 offen{LS}',f'{L("te"+tg)}:')
        k(f's_add_u32 s22, s22, {512*KB}',f's_add_u32 s23, s23, {256*KB}','s_add_u32 s24, s24, 1')
        if QRING: k('s_bitset0_b32 s22, 22','s_bitset0_b32 s23, 21')
        if dma: dma_post()
    def window(tg):
        k('s_cmp_gt_u32 s60, 61',f's_cbranch_scc1 {L("wx"+tg)}','s_cmp_eq_u32 s60, 61',f's_cbranch_scc1 {L("wn"+tg)}')
        tok(2 if (W3DMA and tg=='lo') else True,tg+'a')
        k(f's_branch {L("wx"+tg)}',f'{L("wn"+tg)}:')
        tok(False,tg+'b')
        k(f'{L("wx"+tg)}:')
    if TOK:
        k('s_cmp_eq_u32 s3, 3',f's_cbranch_scc1 {L("p1")}')
        for j in range(2):
            dma_pre()
            for i in range(14): dma1(i)
            dma_post()
        k(f'{L("p1")}:','s_waitcnt vmcnt(0)','s_barrier','s_cmp_eq_u32 s3, 3',f's_cbranch_scc1 {L("p2")}')
        tok(False,'p0'); tok(False,'p1')
        k(f'{L("p2")}:','s_waitcnt vmcnt(0)','s_barrier','s_cmp_eq_u32 s3, 3',f's_cbranch_scc1 {L("p3")}')
        dma_pre()
        for i in range(14): dma1(i)
        dma_post()
        k('s_cmp_eq_u32 s3, 0',f's_cbranch_scc0 {L("p3")}')
        k('s_lshl_b32 s12, s40, 2','s_add_u32 s12, s12, 64','v_mov_b32 v44, 1','v_mov_b32 v45, s12','s_mov_b64 exec, 1','buffer_atomic_add v44, v45, s[64:67], 0 offen sc1',
          f's_mov_b32 s61, {SPIN}',f'{L("sy")}:','buffer_load_dword v46, v45, s[64:67], 0 offen sc1','s_waitcnt vmcnt(0)','v_readfirstlane_b32 s12, v46',
          's_sub_u32 s61, s61, 1','s_cmp_eq_u32 s61, 0',f's_cbranch_scc1 {L("sy2")}','s_cmp_lt_u32 s12, 32',f's_cbranch_scc1 {L("sy")}',f'{L("sy2")}:','s_mov_b64 exec, -1')
        k(f'{L("p3")}:','s_barrier')
    k('s_cmp_ge_u32 s41, 20',f's_cbranch_scc1 {L("nopf0")}')
    pf_k(); pf_v()
    started[0]=True
    k(f'{L("nopf0")}:')
    k(f's_mul_i32 s92, s40, 10240',f's_add_u32 s92, s92, {OFF["MEM"]}')
    k(f's_mul_i32 s93, s45, 6144',f's_add_u32 s93, s93, {OFF["QKVM"]}')
    k(f's_mul_i32 s94, s46, 6144',f's_add_u32 s94, s94, {OFF["QKVM"]}')
    k(f's_lshl_b32 s95, s41, 10',f's_add_u32 s95, s95, {OFF["PART"]}')
    TQ=64; TK=96; TKM=128; TV=144; TVM=176; TS=192; TP=204; TO=212
    k('s_sub_u32 s12, s41, 20','s_lshr_b32 s12, s12, 1','s_add_u32 s12, s12, s44','s_and_b32 s91, s41, 1',
      's_lshl_b32 s13, s12, 12','s_lshl_b32 s14, s91, 18','s_add_u32 s68, s13, s14',f's_add_u32 s68, s68, {OFF["QK"]}',f's_add_u32 s69, s13, {OFF["QK"]+128*KB}',
      's_lshl_b32 s70, s12, 13',f's_add_u32 s70, s70, {OFF["VT"]}','s_mul_i32 s71, s12, 6144',f's_add_u32 s71, s71, {OFF["QKVM"]}',
      's_lshl_b32 s14, s91, 17','s_add_u32 s88, s13, s14',f's_add_u32 s88, s88, {OFF["O"]}','s_mov_b32 s89, 0','s_mov_b32 s90, 0')
    def tpf():
        for ks in range(4): k(f'buffer_load_dwordx4 {vr(TQ+4*ks)}, v2, s[8:11], s68 offen offset:{ks*KB}')
        for kt in range(2):
            k(f's_add_u32 s12, s69, {kt*256*KB}')
            for ks in range(4): k(f'buffer_load_dwordx4 {vr(TK+16*kt+4*ks)}, v2, s[8:11], s12 offen offset:{ks*KB}')
        for hf in range(2):
            k(f's_add_u32 s12, s70, {hf*4096}')
            for e in range(4): k(f'buffer_load_dwordx4 {vr(TV+16*hf+4*e)}, v2, s[8:11], s12 offen offset:{e*KB}')
        k(f's_add_u32 s68, s68, {512*KB}',f's_add_u32 s69, s69, {512*KB}',f's_add_u32 s70, s70, {256*KB}')
        if QRING: k('s_bitset0_b32 s68, 22','s_bitset0_b32 s69, 22','s_bitset0_b32 s70, 21')
    if TATT:
        k('s_cmp_eq_u32 s3, 3',f's_cbranch_scc0 {L("not")}','s_cmp_lt_u32 s41, 20',f's_cbranch_scc1 {L("not")}','s_cmp_ge_u32 s41, 28',f's_cbranch_scc1 {L("not")}','s_mov_b32 s90, 1')
        tpf()
        k(f'{L("not")}:')
    k('s_lshr_b32 s12, s43, 1','s_lshl_b32 s12, s12, 9','s_and_b32 s13, s43, 1','s_lshl_b32 s13, s13, 3','s_add_u32 s12, s12, s13','s_lshl_b32 s13, s3, 11','s_add_u32 s12, s12, s13')
    k('s_cmp_eq_u32 s3, 2',f's_cbranch_scc1 {L("vo")}','v_add_u32 v22, s12, v12',f's_branch {L("vo2")}',f'{L("vo")}:','v_add_u32 v22, s12, v14',f'{L("vo2")}:')
    k('s_mov_b32 s60, 0')
    for i in range(48): k(f'v_mov_b32 v{Q+i}, 0')
    for i in range(4): k(f'v_mov_b32 v{ONE+i}, 0x3f803f80')
    k('s_lshl_b32 s62, s3, 10','v_add_u32 v23, s62, v2','s_cmp_eq_u32 s3, 0','s_cselect_b32 s67, 9216, 0','s_waitcnt vmcnt(0)')
    k(f'{L("loop")}:')
    ts(0)
    k(f's_and_b32 s12, s60, {RING-1}',f's_mul_i32 s13, s12, {8*10240}','s_add_u32 s56, s92, s13',f's_mul_i32 s13, s12, {32*6144}','s_add_u32 s57, s93, s13','s_add_u32 s58, s94, s13',
      f's_mul_i32 s13, s12, {8*20*KB}','s_add_u32 s59, s95, s13',f's_add_u32 s47, s60, {WARM}',f's_and_b32 s47, s47, {RING-1}')
    k('s_and_b32 s12, s60, 1','s_mul_i32 s63, s12, 10240',f's_add_u32 s63, s63, {MB0}','v_add_u32 v18, s63, v23')
    if WARM:
        k('s_cmp_eq_u32 s3, 3',f's_cbranch_scc0 {L("nw")}',f's_cmp_gt_u32 s60, {63-WARM}',f's_cbranch_scc1 {L("nw")}')
        k(f's_mul_i32 s12, s47, {32*6144}',f's_mul_i32 s13, s44, 6144','s_add_u32 s12, s12, s13',f's_add_u32 s12, s12, {OFF["QKVM"]}','s_lshl_b32 s13, s41, 10','s_add_u32 s12, s12, s13')
        k(f's_mul_i32 s15, s47, {8*10240}','s_add_u32 s15, s15, s92')
        k(f's_sub_u32 s14, s15, {24*1024}','s_add_u32 s14, s14, s13','s_cmp_lt_u32 s41, 24','s_cselect_b32 s12, s12, s14',
          f'buffer_store_dwordx4 v[56:59], v2, s[8:11], s12 offen{LS}',
          's_add_u32 s14, s15, 8192','s_and_b32 s13, s13, 1024','s_add_u32 s14, s14, s13',f'buffer_store_dwordx4 v[56:59], v2, s[8:11], s14 offen{LS}','s_waitcnt vmcnt(0)')
        k(f'{L("nw")}:')
    k('s_cmp_eq_u32 s3, 3',f's_cbranch_scc1 {L("A3")}')
    k('s_add_u32 s64, s56, 3072','s_add_u32 s65, s56, 6144','s_add_u32 s66, s56, s67')
    def aiss(st):
        b0=M+16*st
        k(f'buffer_load_dwordx4 {vr(b0)}, v23, s[8:11], s56 offen sc1',f'buffer_load_dwordx4 {vr(b0+4)}, v23, s[8:11], s64 offen sc1',
          f'buffer_load_dwordx4 {vr(b0+8)}, v23, s[8:11], s65 offen sc1',f'buffer_load_dwordx4 {vr(b0+12)}, v23, s[8:11], s66 offen sc1')
    if PIPEA: aiss(0)
    k(f's_mov_b32 s61, {SPIN}',f'{L("Ap")}:')
    for st in range(2):
        b0=M+16*st
        aiss(1-st) if PIPEA else aiss(st)
        k('s_waitcnt vmcnt(4)' if PIPEA else 's_waitcnt vmcnt(0)',f'v_max3_u32 v{T}, v{b0}, v{b0+2}, v{b0+4}',f'v_max3_u32 v{T+1}, v{b0+6}, v{b0+8}, v{b0+10}',f'v_max3_u32 v{T}, v{T}, v{b0+12}, v{b0+14}',f'v_max_u32 v{T}, v{T}, v{T+1}')
        k(f'v_cmp_eq_u32 vcc, -1, v{T}','s_sub_u32 s61, s61, 1','s_cmp_eq_u32 s61, 0',f's_cbranch_scc1 {L("Ad%d"%st)}',f's_cbranch_vccz {L("Ad%d"%st)}')
    k(f's_branch {L("Ap")}')
    for st in range(2):
        b0=M+16*st
        k(f'{L("Ad%d"%st)}:',f'ds_write_b128 v18, {vr(b0)}',f'ds_write_b128 v18, {vr(b0+4)} offset:3072',f'ds_write_b128 v18, {vr(b0+8)} offset:6144',
          's_cmp_eq_u32 s3, 0',f's_cbranch_scc0 {L("A3")}',f'ds_write_b128 v18, {vr(b0+12)} offset:9216',f's_branch {L("A3")}')
    k(f'{L("A3")}:')
    if TRACE: k('s_cmp_eq_u32 s3, 3',f's_cbranch_scc1 {L("t4")}',f's_sub_u32 s84, {SPIN}, s61',f'{L("t4")}:')
    k('v_add_u32 v18, s63, v12','s_waitcnt lgkmcnt(0)','s_barrier')
    ts(1)
    k('s_cmp_eq_u32 s3, 3',f's_cbranch_scc1 {L("B")}')
    if TRACE: k('s_waitcnt lgkmcnt(0)')
    for ks in range(12): k(f'ds_read_b128 {vr(MF+4*ks)}, v18 offset:{ks*512}')
    for sw in (0,1):
        if sw==0: k('s_cmp_eq_u32 s3, 2',f's_cbranch_scc1 {L("Av")}')
        else: k(f'{L("Av")}:')
        for ks in range(20):
            k(f's_waitcnt lgkmcnt({min(11,19-ks)})')
            A,B=(ar(4*ks),vr(MF+4*(ks%12))) if sw==0 else (vr(MF+4*(ks%12)),ar(4*ks))
            k(f'v_mfma_f32_16x16x32_bf16 {vr(D)}, {A}, {B}, {vr(D) if ks else 0}')
            if ks+12<20: k(f'ds_read_b128 {vr(MF+4*ks)}, v18 offset:{(ks+12)*512}')
        k('s_nop 7',f'v_cvt_pk_bf16_f32 v{PT}, v{D}, v{D+1}',f'v_cvt_pk_bf16_f32 v{PT+1}, v{D+2}, v{D+3}',f'v_min_u32 v{PT}, v{PT}, v21')
        k(f's_mov_b64 exec, s[{50 if sw==0 else 52}:{51 if sw==0 else 53}]',f'buffer_store_dwordx2 {vr(PT,2)}, v22, s[8:11], s57 offen{LS}','s_mov_b64 exec, -1')
        if sw==0: k(f's_branch {L("B")}')
    k(f'{L("B")}:','s_cmp_ge_u32 s41, 20',f's_cbranch_scc1 {L("hi")}',f's_cmp_eq_u32 s60, {NSTEP-1}',f's_cbranch_scc1 {L("end")}')
    ts(2)
    if TOK and W3DMA:
        k('s_cmp_eq_u32 s3, 3',f's_cbranch_scc0 {L("bsl")}','s_cmp_gt_u32 s60, 60',f's_cbranch_scc1 {L("bsl")}',
          's_add_u32 s25, s60, 3','s_mul_i32 s20, s25, 40960',f's_add_u32 s20, s20, {OFF["XN"]}')
        dma_pre()
        for i in range(W3DMA): k(f's_add_u32 m0, s26, {i*KB}',f's_add_u32 s12, s20, {i*KB}','buffer_load_dwordx4 v2, s[8:11], s12 offen lds')
        k(f's_branch {L("bsd")}',f'{L("bsl")}:')
    k(f's_sleep {BSLEEP}') if BSLEEP else None
    k(f'{L("bsd")}:')
    k(f's_mov_b32 s61, {SPIN}',f'{L("Bp")}:','s_mov_b64 exec, s[50:51]')
    for ks in range(4): k(f'buffer_load_dwordx4 {vr(Q+4*ks)}, v12, s[8:11], s58 offen offset:{ks*512} sc1')
    for ks in range(4): k(f'buffer_load_dwordx4 {vr(KM+4*ks)}, v12, s[8:11], s58 offen offset:{2048+ks*512} sc1')
    k('s_add_u32 s12, s58, 4096','s_mov_b64 exec, s[52:53]')
    for ep in range(4): k(f'buffer_load_dwordx4 {vr(VM+4*ep)}, v14, s[8:11], s12 offen offset:{ep*512} sc1')
    k('s_mov_b64 exec, -1')
    for i in range(12):
        k(f's_waitcnt vmcnt({11-i})')
        b=Q+4*i
        if i==0: k(f'v_max_u32 v{T}, v{b}, v{b+2}')
        else: k(f'v_max3_u32 v{T}, v{T}, v{b}, v{b+2}')
        if i<4:
            for t in range(2): k(f'v_mfma_f32_16x16x32_bf16 {vr(S+4*t)}, {ar(112+16*t+4*i)}, {vr(Q+4*i)}, {vr(S+4*t) if i else 0}')
        elif i<8:
            k(f'v_mfma_f32_16x16x32_bf16 {vr(S+8)}, {vr(KM+4*(i-4))}, {vr(Q+4*(i-4))}, {vr(S+8) if i>4 else 0}')
    k(f'v_cmp_eq_u32 vcc, -1, v{T}','s_sub_u32 s61, s61, 1','s_cmp_eq_u32 s61, 0',f's_cbranch_scc1 {L("Bd")}',f's_cbranch_vccnz {L("Bp")}',f'{L("Bd")}:')
    ts(3)
    if TRACE: k('s_cmp_eq_u32 s3, 3',f's_cbranch_scc1 {L("t3")}',f's_sub_u32 s82, {SPIN}, s61',f'{L("t3")}:')
    if EARLYK: pf_k()
    vals=[S+i for i in range(12)]
    for i in range(4): k(f'v_add_f32 v{S+8+i}, v{S+8+i}, v{MM}')
    m=T
    k(f'v_max3_f32 v{m}, v{S}, v{S+1}, v{S+2}',f'v_max3_f32 v{m+1}, v{S+3}, v{S+4}, v{S+5}',f'v_max3_f32 v{m}, v{m}, v{S+6}, v{S+7}',f'v_max3_f32 v{m+1}, v{m+1}, v{S+8}, v{S+9}',
      f'v_max3_f32 v{m}, v{m}, v{S+10}, v{S+11}',f'v_max_f32 v{m}, v{m}, v{m+1}')
    xred(k,'v_max_f32',m,T+1)
    k(f'v_mul_f32 v{m}, 0x{CS:x}, v{m}',f's_mov_b32 s39, 0x{CS:x}')
    for v in vals: k(f'v_fma_f32 v{v}, v{v}, s39, -v{m}')
    for v in vals: k(f'v_exp_f32 v{v}, v{v}')
    k('s_nop 0')
    for t in range(3): k(f'v_cvt_pk_bf16_f32 v{P+2*t}, v{S+4*t}, v{S+4*t+1}',f'v_cvt_pk_bf16_f32 v{P+2*t+1}, v{S+4*t+2}, v{S+4*t+3}')
    k('s_nop 1')
    def pv1(et): k(f'v_mfma_f32_16x16x32_bf16 {vr(O+4*et)}, {ar(144+4*et)}, {vr(P)}, 0')
    def pv2(et): k(f'v_mfma_f32_16x16x16_bf16 {vr(O+4*et)}, {vr(VM+2*et,2)}, {vr(P+4,2)}, {vr(O+4*et)}')
    def cv(c):
        r0=O+8*c; t=OB+4*c
        k(f'v_cvt_pk_bf16_f32 v{t}, v{r0}, v{r0+1}',f'v_cvt_pk_bf16_f32 v{t+1}, v{r0+2}, v{r0+3}',
          f'v_cvt_pk_bf16_f32 v{t+2}, v{r0+4}, v{r0+5}',f'v_cvt_pk_bf16_f32 v{t+3}, v{r0+6}, v{r0+7}')
    def wo(c):
        for t in range(2): k(f'v_mfma_f32_16x16x32_bf16 {vr(D+4*t)}, {ar(80+16*t+4*c)}, {vr(OB+4*c)}, {vr(D+4*t) if c else 0}')
    for et in range(8): pv1(et)
    k(f'v_mfma_f32_16x16x32_bf16 {vr(SM)}, {vr(ONE)}, {vr(P)}, 0')
    for et in range(8): pv2(et)
    k(f'v_mfma_f32_16x16x16_bf16 {vr(SM)}, {vr(ONE,2)}, {vr(P+4,2)}, {vr(SM)}')
    k('s_nop 1'); cv(0); cv(1); wo(0); cv(2); wo(1); k(f'v_rcp_f32 v{T}, v{SM}'); cv(3); wo(2); k('s_nop 0'); wo(3)
    k('s_nop 7')
    for i in range(8): k(f'v_mul_f32 v{D+i}, v{D+i}, v{T}')
    k('s_and_b32 s12, s60, 1','s_lshl_b32 s12, s12, 13','s_lshl_b32 s13, s3, 11','s_add_u32 s13, s13, s12','v_add_u32 v18, s13, v2')
    k(f'ds_write_b128 v18, {vr(D)}',f'ds_write_b128 v18, {vr(D+4)} offset:1024','s_waitcnt lgkmcnt(0)','s_barrier')
    ts(4)
    k('s_cmp_eq_u32 s3, 3',f's_cbranch_scc0 {L("pf")}')
    k('v_add_u32 v18, s12, v16')
    for hh in range(4): k(f'ds_read_b128 {vr(M+4*hh)}, v18 offset:{hh*2048}')
    k('s_waitcnt lgkmcnt(0)')
    for q in range(4): k(f'v_add_f32 v{M+q}, v{M+q}, v{M+4+q}',f'v_add_f32 v{M+8+q}, v{M+8+q}, v{M+12+q}',f'v_add_f32 v{M+q}, v{M+q}, v{M+8+q}')
    k(f'v_min_u32 v{M}, v{M}, v21',f's_mul_i32 s12, s40, {20*KB}','s_add_u32 s12, s12, s59',f'buffer_store_dwordx4 {vr(M)}, v2, s[8:11], s12 offen sc1')
    ts(5)
    k('s_add_u32 s48, s60, 1',f's_and_b32 s48, s48, {RING-1}',f's_mul_i32 s48, s48, {8*10240}','s_add_u32 s48, s48, s92')
    if not EARLYK: pf_k()
    pf_v()
    if CSLEEP: k(f's_sleep {CSLEEP}')
    def ciss(st):
        k('s_mov_b32 s12, s59')
        for x in range(8): k(f'buffer_load_dwordx4 {vr(M+16+32*st+4*x)}, v2, s[8:11], s12 offen sc1',f's_add_u32 s12, s12, {20*KB}')
    if PIPE: ciss(0)
    k(f's_mov_b32 s61, {SPIN}',f'{L("Cp")}:')
    for st in range(2):
        b=M+16+32*st
        ciss(1-st) if PIPE else ciss(st)
        k('s_waitcnt vmcnt(8)' if PIPE else 's_waitcnt vmcnt(0)')
        k(f'v_max3_u32 v{T}, v{b}, v{b+4}, v{b+8}',f'v_max3_u32 v{T+1}, v{b+12}, v{b+16}, v{b+20}',f'v_max3_u32 v{T}, v{T}, v{b+24}, v{b+28}',f'v_max_u32 v{T}, v{T}, v{T+1}')
        k(f'v_cmp_eq_u32 vcc, -1, v{T}','s_sub_u32 s61, s61, 1','s_cmp_eq_u32 s61, 0',f's_cbranch_scc1 {L("Cd%d"%st)}',f's_cbranch_vccz {L("Cd%d"%st)}')
    k(f's_branch {L("Cp")}')
    for st in range(2):
        b=M+16+32*st
        k(f'{L("Cd%d"%st)}:')
        ts(6)
        for q in range(4):
            k(f'v_add_f32 v{b+q}, v{b+q}, v{b+4+q}',f'v_add_f32 v{b+8+q}, v{b+8+q}, v{b+12+q}',f'v_add_f32 v{b+16+q}, v{b+16+q}, v{b+20+q}',f'v_add_f32 v{b+24+q}, v{b+24+q}, v{b+28+q}',
              f'v_add_f32 v{b+q}, v{b+q}, v{b+8+q}',f'v_add_f32 v{b+16+q}, v{b+16+q}, v{b+24+q}',f'v_add_f32 v{b+q}, v{b+q}, v{b+16+q}')
        k(f'v_cvt_pk_bf16_f32 v{PT}, v{b}, v{b+1}',f'v_cvt_pk_bf16_f32 v{PT+1}, v{b+2}, v{b+3}',f'v_min_u32 v{PT}, v{PT}, v21')
        if st==0: k(f's_branch {L("Ce")}')
    k(f'{L("Ce")}:')
    k('s_lshl_b32 s12, s41, 9','s_add_u32 s12, s12, s48',f'buffer_store_dwordx2 {vr(PT,2)}, v17, s[8:11], s12 offen{LS}')
    k(f's_branch {L("next")}',f'{L("pf")}:')
    if PSLEEP: k(f's_sleep {PSLEEP}')
    if WARM and PFILL:
        k('s_cmp_eq_u32 s3, 0',f's_cbranch_scc0 {L("npf")}',f's_cmp_gt_u32 s60, {63-WARM}',f's_cbranch_scc1 {L("npf")}',
          f's_mul_i32 s12, s40, {20*KB}','s_add_u32 s12, s12, s95',f's_mul_i32 s13, s47, {8*20*KB}','s_add_u32 s12, s12, s13','buffer_store_dwordx4 v[56:59], v2, s[8:11], s12 offen sc1',f'{L("npf")}:')
    if not EARLYK: pf_k()
    pf_v()
    if TOK: window('lo')
    k(f'{L("next")}:')
    if TRACE:
        ts(7)
        k('s_waitcnt lgkmcnt(0)')
        k('s_lshl_b32 s12, s40, 5','s_add_u32 s12, s12, s41','s_lshl_b32 s12, s12, 2','s_add_u32 s12, s12, s3','s_lshl_b32 s12, s12, 11','s_lshl_b32 s13, s60, 5','s_add_u32 s12, s12, s13',f's_add_u32 s12, s12, {OFF["TR"]}')
        for i in range(8): k(f'v_mov_b32 v{24+i}, s{72+2*i}')
        k('v_mov_b32 v32, 0','s_mov_b64 exec, 1','buffer_store_dwordx4 v[24:27], v32, s[8:11], s12 offen','buffer_store_dwordx4 v[28:31], v32, s[8:11], s12 offen offset:16','s_mov_b64 exec, -1')
    k('s_add_u32 s60, s60, 1',f's_branch {L("loop")}')
    k(f'{L("end")}:','s_endpgm')
    k(f'{L("hi")}:')
    if TOK:
        k('s_cmp_eq_u32 s3, 3',f's_cbranch_scc1 {L("hi3")}')
        if HSLEEP: k(f's_sleep {HSLEEP}')
        window('hi')
        k(f's_branch {L("hid")}',f'{L("hi3")}:')
    if TATT:
        k('s_cmp_eq_u32 s90, 0',f's_cbranch_scc1 {L("hid")}','s_cmp_eq_u32 s60, 0',f's_cbranch_scc1 {L("hid")}')
        k(f'{L("tl")}:',f's_mov_b32 s61, {SPIN}',f's_and_b32 s49, s89, {RING-1}',f's_mul_i32 s49, s49, {32*6144}','s_add_u32 s49, s49, s71',f'{L("tp")}:')
        for ks in range(4): k(f'buffer_load_dwordx4 {vr(TKM+4*ks)}, v12, s[8:11], s49 offen offset:{2048+ks*512} sc1')
        k('s_add_u32 s12, s49, 4096')
        for ep in range(4): k(f'buffer_load_dwordx4 {vr(TVM+4*ep)}, v14, s[8:11], s12 offen offset:{ep*512} sc1')
        k('s_waitcnt vmcnt(0)')
        regs=[TKM+4*i for i in range(4)]+[TVM+4*i for i in range(4)]
        for i,b in enumerate(regs):
            if i==0: k(f'v_max_u32 v{T}, v{b}, v{b+2}')
            else: k(f'v_max3_u32 v{T}, v{T}, v{b}, v{b+2}')
        k(f'v_cmp_eq_u32 vcc, -1, v{T}','s_sub_u32 s61, s61, 1','s_cmp_eq_u32 s61, 0',f's_cbranch_scc1 {L("td")}',f's_cbranch_vccnz {L("tp")}',f'{L("td")}:')
        k('s_cmp_eq_u32 s91, 0',f's_cbranch_scc0 {L("tq1")}')
        attn_core(k,TQ,TK,TKM,TV,TVM,TS,TP,TO,T,[0],0,MB,MM)
        k(f's_branch {L("tq2")}',f'{L("tq1")}:')
        attn_core(k,TQ,TK,TKM,TV,TVM,TS,TP,TO,T,[0,1],1,MB,MM)
        k(f'{L("tq2")}:')
        for c in range(4):
            r0=TO+8*c; t=TKM+4*c
            k(f'v_cvt_pk_bf16_f32 v{t}, v{r0}, v{r0+1}',f'v_cvt_pk_bf16_f32 v{t+1}, v{r0+2}, v{r0+3}',
              f'v_cvt_pk_bf16_f32 v{t+2}, v{r0+4}, v{r0+5}',f'v_cvt_pk_bf16_f32 v{t+3}, v{r0+6}, v{r0+7}',
              f'buffer_store_dwordx4 {vr(t)}, v2, s[8:11], s88 offen offset:{c*KB}')
        k(f's_add_u32 s88, s88, {256*KB}','s_add_u32 s89, s89, 1','s_cmp_ge_u32 s89, 64',f's_cbranch_scc1 {L("end")}')
        tpf()
        k(f's_cmp_eq_u32 s60, {NSTEP-1}',f's_cbranch_scc1 {L("tl")}')
    k(f'{L("hid")}:',f's_cmp_eq_u32 s60, {NSTEP-1}',f's_cbranch_scc1 {L("end")}',f's_branch {L("next")}')
def gen_chain(use_fast=False):
    k=K('chain_kernel',vgpr=248,agpr=176,sgpr=96)
    k('s_cmp_ge_u32 s2, 256','s_cbranch_scc1 chain_done')
    k.srd(8,'ws',WS_BYTES)
    k('v_lshrrev_b32 v1, 6, v0','s_nop 0','v_readfirstlane_b32 s3, v1','v_and_b32 v0, 63, v0','v_lshlrev_b32 v2, 4, v0')
    if use_fast:
        k.srd(64,'dbg',256)
        k('s_getreg_b32 s40, hwreg(HW_REG_XCC_ID)','s_and_b32 s40, s40, 7')
        k('s_cmp_eq_u32 s3, 0','s_cbranch_scc0 ch_reg_wait')
        k('v_mov_b32 v4, 1','s_lshl_b32 s12, s40, 2','v_mov_b32 v5, s12','s_mov_b64 exec, 1',
          'buffer_atomic_add v4, v5, s[64:67], 0 offen sc0 sc1','s_waitcnt vmcnt(0)',
          'v_mov_b32 v6, 1','v_mov_b32 v7, 32','buffer_atomic_add v6, v7, s[64:67], 0 offen sc0 sc1','s_waitcnt vmcnt(0)',
          's_mov_b64 exec, -1')
        k(f's_mov_b32 s61, {SPIN}','v_lshlrev_b32 v8, 2, v0','ch_reg_poll:','buffer_load_dword v9, v8, s[64:67], 0 offen sc1','s_waitcnt vmcnt(0)',
          'v_readlane_b32 s12, v9, 8','s_sub_u32 s61, s61, 1','s_cmp_eq_u32 s61, 0','s_cbranch_scc1 ch_reg_got','s_cmp_lt_u32 s12, 256','s_cbranch_scc1 ch_reg_poll','ch_reg_got:')
        k('v_cmp_ne_u32 vcc, 32, v9','s_nop 1','s_and_b32 s12, vcc_lo, 0xff','v_readfirstlane_b32 s13, v4','v_readfirstlane_b32 s14, v6',
          's_cmp_eq_u32 s12, 0','s_cselect_b32 s15, 1, 0',
          'v_mov_b32 v11, s13','v_mov_b32 v12, s14','v_mov_b32 v10, s15','v_mov_b32 v8, 16384','ds_write_b96 v8, v[10:12]','s_waitcnt lgkmcnt(0)')
        k('ch_reg_wait:','s_barrier','v_mov_b32 v8, 16384','ds_read_b96 v[12:14], v8','s_waitcnt lgkmcnt(0)',
          'v_readfirstlane_b32 s15, v12','v_readfirstlane_b32 s41, v13','v_readfirstlane_b32 s14, v14','s_cmp_eq_u32 s15, 1','s_cbranch_scc0 ch_slow')
        chain_body(k,True,'f')
        k('ch_slow:','s_lshr_b32 s40, s14, 5','s_and_b32 s41, s14, 31')
    else:
        k('s_lshr_b32 s40, s2, 5','s_and_b32 s41, s2, 31')
    chain_body(k,False,'s')
    k('chain_done:')
    return k,(XB0+81920 if TOK else 16448+20480)
```

```python
from common import *
from attn import *
NSTEP=64
SPIN=1<<16
TRACE=False
CSLEEP=0
NOPF=0
PSLEEP=0
WARM=2
PIPE=0
PIPEA=0
BSLEEP=4
TATT=1
W3DMA=0
PFSC=1
FORCESLOW=0
EARLYK=1
QRING=1
TOK=1
HSLEEP=32
XB0=40960
RING=8
PFILL=1
def chain_body(k, fast, tag):
    def ts(i):
        if TRACE: k(f's_memtime s[{72+2*i}:{73+2*i}]')
    LS='' if fast else ' sc1'
    LR=' sc1' if (PFSC or not fast) else ''
    started=[False]
    M=64; Q=192; KM=208; VM=224; S=112; P=124; O=132; T=8; MM=3; OB=164; D=180; PT=188; ONE=240; SM=244; MB0=16448; MF=96
    L=lambda n: f'ch_{tag}_{n}'
    MB=36
    lane_consts(k,MB,MM,T)
    k('v_and_b32 v12, 7, v0','v_lshrrev_b32 v13, 4, v0','v_lshlrev_b32 v12, 4, v12','v_lshl_add_u32 v12, v13, 7, v12')
    k('v_and_b32 v14, 15, v0','v_and_b32 v15, 1, v13','v_lshlrev_b32 v14, 4, v14','v_lshl_add_u32 v14, v15, 8, v14')
    k('v_lshrrev_b32 v18, 5, v0','v_bfe_u32 v19, v0, 3, 2','v_and_b32 v20, 7, v0',
      'v_lshlrev_b32 v16, 10, v18','v_lshl_add_u32 v16, v19, 8, v16','v_lshl_add_u32 v16, v20, 4, v16',
      'v_lshlrev_b32 v17, 7, v19','v_lshl_add_u32 v17, v20, 4, v17','v_lshl_add_u32 v17, v18, 3, v17')
    k('v_mov_b32 v21, -2')
    for i in range(4): k(f'v_mov_b32 v{56+i}, -1')
    k('v_and_b32 v18, 8, v0','v_cmp_eq_u32 s[50:51], 0, v18','s_mov_b32 s52, -1','s_mov_b32 s53, 0')
    k('s_lshr_b32 s42, s41, 3','s_and_b32 s43, s41, 7','s_lshl_b32 s44, s40, 2','s_add_u32 s45, s44, s42')
    k('s_cmp_eq_u32 s3, 3',f's_cbranch_scc1 {L("nowa")}')
    k('s_lshl_b32 s12, s3, 8','s_lshl_b32 s13, s45, 3','s_add_u32 s12, s12, s13','s_add_u32 s12, s12, s43',f's_mul_i32 s12, s12, {20*KB}',f's_add_u32 s12, s12, {OFF["WQKV"]}')
    for ks in range(20):
        if ks%4==0 and ks: k('s_add_u32 s12, s12, 4096')
        k(f'buffer_load_dwordx4 {ar(4*ks)}, v2, s[8:11], s12 offen offset:{(ks%4)*KB}')
    k(f'{L("nowa")}:')
    k('s_add_u32 s46, s44, s3')
    k('s_cmp_ge_u32 s41, 20',f's_cbranch_scc1 {L("nowo")}')
    for t in range(2):
        k('s_lshl_b32 s12, s41, 1',f's_add_u32 s12, s12, {t}','s_lshl_b32 s12, s12, 7','s_lshl_b32 s13, s46, 2','s_add_u32 s12, s12, s13','s_lshl_b32 s12, s12, 10',f's_add_u32 s12, s12, {OFF["WO"]}')
        for c in range(4): k(f'buffer_load_dwordx4 {ar(80+16*t+4*c)}, v2, s[8:11], s12 offen offset:{c*KB}')
    k('s_lshl_b32 s54, s46, 12',f's_add_u32 s54, s54, {OFF["QK"]+128*KB}','s_lshl_b32 s55, s46, 13',f's_add_u32 s55, s55, {OFF["VT"]}')
    def pf_k():
        if NOPF and started[0]: return
        for kt in range(2):
            k(f's_add_u32 s12, s54, {kt*256*KB}')
            for ks in range(4): k(f'buffer_load_dwordx4 {ar(112+16*kt+4*ks)}, v2, s[8:11], s12 offen offset:{ks*KB}{LR}')
        k(f's_add_u32 s54, s54, {512*KB}')
        if QRING: k('s_bitset0_b32 s54, 22')
    def pf_v():
        if NOPF and started[0]: return
        for hf in range(2):
            k(f's_add_u32 s12, s55, {hf*4096}')
            for e in range(4): k(f'buffer_load_dwordx4 {ar(144+16*hf+4*e)}, v2, s[8:11], s12 offen offset:{e*KB}{LR}')
        k(f's_add_u32 s55, s55, {256*KB}')
        if QRING: k('s_bitset0_b32 s55, 21')
    k(f'{L("nowo")}:')
    k(f's_mov_b32 s20, {OFF["XN"]}',f's_mul_i32 s21, s3, {14*KB}','s_mov_b32 s24, 0','s_mov_b32 s25, 0')
    k('s_lshl_b32 s12, s45, 2','s_lshr_b32 s13, s43, 1','s_add_u32 s12, s12, s13','s_lshl_b32 s13, s3, 7','s_add_u32 s12, s12, s13','s_lshl_b32 s12, s12, 10',f's_add_u32 s22, s12, {OFF["QK"]}',
      's_lshl_b32 s12, s45, 3','s_add_u32 s12, s12, s43','s_lshl_b32 s12, s12, 10',f's_add_u32 s23, s12, {OFF["VT"]}',
      's_and_b32 s12, s43, 1','s_lshl_b32 s12, s12, 3','v_add_u32 v42, s12, v2')
    def dma1(i,b='s21'):
        k(f's_add_u32 s12, {b}, {i*KB}',f's_min_u32 s12, s12, {39*KB}','s_add_u32 m0, s12, s26','s_add_u32 s12, s12, s20','buffer_load_dwordx4 v2, s[8:11], s12 offen lds')
    def dma_pre(): k('s_and_b32 s26, s25, 1','s_mul_i32 s26, s26, 40960',f's_add_u32 s26, s26, {XB0}')
    def dma_post(): k('s_add_u32 s20, s20, 40960','s_add_u32 s25, s25, 1')
    def tok(dma,tg):
        TX=96; D0=144
        k('s_and_b32 s12, s24, 1','s_mul_i32 s12, s12, 40960',f's_add_u32 s12, s12, {XB0}','v_add_u32 v40, s12, v2')
        if dma: dma_pre()
        nd=14 if dma!=2 else (40-W3DMA+2)//3
        if dma==2: k(f's_mul_i32 s27, s3, {nd*KB}',f's_add_u32 s27, s27, {W3DMA*KB}')
        seq=[(ks,mt) for ks in range(20) for mt in range(2)]
        rd=lambda n: k(f'ds_read_b128 {vr(TX+4*(n%12))}, v40 offset:{(seq[n][1]*20+seq[n][0])*KB}')
        for n in range(12): rd(n)
        for sw in (0,1):
            if sw==0: k('s_cmp_eq_u32 s3, 2',f's_cbranch_scc1 {L("tv"+tg)}')
            else: k(f'{L("tv"+tg)}:')
            for n,(ks,mt) in enumerate(seq):
                k(f's_waitcnt lgkmcnt({min(11,39-n)})')
                X=vr(TX+4*(n%12)); A,B=(ar(4*ks),X) if sw==0 else (X,ar(4*ks))
                k(f'v_mfma_f32_16x16x32_bf16 {vr(D0+4*mt)}, {A}, {B}, {vr(D0+4*mt) if ks else 0}')
                if n+12<40: rd(n+12)
                if dma and n%2==1 and n//2<nd: dma1(n//2,'s27' if dma==2 else 's21')
            k('s_nop 7','s_nop 7')
            for q in range(4): k(f'v_cvt_pk_bf16_f32 v{D0+8+q}, v{D0+2*q}, v{D0+2*q+1}')
            if sw==0:
                k(f'buffer_store_dwordx2 {vr(D0+8,2)}, v42, s[8:11], s22 offen{LS}',f's_add_u32 s12, s22, {256*KB}',f'buffer_store_dwordx2 {vr(D0+10,2)}, v42, s[8:11], s12 offen{LS}',f's_branch {L("te"+tg)}')
            else: k(f'buffer_store_dwordx4 {vr(D0+8)}, v2, s[8:11], s23 offen{LS}',f'{L("te"+tg)}:')
        k(f's_add_u32 s22, s22, {512*KB}',f's_add_u32 s23, s23, {256*KB}','s_add_u32 s24, s24, 1')
        if QRING: k('s_bitset0_b32 s22, 22','s_bitset0_b32 s23, 21')
        if dma: dma_post()
    def window(tg):
        k('s_cmp_gt_u32 s60, 61',f's_cbranch_scc1 {L("wx"+tg)}','s_cmp_eq_u32 s60, 61',f's_cbranch_scc1 {L("wn"+tg)}')
        tok(2 if (W3DMA and tg=='lo') else True,tg+'a')
        k(f's_branch {L("wx"+tg)}',f'{L("wn"+tg)}:')
        tok(False,tg+'b')
        k(f'{L("wx"+tg)}:')
    if TOK:
        k('s_cmp_eq_u32 s3, 3',f's_cbranch_scc1 {L("p1")}')
        for j in range(2):
            dma_pre()
            for i in range(14): dma1(i)
            dma_post()
        k(f'{L("p1")}:','s_waitcnt vmcnt(0)','s_barrier','s_cmp_eq_u32 s3, 3',f's_cbranch_scc1 {L("p2")}')
        tok(False,'p0'); tok(False,'p1')
        k(f'{L("p2")}:','s_waitcnt vmcnt(0)','s_barrier','s_cmp_eq_u32 s3, 3',f's_cbranch_scc1 {L("p3")}')
        dma_pre()
        for i in range(14): dma1(i)
        dma_post()
        k('s_cmp_eq_u32 s3, 0',f's_cbranch_scc0 {L("p3")}')
        k('s_lshl_b32 s12, s40, 2','s_add_u32 s12, s12, 64','v_mov_b32 v44, 1','v_mov_b32 v45, s12','s_mov_b64 exec, 1','buffer_atomic_add v44, v45, s[64:67], 0 offen sc1',
          f's_mov_b32 s61, {SPIN}',f'{L("sy")}:','buffer_load_dword v46, v45, s[64:67], 0 offen sc1','s_waitcnt vmcnt(0)','v_readfirstlane_b32 s12, v46',
          's_sub_u32 s61, s61, 1','s_cmp_eq_u32 s61, 0',f's_cbranch_scc1 {L("sy2")}','s_cmp_lt_u32 s12, 32',f's_cbranch_scc1 {L("sy")}',f'{L("sy2")}:','s_mov_b64 exec, -1')
        k(f'{L("p3")}:','s_barrier')
    k('s_cmp_ge_u32 s41, 20',f's_cbranch_scc1 {L("nopf0")}')
    pf_k(); pf_v()
    started[0]=True
    k(f'{L("nopf0")}:')
    k(f's_mul_i32 s92, s40, 10240',f's_add_u32 s92, s92, {OFF["MEM"]}')
    k(f's_mul_i32 s93, s45, 6144',f's_add_u32 s93, s93, {OFF["QKVM"]}')
    k(f's_mul_i32 s94, s46, 6144',f's_add_u32 s94, s94, {OFF["QKVM"]}')
    k(f's_lshl_b32 s95, s41, 10',f's_add_u32 s95, s95, {OFF["PART"]}')
    TQ=64; TK=96; TKM=128; TV=144; TVM=176; TS=192; TP=204; TO=212
    k('s_sub_u32 s12, s41, 20','s_lshr_b32 s12, s12, 1','s_add_u32 s12, s12, s44','s_and_b32 s91, s41, 1',
      's_lshl_b32 s13, s12, 12','s_lshl_b32 s14, s91, 18','s_add_u32 s68, s13, s14',f's_add_u32 s68, s68, {OFF["QK"]}',f's_add_u32 s69, s13, {OFF["QK"]+128*KB}',
      's_lshl_b32 s70, s12, 13',f's_add_u32 s70, s70, {OFF["VT"]}','s_mul_i32 s71, s12, 6144',f's_add_u32 s71, s71, {OFF["QKVM"]}',
      's_lshl_b32 s14, s91, 17','s_add_u32 s88, s13, s14',f's_add_u32 s88, s88, {OFF["O"]}','s_mov_b32 s89, 0','s_mov_b32 s90, 0')
    def tpf():
        for ks in range(4): k(f'buffer_load_dwordx4 {vr(TQ+4*ks)}, v2, s[8:11], s68 offen offset:{ks*KB}{LR}')
        for kt in range(2):
            k(f's_add_u32 s12, s69, {kt*256*KB}')
            for ks in range(4): k(f'buffer_load_dwordx4 {vr(TK+16*kt+4*ks)}, v2, s[8:11], s12 offen offset:{ks*KB}{LR}')
        for hf in range(2):
            k(f's_add_u32 s12, s70, {hf*4096}')
            for e in range(4): k(f'buffer_load_dwordx4 {vr(TV+16*hf+4*e)}, v2, s[8:11], s12 offen offset:{e*KB}{LR}')
        k(f's_add_u32 s68, s68, {512*KB}',f's_add_u32 s69, s69, {512*KB}',f's_add_u32 s70, s70, {256*KB}')
        if QRING: k('s_bitset0_b32 s68, 22','s_bitset0_b32 s69, 22','s_bitset0_b32 s70, 21')
    if TATT:
        k('s_cmp_eq_u32 s3, 3',f's_cbranch_scc0 {L("not")}','s_cmp_lt_u32 s41, 20',f's_cbranch_scc1 {L("not")}','s_cmp_ge_u32 s41, 28',f's_cbranch_scc1 {L("not")}','s_mov_b32 s90, 1')
        tpf()
        k(f'{L("not")}:')
    k('s_lshr_b32 s12, s43, 1','s_lshl_b32 s12, s12, 9','s_and_b32 s13, s43, 1','s_lshl_b32 s13, s13, 3','s_add_u32 s12, s12, s13','s_lshl_b32 s13, s3, 11','s_add_u32 s12, s12, s13')
    k('s_cmp_eq_u32 s3, 2',f's_cbranch_scc1 {L("vo")}','v_add_u32 v22, s12, v12',f's_branch {L("vo2")}',f'{L("vo")}:','v_add_u32 v22, s12, v14',f'{L("vo2")}:')
    k('s_mov_b32 s60, 0')
    for i in range(48): k(f'v_mov_b32 v{Q+i}, 0')
    for i in range(4): k(f'v_mov_b32 v{ONE+i}, 0x3f803f80')
    k('s_lshl_b32 s62, s3, 10','v_add_u32 v23, s62, v2','s_cmp_eq_u32 s3, 0','s_cselect_b32 s67, 9216, 0','s_waitcnt vmcnt(0)')
    k(f'{L("loop")}:')
    ts(0)
    k(f's_and_b32 s12, s60, {RING-1}',f's_mul_i32 s13, s12, {8*10240}','s_add_u32 s56, s92, s13',f's_mul_i32 s13, s12, {32*6144}','s_add_u32 s57, s93, s13','s_add_u32 s58, s94, s13',
      f's_mul_i32 s13, s12, {8*20*KB}','s_add_u32 s59, s95, s13',f's_add_u32 s47, s60, {WARM}',f's_and_b32 s47, s47, {RING-1}')
    k('s_and_b32 s12, s60, 1','s_mul_i32 s63, s12, 10240',f's_add_u32 s63, s63, {MB0}','v_add_u32 v18, s63, v23')
    if WARM:
        k('s_cmp_eq_u32 s3, 3',f's_cbranch_scc0 {L("nw")}',f's_cmp_gt_u32 s60, {63-WARM}',f's_cbranch_scc1 {L("nw")}')
        k(f's_mul_i32 s12, s47, {32*6144}',f's_mul_i32 s13, s44, 6144','s_add_u32 s12, s12, s13',f's_add_u32 s12, s12, {OFF["QKVM"]}','s_lshl_b32 s13, s41, 10','s_add_u32 s12, s12, s13')
        k(f's_mul_i32 s15, s47, {8*10240}','s_add_u32 s15, s15, s92')
        k(f's_sub_u32 s14, s15, {24*1024}','s_add_u32 s14, s14, s13','s_cmp_lt_u32 s41, 24','s_cselect_b32 s12, s12, s14',
          f'buffer_store_dwordx4 v[56:59], v2, s[8:11], s12 offen{LS}',
          's_add_u32 s14, s15, 8192','s_and_b32 s13, s13, 1024','s_add_u32 s14, s14, s13',f'buffer_store_dwordx4 v[56:59], v2, s[8:11], s14 offen{LS}','s_waitcnt vmcnt(0)')
        k(f'{L("nw")}:')
    k('s_cmp_eq_u32 s3, 3',f's_cbranch_scc1 {L("A3")}')
    k('s_add_u32 s64, s56, 3072','s_add_u32 s65, s56, 6144','s_add_u32 s66, s56, s67')
    def aiss(st):
        b0=M+16*st
        k(f'buffer_load_dwordx4 {vr(b0)}, v23, s[8:11], s56 offen sc1',f'buffer_load_dwordx4 {vr(b0+4)}, v23, s[8:11], s64 offen sc1',
          f'buffer_load_dwordx4 {vr(b0+8)}, v23, s[8:11], s65 offen sc1',f'buffer_load_dwordx4 {vr(b0+12)}, v23, s[8:11], s66 offen sc1')
    if PIPEA: aiss(0)
    k(f's_mov_b32 s61, {SPIN}',f'{L("Ap")}:')
    for st in range(2):
        b0=M+16*st
        aiss(1-st) if PIPEA else aiss(st)
        k('s_waitcnt vmcnt(4)' if PIPEA else 's_waitcnt vmcnt(0)',f'v_max3_u32 v{T}, v{b0}, v{b0+2}, v{b0+4}',f'v_max3_u32 v{T+1}, v{b0+6}, v{b0+8}, v{b0+10}',f'v_max3_u32 v{T}, v{T}, v{b0+12}, v{b0+14}',f'v_max_u32 v{T}, v{T}, v{T+1}')
        k(f'v_cmp_eq_u32 vcc, -1, v{T}','s_sub_u32 s61, s61, 1','s_cmp_eq_u32 s61, 0',f's_cbranch_scc1 {L("Ad%d"%st)}',f's_cbranch_vccz {L("Ad%d"%st)}')
    k(f's_branch {L("Ap")}')
    for st in range(2):
        b0=M+16*st
        k(f'{L("Ad%d"%st)}:',f'ds_write_b128 v18, {vr(b0)}',f'ds_write_b128 v18, {vr(b0+4)} offset:3072',f'ds_write_b128 v18, {vr(b0+8)} offset:6144',
          's_cmp_eq_u32 s3, 0',f's_cbranch_scc0 {L("A3")}',f'ds_write_b128 v18, {vr(b0+12)} offset:9216',f's_branch {L("A3")}')
    k(f'{L("A3")}:')
    if TRACE: k('s_cmp_eq_u32 s3, 3',f's_cbranch_scc1 {L("t4")}',f's_sub_u32 s84, {SPIN}, s61',f'{L("t4")}:')
    k('v_add_u32 v18, s63, v12','s_waitcnt lgkmcnt(0)','s_barrier')
    ts(1)
    k('s_cmp_eq_u32 s3, 3',f's_cbranch_scc1 {L("B")}')
    if TRACE: k('s_waitcnt lgkmcnt(0)')
    for ks in range(12): k(f'ds_read_b128 {vr(MF+4*ks)}, v18 offset:{ks*512}')
    for sw in (0,1):
        if sw==0: k('s_cmp_eq_u32 s3, 2',f's_cbranch_scc1 {L("Av")}')
        else: k(f'{L("Av")}:')
        for ks in range(20):
            k(f's_waitcnt lgkmcnt({min(11,19-ks)})')
            A,B=(ar(4*ks),vr(MF+4*(ks%12))) if sw==0 else (vr(MF+4*(ks%12)),ar(4*ks))
            k(f'v_mfma_f32_16x16x32_bf16 {vr(D)}, {A}, {B}, {vr(D) if ks else 0}')
            if ks+12<20: k(f'ds_read_b128 {vr(MF+4*ks)}, v18 offset:{(ks+12)*512}')
        k('s_nop 7',f'v_cvt_pk_bf16_f32 v{PT}, v{D}, v{D+1}',f'v_cvt_pk_bf16_f32 v{PT+1}, v{D+2}, v{D+3}',f'v_min_u32 v{PT}, v{PT}, v21')
        k(f's_mov_b64 exec, s[{50 if sw==0 else 52}:{51 if sw==0 else 53}]',f'buffer_store_dwordx2 {vr(PT,2)}, v22, s[8:11], s57 offen{LS}','s_mov_b64 exec, -1')
        if sw==0: k(f's_branch {L("B")}')
    k(f'{L("B")}:','s_cmp_ge_u32 s41, 20',f's_cbranch_scc1 {L("hi")}',f's_cmp_eq_u32 s60, {NSTEP-1}',f's_cbranch_scc1 {L("end")}')
    ts(2)
    if TOK and W3DMA:
        k('s_cmp_eq_u32 s3, 3',f's_cbranch_scc0 {L("bsl")}','s_cmp_gt_u32 s60, 60',f's_cbranch_scc1 {L("bsl")}',
          's_add_u32 s25, s60, 3','s_mul_i32 s20, s25, 40960',f's_add_u32 s20, s20, {OFF["XN"]}')
        dma_pre()
        for i in range(W3DMA): k(f's_add_u32 m0, s26, {i*KB}',f's_add_u32 s12, s20, {i*KB}','buffer_load_dwordx4 v2, s[8:11], s12 offen lds')
        k(f's_branch {L("bsd")}',f'{L("bsl")}:')
    k(f's_sleep {BSLEEP}') if BSLEEP else None
    k(f'{L("bsd")}:')
    k(f's_mov_b32 s61, {SPIN}',f'{L("Bp")}:','s_mov_b64 exec, s[50:51]')
    for ks in range(4): k(f'buffer_load_dwordx4 {vr(Q+4*ks)}, v12, s[8:11], s58 offen offset:{ks*512} sc1')
    for ks in range(4): k(f'buffer_load_dwordx4 {vr(KM+4*ks)}, v12, s[8:11], s58 offen offset:{2048+ks*512} sc1')
    k('s_add_u32 s12, s58, 4096','s_mov_b64 exec, s[52:53]')
    for ep in range(4): k(f'buffer_load_dwordx4 {vr(VM+4*ep)}, v14, s[8:11], s12 offen offset:{ep*512} sc1')
    k('s_mov_b64 exec, -1')
    for i in range(12):
        k(f's_waitcnt vmcnt({11-i})')
        b=Q+4*i
        if i==0: k(f'v_max_u32 v{T}, v{b}, v{b+2}')
        else: k(f'v_max3_u32 v{T}, v{T}, v{b}, v{b+2}')
        if i<4:
            for t in range(2): k(f'v_mfma_f32_16x16x32_bf16 {vr(S+4*t)}, {ar(112+16*t+4*i)}, {vr(Q+4*i)}, {vr(S+4*t) if i else 0}')
        elif i<8:
            k(f'v_mfma_f32_16x16x32_bf16 {vr(S+8)}, {vr(KM+4*(i-4))}, {vr(Q+4*(i-4))}, {vr(S+8) if i>4 else 0}')
    k(f'v_cmp_eq_u32 vcc, -1, v{T}','s_sub_u32 s61, s61, 1','s_cmp_eq_u32 s61, 0',f's_cbranch_scc1 {L("Bd")}',f's_cbranch_vccnz {L("Bp")}',f'{L("Bd")}:')
    ts(3)
    if TRACE: k('s_cmp_eq_u32 s3, 3',f's_cbranch_scc1 {L("t3")}',f's_sub_u32 s82, {SPIN}, s61',f'{L("t3")}:')
    if EARLYK: pf_k()
    vals=[S+i for i in range(12)]
    for i in range(4): k(f'v_add_f32 v{S+8+i}, v{S+8+i}, v{MM}')
    m=T
    k(f'v_max3_f32 v{m}, v{S}, v{S+1}, v{S+2}',f'v_max3_f32 v{m+1}, v{S+3}, v{S+4}, v{S+5}',f'v_max3_f32 v{m}, v{m}, v{S+6}, v{S+7}',f'v_max3_f32 v{m+1}, v{m+1}, v{S+8}, v{S+9}',
      f'v_max3_f32 v{m}, v{m}, v{S+10}, v{S+11}',f'v_max_f32 v{m}, v{m}, v{m+1}')
    xred(k,'v_max_f32',m,T+1)
    k(f'v_mul_f32 v{m}, 0x{CS:x}, v{m}',f's_mov_b32 s39, 0x{CS:x}')
    for v in vals: k(f'v_fma_f32 v{v}, v{v}, s39, -v{m}')
    for v in vals: k(f'v_exp_f32 v{v}, v{v}')
    k('s_nop 0')
    for t in range(3): k(f'v_cvt_pk_bf16_f32 v{P+2*t}, v{S+4*t}, v{S+4*t+1}',f'v_cvt_pk_bf16_f32 v{P+2*t+1}, v{S+4*t+2}, v{S+4*t+3}')
    k('s_nop 1')
    def pv1(et): k(f'v_mfma_f32_16x16x32_bf16 {vr(O+4*et)}, {ar(144+4*et)}, {vr(P)}, 0')
    def pv2(et): k(f'v_mfma_f32_16x16x16_bf16 {vr(O+4*et)}, {vr(VM+2*et,2)}, {vr(P+4,2)}, {vr(O+4*et)}')
    def cv(c):
        r0=O+8*c; t=OB+4*c
        k(f'v_cvt_pk_bf16_f32 v{t}, v{r0}, v{r0+1}',f'v_cvt_pk_bf16_f32 v{t+1}, v{r0+2}, v{r0+3}',
          f'v_cvt_pk_bf16_f32 v{t+2}, v{r0+4}, v{r0+5}',f'v_cvt_pk_bf16_f32 v{t+3}, v{r0+6}, v{r0+7}')
    def wo(c):
        for t in range(2): k(f'v_mfma_f32_16x16x32_bf16 {vr(D+4*t)}, {ar(80+16*t+4*c)}, {vr(OB+4*c)}, {vr(D+4*t) if c else 0}')
    for et in range(8): pv1(et)
    k(f'v_mfma_f32_16x16x32_bf16 {vr(SM)}, {vr(ONE)}, {vr(P)}, 0')
    for et in range(8): pv2(et)
    k(f'v_mfma_f32_16x16x16_bf16 {vr(SM)}, {vr(ONE,2)}, {vr(P+4,2)}, {vr(SM)}')
    k('s_nop 1'); cv(0); cv(1); wo(0); cv(2); wo(1); k(f'v_rcp_f32 v{T}, v{SM}'); cv(3); wo(2); k('s_nop 0'); wo(3)
    k('s_nop 7')
    for i in range(8): k(f'v_mul_f32 v{D+i}, v{D+i}, v{T}')
    k('s_and_b32 s12, s60, 1','s_lshl_b32 s12, s12, 13','s_lshl_b32 s13, s3, 11','s_add_u32 s13, s13, s12','v_add_u32 v18, s13, v2')
    k(f'ds_write_b128 v18, {vr(D)}',f'ds_write_b128 v18, {vr(D+4)} offset:1024','s_waitcnt lgkmcnt(0)','s_barrier')
    ts(4)
    k('s_cmp_eq_u32 s3, 3',f's_cbranch_scc0 {L("pf")}')
    k('v_add_u32 v18, s12, v16')
    for hh in range(4): k(f'ds_read_b128 {vr(M+4*hh)}, v18 offset:{hh*2048}')
    k('s_waitcnt lgkmcnt(0)')
    for q in range(4): k(f'v_add_f32 v{M+q}, v{M+q}, v{M+4+q}',f'v_add_f32 v{M+8+q}, v{M+8+q}, v{M+12+q}',f'v_add_f32 v{M+q}, v{M+q}, v{M+8+q}')
    k(f'v_min_u32 v{M}, v{M}, v21',f's_mul_i32 s12, s40, {20*KB}','s_add_u32 s12, s12, s59',f'buffer_store_dwordx4 {vr(M)}, v2, s[8:11], s12 offen sc1')
    ts(5)
    k('s_add_u32 s48, s60, 1',f's_and_b32 s48, s48, {RING-1}',f's_mul_i32 s48, s48, {8*10240}','s_add_u32 s48, s48, s92')
    if not EARLYK: pf_k()
    pf_v()
    if CSLEEP: k(f's_sleep {CSLEEP}')
    def ciss(st):
        k('s_mov_b32 s12, s59')
        for x in range(8): k(f'buffer_load_dwordx4 {vr(M+16+32*st+4*x)}, v2, s[8:11], s12 offen sc1',f's_add_u32 s12, s12, {20*KB}')
    if PIPE: ciss(0)
    k(f's_mov_b32 s61, {SPIN}',f'{L("Cp")}:')
    for st in range(2):
        b=M+16+32*st
        ciss(1-st) if PIPE else ciss(st)
        k('s_waitcnt vmcnt(8)' if PIPE else 's_waitcnt vmcnt(0)')
        k(f'v_max3_u32 v{T}, v{b}, v{b+4}, v{b+8}',f'v_max3_u32 v{T+1}, v{b+12}, v{b+16}, v{b+20}',f'v_max3_u32 v{T}, v{T}, v{b+24}, v{b+28}',f'v_max_u32 v{T}, v{T}, v{T+1}')
        k(f'v_cmp_eq_u32 vcc, -1, v{T}','s_sub_u32 s61, s61, 1','s_cmp_eq_u32 s61, 0',f's_cbranch_scc1 {L("Cd%d"%st)}',f's_cbranch_vccz {L("Cd%d"%st)}')
    k(f's_branch {L("Cp")}')
    for st in range(2):
        b=M+16+32*st
        k(f'{L("Cd%d"%st)}:')
        ts(6)
        for q in range(4):
            k(f'v_add_f32 v{b+q}, v{b+q}, v{b+4+q}',f'v_add_f32 v{b+8+q}, v{b+8+q}, v{b+12+q}',f'v_add_f32 v{b+16+q}, v{b+16+q}, v{b+20+q}',f'v_add_f32 v{b+24+q}, v{b+24+q}, v{b+28+q}',
              f'v_add_f32 v{b+q}, v{b+q}, v{b+8+q}',f'v_add_f32 v{b+16+q}, v{b+16+q}, v{b+24+q}',f'v_add_f32 v{b+q}, v{b+q}, v{b+16+q}')
        k(f'v_cvt_pk_bf16_f32 v{PT}, v{b}, v{b+1}',f'v_cvt_pk_bf16_f32 v{PT+1}, v{b+2}, v{b+3}',f'v_min_u32 v{PT}, v{PT}, v21')
        if st==0: k(f's_branch {L("Ce")}')
    k(f'{L("Ce")}:')
    k('s_lshl_b32 s12, s41, 9','s_add_u32 s12, s12, s48',f'buffer_store_dwordx2 {vr(PT,2)}, v17, s[8:11], s12 offen{LS}')
    k(f's_branch {L("next")}',f'{L("pf")}:')
    if PSLEEP: k(f's_sleep {PSLEEP}')
    if WARM and PFILL:
        k('s_cmp_eq_u32 s3, 0',f's_cbranch_scc0 {L("npf")}',f's_cmp_gt_u32 s60, {63-WARM}',f's_cbranch_scc1 {L("npf")}',
          f's_mul_i32 s12, s40, {20*KB}','s_add_u32 s12, s12, s95',f's_mul_i32 s13, s47, {8*20*KB}','s_add_u32 s12, s12, s13','buffer_store_dwordx4 v[56:59], v2, s[8:11], s12 offen sc1',f'{L("npf")}:')
    if not EARLYK: pf_k()
    pf_v()
    if TOK: window('lo')
    k(f'{L("next")}:')
    if TRACE:
        ts(7)
        k('s_waitcnt lgkmcnt(0)')
        k('s_lshl_b32 s12, s40, 5','s_add_u32 s12, s12, s41','s_lshl_b32 s12, s12, 2','s_add_u32 s12, s12, s3','s_lshl_b32 s12, s12, 11','s_lshl_b32 s13, s60, 5','s_add_u32 s12, s12, s13',f's_add_u32 s12, s12, {OFF["TR"]}')
        for i in range(8): k(f'v_mov_b32 v{24+i}, s{72+2*i}')
        k('v_mov_b32 v32, 0','s_mov_b64 exec, 1','buffer_store_dwordx4 v[24:27], v32, s[8:11], s12 offen','buffer_store_dwordx4 v[28:31], v32, s[8:11], s12 offen offset:16','s_mov_b64 exec, -1')
    k('s_add_u32 s60, s60, 1',f's_branch {L("loop")}')
    k(f'{L("end")}:','s_endpgm')
    k(f'{L("hi")}:')
    if TOK:
        k('s_cmp_eq_u32 s3, 3',f's_cbranch_scc1 {L("hi3")}')
        if HSLEEP: k(f's_sleep {HSLEEP}')
        window('hi')
        k(f's_branch {L("hid")}',f'{L("hi3")}:')
    if TATT:
        k('s_cmp_eq_u32 s90, 0',f's_cbranch_scc1 {L("hid")}','s_cmp_eq_u32 s60, 0',f's_cbranch_scc1 {L("hid")}')
        k(f'{L("tl")}:',f's_mov_b32 s61, {SPIN}',f's_and_b32 s49, s89, {RING-1}',f's_mul_i32 s49, s49, {32*6144}','s_add_u32 s49, s49, s71',f'{L("tp")}:')
        for ks in range(4): k(f'buffer_load_dwordx4 {vr(TKM+4*ks)}, v12, s[8:11], s49 offen offset:{2048+ks*512} sc1')
        k('s_add_u32 s12, s49, 4096')
        for ep in range(4): k(f'buffer_load_dwordx4 {vr(TVM+4*ep)}, v14, s[8:11], s12 offen offset:{ep*512} sc1')
        k('s_waitcnt vmcnt(0)')
        regs=[TKM+4*i for i in range(4)]+[TVM+4*i for i in range(4)]
        for i,b in enumerate(regs):
            if i==0: k(f'v_max_u32 v{T}, v{b}, v{b+2}')
            else: k(f'v_max3_u32 v{T}, v{T}, v{b}, v{b+2}')
        k(f'v_cmp_eq_u32 vcc, -1, v{T}','s_sub_u32 s61, s61, 1','s_cmp_eq_u32 s61, 0',f's_cbranch_scc1 {L("td")}',f's_cbranch_vccnz {L("tp")}',f'{L("td")}:')
        k('s_cmp_eq_u32 s91, 0',f's_cbranch_scc0 {L("tq1")}')
        attn_core(k,TQ,TK,TKM,TV,TVM,TS,TP,TO,T,[0],0,MB,MM)
        k(f's_branch {L("tq2")}',f'{L("tq1")}:')
        attn_core(k,TQ,TK,TKM,TV,TVM,TS,TP,TO,T,[0,1],1,MB,MM)
        k(f'{L("tq2")}:')
        for c in range(4):
            r0=TO+8*c; t=TKM+4*c
            k(f'v_cvt_pk_bf16_f32 v{t}, v{r0}, v{r0+1}',f'v_cvt_pk_bf16_f32 v{t+1}, v{r0+2}, v{r0+3}',
              f'v_cvt_pk_bf16_f32 v{t+2}, v{r0+4}, v{r0+5}',f'v_cvt_pk_bf16_f32 v{t+3}, v{r0+6}, v{r0+7}',
              f'buffer_store_dwordx4 {vr(t)}, v2, s[8:11], s88 offen offset:{c*KB}')
        k(f's_add_u32 s88, s88, {256*KB}','s_add_u32 s89, s89, 1','s_cmp_ge_u32 s89, 64',f's_cbranch_scc1 {L("end")}')
        tpf()
        k(f's_cmp_eq_u32 s60, {NSTEP-1}',f's_cbranch_scc1 {L("tl")}')
    k(f'{L("hid")}:',f's_cmp_eq_u32 s60, {NSTEP-1}',f's_cbranch_scc1 {L("end")}',f's_branch {L("next")}')
def gen_chain(use_fast=False):
    k=K('chain_kernel',vgpr=248,agpr=176,sgpr=96)
    k('s_cmp_ge_u32 s2, 256','s_cbranch_scc1 chain_done')
    k.srd(8,'ws',WS_BYTES)
    k('v_lshrrev_b32 v1, 6, v0','s_nop 0','v_readfirstlane_b32 s3, v1','v_and_b32 v0, 63, v0','v_lshlrev_b32 v2, 4, v0')
    if use_fast:
        k.srd(64,'dbg',256)
        k('s_getreg_b32 s40, hwreg(HW_REG_XCC_ID)','s_and_b32 s40, s40, 7')
        k('s_cmp_eq_u32 s3, 0','s_cbranch_scc0 ch_reg_wait')
        k('v_mov_b32 v4, 1','s_lshl_b32 s12, s40, 2','v_mov_b32 v5, s12','s_mov_b64 exec, 1',
          'buffer_atomic_add v4, v5, s[64:67], 0 offen sc0 sc1','s_waitcnt vmcnt(0)',
          'v_mov_b32 v6, 1','v_mov_b32 v7, 32','buffer_atomic_add v6, v7, s[64:67], 0 offen sc0 sc1','s_waitcnt vmcnt(0)',
          's_mov_b64 exec, -1')
        k(f's_mov_b32 s61, {SPIN}','v_lshlrev_b32 v8, 2, v0','ch_reg_poll:','buffer_load_dword v9, v8, s[64:67], 0 offen sc1','s_waitcnt vmcnt(0)',
          'v_readlane_b32 s12, v9, 8','s_sub_u32 s61, s61, 1','s_cmp_eq_u32 s61, 0','s_cbranch_scc1 ch_reg_got','s_cmp_lt_u32 s12, 256','s_cbranch_scc1 ch_reg_poll','ch_reg_got:')
        k('v_cmp_ne_u32 vcc, 32, v9','s_nop 1','s_and_b32 s12, vcc_lo, 0xff','v_readfirstlane_b32 s13, v4','v_readfirstlane_b32 s14, v6',
          's_cmp_eq_u32 s12, 0',f's_cselect_b32 s15, {0 if FORCESLOW else 1}, 0',
          'v_mov_b32 v11, s13','v_mov_b32 v12, s14','v_mov_b32 v10, s15','v_mov_b32 v8, 16384','ds_write_b96 v8, v[10:12]','s_waitcnt lgkmcnt(0)')
        k('ch_reg_wait:','s_barrier','v_mov_b32 v8, 16384','ds_read_b96 v[12:14], v8','s_waitcnt lgkmcnt(0)',
          'v_readfirstlane_b32 s15, v12','v_readfirstlane_b32 s41, v13','v_readfirstlane_b32 s14, v14','s_cmp_eq_u32 s15, 1','s_cbranch_scc0 ch_slow')
        chain_body(k,True,'f')
        k('ch_slow:','s_lshr_b32 s40, s14, 5','s_and_b32 s41, s14, 31')
    else:
        k('s_lshr_b32 s40, s2, 5','s_and_b32 s41, s2, 31')
    chain_body(k,False,'s')
    k('chain_done:')
    return k,(XB0+81920 if TOK else 16448+20480)
```

```python
from common import *
def ln_wave(k, src_srd, src_off_s, dst_off_s, pfx=''):
    k('v_and_b32 v1, 15, v0','v_lshrrev_b32 v2, 4, v0',
      'v_mul_u32_u24 v3, 1280, v1','v_lshl_add_u32 v3, v2, 4, v3',
      'v_lshlrev_b32 v4, 4, v0')
    for ks in range(20):
        k(f'buffer_load_dwordx4 {vr(8+4*ks)}, v3, s[{src_srd}:{src_srd+3}], s{src_off_s} offen offset:{ks*64}')
    def xred(r):
        k(f'v_mov_b32 v90, v{r}','s_nop 1',f'v_permlane32_swap_b32 v90, v{r}','s_nop 1',f'v_add_f32 v{r}, v{r}, v90',
          f'v_mov_b32 v90, v{r}','s_nop 1',f'v_permlane16_swap_b32 v90, v{r}','s_nop 1',f'v_add_f32 v{r}, v{r}, v90')
    for r in (88,89,92,93): k(f'v_mov_b32 v{r}, 0')
    for ks in range(20):
        k(f's_waitcnt vmcnt({19-ks})')
        for d in range(4):
            r=8+4*ks+d; t=90 if d%2==0 else 94
            k(f'v_lshlrev_b32 v{t}, 16, v{r}',f'v_and_b32 v{t+1}, 0xffff0000, v{r}',
              f'v_pk_add_f32 v[88:89], v[88:89], v[{t}:{t+1}]',f'v_pk_fma_f32 v[92:93], v[{t}:{t+1}], v[{t}:{t+1}], v[92:93]')
    k('v_add_f32 v5, v88, v89','v_add_f32 v6, v92, v93')
    xred(5); xred(6)
    k('v_mul_f32 v5, 0x3acccccd, v5','v_mul_f32 v6, 0x3acccccd, v6','v_fma_f32 v6, -v5, v5, v6','v_max_f32 v6, 0, v6','v_add_f32 v6, 0x3727c5ac, v6','v_rsq_f32 v7, v6','s_nop 0',
      'v_mul_f32 v88, v5, v7','v_sub_f32 v88, 0, v88','v_mov_b32 v89, v88','v_mov_b32 v92, v7','v_mov_b32 v93, v7')
    for ks in range(20):
        for d in range(4):
            r=8+4*ks+d; t=90 if d%2==0 else 94
            k(f'v_lshlrev_b32 v{t}, 16, v{r}',f'v_and_b32 v{t+1}, 0xffff0000, v{r}',
              f'v_pk_fma_f32 v[{t}:{t+1}], v[{t}:{t+1}], v[92:93], v[88:89]',f'v_cvt_pk_bf16_f32 v{r}, v{t}, v{t+1}')
        k(f's_add_u32 s20, s{dst_off_s}, {ks*1024}',
          f'buffer_store_dwordx4 {vr(8+4*ks)}, v4, s[8:11], s20 offen')

SEGS=[
 ('Wq',4096,20,OFF['WQKV'],2,0),('Wk',4096,20,OFF['WQKV']+256*20*KB,2,0),('Wv',4096,20,OFF['WQKV']+512*20*KB,2,0),
 ('Wo',640,128,OFF['WO'],2,0),('w1',1728,20,OFF['W13'],4,0),('w3',1728,20,OFF['W13'],4,2),('w2',640,54,OFF['W2'],2,0)]
def gen_k0():
    k=K('prep_kernel',vgpr=96,sgpr=40)
    k.srd(8,'ws',WS_BYTES)
    k('v_lshrrev_b32 v1, 6, v0','s_nop 0','v_readfirstlane_b32 s3, v1','v_and_b32 v0, 63, v0')
    start=0
    k('s_mov_b32 s4, s2')
    nxt=k.lab('seg')
    k('s_cmp_ge_u32 s4, 32',f's_cbranch_scc1 {nxt}')
    k.srd(12,'x',2048*1280)
    k('s_lshl_b32 s5, s4, 2','s_add_u32 s5, s5, s3',f's_mul_i32 s6, s5, {16*1280}',f's_mul_i32 s7, s5, {20*KB}',f's_add_u32 s7, s7, {OFF["XN"]}')
    ln_wave(k,12,6,7)
    k('s_endpgm',f'{nxt}:','s_sub_u32 s4, s4, 32'); start+=32
    for (arg,N,KS,dst,DM,DO) in SEGS:
        NQ=N//64; units=NQ*KS; assert units%4==0; cnt=units//4
        nxt=k.lab('seg')
        k(f's_cmp_ge_u32 s4, {cnt}',f's_cbranch_scc1 {nxt}')
        k.srd(12,arg,KS*32*N*2)
        k('s_lshl_b32 s5, s4, 2','s_add_u32 s5, s5, s3')
        if NQ==64: k('s_lshr_b32 s7, s5, 6','s_and_b32 s6, s5, 63')
        else:
            mg=(65536+NQ-1)//NQ
            assert all((u*mg)>>16==u//NQ for u in range(units))
            k(f's_mul_i32 s7, s5, {mg}','s_lshr_b32 s7, s7, 16',f's_mul_i32 s6, s7, {NQ}','s_sub_u32 s6, s5, s6')
        k('v_and_b32 v1, 15, v0','v_lshrrev_b32 v2, 4, v0',f's_mov_b32 s21, {8*N*2}','v_mul_lo_u32 v3, v2, s21','v_lshl_add_u32 v3, v1, 3, v3',
          f's_mul_i32 s20, s7, {32*N*2}','s_lshl_b32 s18, s6, 7','s_add_u32 s20, s20, s18')
        for j in range(8):
            k(f'buffer_load_dwordx2 {vr(16+2*j,2)}, v3, s[12:15], s20 offen',f's_add_u32 s20, s20, {N*2}')
        k('v_lshrrev_b32 v4, 3, v1',f'v_mul_u32_u24 v4, {DM}, v4','v_and_b32 v5, 1, v1','v_add_u32 v4, v4, v5',f'v_mul_u32_u24 v4, {KS*KB}, v4',
          'v_lshl_add_u32 v4, v2, 8, v4','v_bfe_u32 v5, v1, 1, 2','v_lshl_add_u32 v4, v5, 6, v4')
        k(f's_mul_i32 s19, s6, {2*DM}',f's_add_u32 s19, s19, {DO}',f's_mul_i32 s19, s19, {KS}','s_add_u32 s19, s19, s7','s_lshl_b32 s19, s19, 10',f's_add_u32 s19, s19, {dst}')
        k('s_mov_b32 s22, 0x05040100','s_mov_b32 s23, 0x07060302','s_waitcnt vmcnt(0)')
        for f in range(4):
            for q in range(4):
                k(f'v_perm_b32 v{32+4*f+q}, v{16+4*q+2+(f>>1)}, v{16+4*q+(f>>1)}, s{22+(f&1)}')
            k(f'buffer_store_dwordx4 {vr(32+4*f)}, v4, s[8:11], s19 offen offset:{16*f}')
        k('s_endpgm',f'{nxt}:',f's_sub_u32 s4, s4, {cnt}')
        start+=cnt
    nxt=k.lab('seg')
    k('s_cmp_ge_u32 s4, 1',f's_cbranch_scc1 {nxt}')
    k.srd(12,'mem0',8*1280)
    k('v_and_b32 v1, 7, v0','v_lshrrev_b32 v2, 3, v0','v_mul_u32_u24 v3, 1280, v1','v_lshl_add_u32 v3, v2, 4, v3','v_lshlrev_b32 v4, 4, v0')
    for i in range(10): k(f'buffer_load_dwordx4 {vr(8+4*i)}, v3, s[12:15], 0 offen offset:{i*128}')
    k(f's_mul_i32 s5, s3, {2*10240}',f's_add_u32 s5, s5, {OFF["MEM"]}','s_waitcnt vmcnt(0)')
    for g in range(2):
        for i in range(10):
            k(f'buffer_store_dwordx4 {vr(8+4*i)}, v4, s[8:11], s5 offen',f's_add_u32 s5, s5, 1024')
    k('s_endpgm',f'{nxt}:','s_sub_u32 s4, s4, 1'); start+=1
    import os
    NF=int(os.environ.get('NFILL','8'))
    for (f0,sz) in ((OFF['MEM']+8*10240,(NF-1)*8*10240),(OFF['QKVM'],NF*32*6144),(OFF['PART'],NF*8*20*KB))+(((OFF['QK'],4<<20),(OFF['VT'],2<<20)) if os.environ.get('NPRE','1')=='1' else ((OFF['QK'],4<<20),)):
        fn=sz//16384; assert fn*16384==sz
        nxt=k.lab('seg')
        k(f's_cmp_ge_u32 s4, {fn}',f's_cbranch_scc1 {nxt}')
        k('s_lshl_b32 s5, s4, 14','s_lshl_b32 s6, s3, 10','s_add_u32 s5, s5, s6',f's_add_u32 s5, s5, {f0}','v_lshlrev_b32 v4, 4, v0')
        for i in range(4): k(f'v_mov_b32 v{8+i}, -1')
        for i in range(4): k('buffer_store_dwordx4 v[8:11], v4, s[8:11], s5 offen','s_add_u32 s5, s5, 4096')
        k('s_endpgm',f'{nxt}:',f's_sub_u32 s4, s4, {fn}'); start+=fn
    k('prep_done:')
    return k,start
def gen_ln():
    k=K('ln_kernel',vgpr=96,sgpr=40)
    k('s_cmp_ge_u32 s2, 128','s_cbranch_scc1 ln_done')
    k.srd(8,'ws',WS_BYTES)
    k(f's_mul_i32 s6, s2, {16*1280}',f's_add_u32 s6, s6, {OFF["H"]}',f's_mul_i32 s7, s2, {20*KB}',f's_add_u32 s7, s7, {OFF["HN"]}')
    ln_wave(k,8,6,7)
    k('ln_done:')
    return k
```

```python
from common import *
from attn import *
NSTEP=64
SPIN=1<<16
TRACE=False
CSLEEP=0
NOPF=0
PSLEEP=0
WARM=2
PIPE=0
PIPEA=0
BSLEEP=4
TATT=1
W3DMA=0
PFSC=1
FORCESLOW=0
EARLYDMA=0
DP=2
PVL=0
EARLYK=1
QRING=1
TOK=1
HSLEEP=32
XB0=40960
RING=8
PFILL=1
def chain_body(k, fast, tag):
    def ts(i):
        if TRACE: k(f's_memtime s[{72+2*i}:{73+2*i}]')
    LS='' if fast else ' sc1'
    LR=' sc1' if (PFSC or not fast) else ''
    started=[False]
    M=64; Q=192; KM=208; VM=224; S=112; P=124; O=132; T=8; MM=3; OB=164; D=180; PT=188; ONE=240; SM=244; MB0=16448; MF=96
    L=lambda n: f'ch_{tag}_{n}'
    MB=36
    lane_consts(k,MB,MM,T)
    k('v_and_b32 v12, 7, v0','v_lshrrev_b32 v13, 4, v0','v_lshlrev_b32 v12, 4, v12','v_lshl_add_u32 v12, v13, 7, v12')
    k('v_and_b32 v14, 15, v0','v_and_b32 v15, 1, v13','v_lshlrev_b32 v14, 4, v14','v_lshl_add_u32 v14, v15, 8, v14')
    k('v_lshrrev_b32 v18, 5, v0','v_bfe_u32 v19, v0, 3, 2','v_and_b32 v20, 7, v0',
      'v_lshlrev_b32 v16, 10, v18','v_lshl_add_u32 v16, v19, 8, v16','v_lshl_add_u32 v16, v20, 4, v16',
      'v_lshlrev_b32 v17, 7, v19','v_lshl_add_u32 v17, v20, 4, v17','v_lshl_add_u32 v17, v18, 3, v17')
    k('v_mov_b32 v21, -2')
    for i in range(4): k(f'v_mov_b32 v{56+i}, -1')
    k('v_and_b32 v18, 8, v0','v_cmp_eq_u32 s[50:51], 0, v18','s_mov_b32 s52, -1','s_mov_b32 s53, 0')
    k('s_lshr_b32 s42, s41, 3','s_and_b32 s43, s41, 7','s_lshl_b32 s44, s40, 2','s_add_u32 s45, s44, s42')
    k('s_cmp_eq_u32 s3, 3',f's_cbranch_scc1 {L("nowa")}')
    k('s_lshl_b32 s12, s3, 8','s_lshl_b32 s13, s45, 3','s_add_u32 s12, s12, s13','s_add_u32 s12, s12, s43',f's_mul_i32 s12, s12, {20*KB}',f's_add_u32 s12, s12, {OFF["WQKV"]}')
    for ks in range(20):
        if ks%4==0 and ks: k('s_add_u32 s12, s12, 4096')
        k(f'buffer_load_dwordx4 {ar(4*ks)}, v2, s[8:11], s12 offen offset:{(ks%4)*KB}')
    k(f'{L("nowa")}:')
    k('s_add_u32 s46, s44, s3')
    k('s_cmp_ge_u32 s41, 20',f's_cbranch_scc1 {L("nowo")}')
    for t in range(2):
        k('s_lshl_b32 s12, s41, 1',f's_add_u32 s12, s12, {t}','s_lshl_b32 s12, s12, 7','s_lshl_b32 s13, s46, 2','s_add_u32 s12, s12, s13','s_lshl_b32 s12, s12, 10',f's_add_u32 s12, s12, {OFF["WO"]}')
        for c in range(4): k(f'buffer_load_dwordx4 {ar(80+16*t+4*c)}, v2, s[8:11], s12 offen offset:{c*KB}')
    k('s_lshl_b32 s54, s46, 12',f's_add_u32 s54, s54, {OFF["QK"]+128*KB}','s_lshl_b32 s55, s46, 13',f's_add_u32 s55, s55, {OFF["VT"]}')
    def pf_k():
        if NOPF and started[0]: return
        for kt in range(2):
            k(f's_add_u32 s12, s54, {kt*256*KB}')
            for ks in range(4): k(f'buffer_load_dwordx4 {ar(112+16*kt+4*ks)}, v2, s[8:11], s12 offen offset:{ks*KB}{LR}')
        k(f's_add_u32 s54, s54, {512*KB}')
        if QRING: k('s_bitset0_b32 s54, 22')
    def pf_v():
        if NOPF and started[0]: return
        for hf in range(2):
            k(f's_add_u32 s12, s55, {hf*4096}')
            for e in range(4): k(f'buffer_load_dwordx4 {ar(144+16*hf+4*e)}, v2, s[8:11], s12 offen offset:{e*KB}{LR}')
        k(f's_add_u32 s55, s55, {256*KB}')
        if QRING: k('s_bitset0_b32 s55, 21')
    k(f'{L("nowo")}:')
    k(f's_mov_b32 s20, {OFF["XN"]}',f's_mul_i32 s21, s3, {14*KB}','s_mov_b32 s24, 0','s_mov_b32 s25, 0')
    k('s_lshl_b32 s12, s45, 2','s_lshr_b32 s13, s43, 1','s_add_u32 s12, s12, s13','s_lshl_b32 s13, s3, 7','s_add_u32 s12, s12, s13','s_lshl_b32 s12, s12, 10',f's_add_u32 s22, s12, {OFF["QK"]}',
      's_lshl_b32 s12, s45, 3','s_add_u32 s12, s12, s43','s_lshl_b32 s12, s12, 10',f's_add_u32 s23, s12, {OFF["VT"]}',
      's_and_b32 s12, s43, 1','s_lshl_b32 s12, s12, 3','v_add_u32 v42, s12, v2')
    def dma1(i,b='s21'):
        k(f's_add_u32 s12, {b}, {i*KB}',f's_min_u32 s12, s12, {39*KB}','s_add_u32 m0, s12, s26','s_add_u32 s12, s12, s20','buffer_load_dwordx4 v2, s[8:11], s12 offen lds')
    def dma_pre(): k('s_and_b32 s26, s25, 1','s_mul_i32 s26, s26, 40960',f's_add_u32 s26, s26, {XB0}')
    def dma_post(): k('s_add_u32 s20, s20, 40960','s_add_u32 s25, s25, 1')
    def tok(dma,tg):
        TX=96; D0=144
        k('s_and_b32 s12, s24, 1','s_mul_i32 s12, s12, 40960',f's_add_u32 s12, s12, {XB0}','v_add_u32 v40, s12, v2')
        if dma: dma_pre()
        nd=14 if dma!=2 else (40-W3DMA+2)//3
        if dma==2: k(f's_mul_i32 s27, s3, {nd*KB}',f's_add_u32 s27, s27, {W3DMA*KB}')
        seq=[(ks,mt) for ks in range(20) for mt in range(2)]
        rd=lambda n: k(f'ds_read_b128 {vr(TX+4*(n%12))}, v40 offset:{(seq[n][1]*20+seq[n][0])*KB}')
        for n in range(12): rd(n)
        for sw in (0,1):
            if sw==0: k('s_cmp_eq_u32 s3, 2',f's_cbranch_scc1 {L("tv"+tg)}')
            else: k(f'{L("tv"+tg)}:')
            for n,(ks,mt) in enumerate(seq):
                k(f's_waitcnt lgkmcnt({min(11,39-n)})')
                X=vr(TX+4*(n%12)); A,B=(ar(4*ks),X) if sw==0 else (X,ar(4*ks))
                k(f'v_mfma_f32_16x16x32_bf16 {vr(D0+4*mt)}, {A}, {B}, {vr(D0+4*mt) if ks else 0}')
                if n+12<40: rd(n+12)
                if dma and DP==2 and n%2==1 and n//2<nd: dma1(n//2,'s27' if dma==2 else 's21')
                if dma and DP==3 and n%3==0 and n//3<nd: dma1(n//3,'s27' if dma==2 else 's21')
            k('s_nop 7','s_nop 7')
            for q in range(4): k(f'v_cvt_pk_bf16_f32 v{D0+8+q}, v{D0+2*q}, v{D0+2*q+1}')
            if sw==0:
                k(f'buffer_store_dwordx2 {vr(D0+8,2)}, v42, s[8:11], s22 offen{LS}',f's_add_u32 s12, s22, {256*KB}',f'buffer_store_dwordx2 {vr(D0+10,2)}, v42, s[8:11], s12 offen{LS}',f's_branch {L("te"+tg)}')
            else: k(f'buffer_store_dwordx4 {vr(D0+8)}, v2, s[8:11], s23 offen{LS}',f'{L("te"+tg)}:')
        k(f's_add_u32 s22, s22, {512*KB}',f's_add_u32 s23, s23, {256*KB}','s_add_u32 s24, s24, 1')
        if QRING: k('s_bitset0_b32 s22, 22','s_bitset0_b32 s23, 21')
        if dma: dma_post()
    def window(tg):
        k('s_cmp_gt_u32 s60, 61',f's_cbranch_scc1 {L("wx"+tg)}','s_cmp_eq_u32 s60, 61',f's_cbranch_scc1 {L("wn"+tg)}')
        tok(2 if (W3DMA and tg=='lo') else True,tg+'a')
        k(f's_branch {L("wx"+tg)}',f'{L("wn"+tg)}:')
        tok(False,tg+'b')
        k(f'{L("wx"+tg)}:')
    if TOK:
        if EARLYDMA: k(f's_mov_b32 s20, {OFF["XN"]+2*40960}','s_mov_b32 s25, 2')
        else:
            k('s_cmp_eq_u32 s3, 3',f's_cbranch_scc1 {L("p1")}')
            for j in range(2):
                dma_pre()
                for i in range(14): dma1(i)
                dma_post()
        k(f'{L("p1")}:','s_waitcnt vmcnt(0)','s_barrier','s_cmp_eq_u32 s3, 3',f's_cbranch_scc1 {L("p2")}')
        tok(False,'p0'); tok(False,'p1')
        k(f'{L("p2")}:','s_waitcnt vmcnt(0)','s_barrier','s_cmp_eq_u32 s3, 3',f's_cbranch_scc1 {L("p3")}')
        dma_pre()
        for i in range(14): dma1(i)
        dma_post()
        k('s_cmp_eq_u32 s3, 0',f's_cbranch_scc0 {L("p3")}')
        k('s_lshl_b32 s12, s40, 2','s_add_u32 s12, s12, 64','v_mov_b32 v44, 1','v_mov_b32 v45, s12','s_mov_b64 exec, 1','buffer_atomic_add v44, v45, s[64:67], 0 offen sc1',
          f's_mov_b32 s61, {SPIN}',f'{L("sy")}:','buffer_load_dword v46, v45, s[64:67], 0 offen sc1','s_waitcnt vmcnt(0)','v_readfirstlane_b32 s12, v46',
          's_sub_u32 s61, s61, 1','s_cmp_eq_u32 s61, 0',f's_cbranch_scc1 {L("sy2")}','s_cmp_lt_u32 s12, 32',f's_cbranch_scc1 {L("sy")}',f'{L("sy2")}:','s_mov_b64 exec, -1')
        k(f'{L("p3")}:','s_barrier')
    k('s_cmp_ge_u32 s41, 20',f's_cbranch_scc1 {L("nopf0")}')
    pf_k(); pf_v()
    started[0]=True
    k(f'{L("nopf0")}:')
    k(f's_mul_i32 s92, s40, 10240',f's_add_u32 s92, s92, {OFF["MEM"]}')
    k(f's_mul_i32 s93, s45, 6144',f's_add_u32 s93, s93, {OFF["QKVM"]}')
    k(f's_mul_i32 s94, s46, 6144',f's_add_u32 s94, s94, {OFF["QKVM"]}')
    k(f's_lshl_b32 s95, s41, 10',f's_add_u32 s95, s95, {OFF["PART"]}')
    TQ=64; TK=96; TKM=128; TV=144; TVM=176; TS=192; TP=204; TO=212
    k('s_sub_u32 s12, s41, 20','s_lshr_b32 s12, s12, 1','s_add_u32 s12, s12, s44','s_and_b32 s91, s41, 1',
      's_lshl_b32 s13, s12, 12','s_lshl_b32 s14, s91, 18','s_add_u32 s68, s13, s14',f's_add_u32 s68, s68, {OFF["QK"]}',f's_add_u32 s69, s13, {OFF["QK"]+128*KB}',
      's_lshl_b32 s70, s12, 13',f's_add_u32 s70, s70, {OFF["VT"]}','s_mul_i32 s71, s12, 6144',f's_add_u32 s71, s71, {OFF["QKVM"]}',
      's_lshl_b32 s14, s91, 17','s_add_u32 s88, s13, s14',f's_add_u32 s88, s88, {OFF["O"]}','s_mov_b32 s89, 0','s_mov_b32 s90, 0')
    def tpf():
        for ks in range(4): k(f'buffer_load_dwordx4 {vr(TQ+4*ks)}, v2, s[8:11], s68 offen offset:{ks*KB}{LR}')
        for kt in range(2):
            k(f's_add_u32 s12, s69, {kt*256*KB}')
            for ks in range(4): k(f'buffer_load_dwordx4 {vr(TK+16*kt+4*ks)}, v2, s[8:11], s12 offen offset:{ks*KB}{LR}')
        for hf in range(2):
            k(f's_add_u32 s12, s70, {hf*4096}')
            for e in range(4): k(f'buffer_load_dwordx4 {vr(TV+16*hf+4*e)}, v2, s[8:11], s12 offen offset:{e*KB}{LR}')
        k(f's_add_u32 s68, s68, {512*KB}',f's_add_u32 s69, s69, {512*KB}',f's_add_u32 s70, s70, {256*KB}')
        if QRING: k('s_bitset0_b32 s68, 22','s_bitset0_b32 s69, 22','s_bitset0_b32 s70, 21')
    if TATT:
        k('s_cmp_eq_u32 s3, 3',f's_cbranch_scc0 {L("not")}','s_cmp_lt_u32 s41, 20',f's_cbranch_scc1 {L("not")}','s_cmp_ge_u32 s41, 28',f's_cbranch_scc1 {L("not")}','s_mov_b32 s90, 1')
        tpf()
        k(f'{L("not")}:')
    k('s_lshr_b32 s12, s43, 1','s_lshl_b32 s12, s12, 9','s_and_b32 s13, s43, 1','s_lshl_b32 s13, s13, 3','s_add_u32 s12, s12, s13','s_lshl_b32 s13, s3, 11','s_add_u32 s12, s12, s13')
    k('s_cmp_eq_u32 s3, 2',f's_cbranch_scc1 {L("vo")}','v_add_u32 v22, s12, v12',f's_branch {L("vo2")}',f'{L("vo")}:','v_add_u32 v22, s12, v14',f'{L("vo2")}:')
    k('s_mov_b32 s60, 0')
    for i in range(48): k(f'v_mov_b32 v{Q+i}, 0')
    for i in range(4): k(f'v_mov_b32 v{ONE+i}, 0x3f803f80')
    k('s_lshl_b32 s62, s3, 10','v_add_u32 v23, s62, v2','s_cmp_eq_u32 s3, 0','s_cselect_b32 s67, 9216, 0','s_waitcnt vmcnt(0)')
    k(f'{L("loop")}:')
    ts(0)
    k(f's_and_b32 s12, s60, {RING-1}',f's_mul_i32 s13, s12, {8*10240}','s_add_u32 s56, s92, s13',f's_mul_i32 s13, s12, {32*6144}','s_add_u32 s57, s93, s13','s_add_u32 s58, s94, s13',
      f's_mul_i32 s13, s12, {8*20*KB}','s_add_u32 s59, s95, s13',f's_add_u32 s47, s60, {WARM}',f's_and_b32 s47, s47, {RING-1}')
    k('s_and_b32 s12, s60, 1','s_mul_i32 s63, s12, 10240',f's_add_u32 s63, s63, {MB0}','v_add_u32 v18, s63, v23')
    if WARM:
        k('s_cmp_eq_u32 s3, 3',f's_cbranch_scc0 {L("nw")}',f's_cmp_gt_u32 s60, {63-WARM}',f's_cbranch_scc1 {L("nw")}')
        k(f's_mul_i32 s12, s47, {32*6144}',f's_mul_i32 s13, s44, 6144','s_add_u32 s12, s12, s13',f's_add_u32 s12, s12, {OFF["QKVM"]}','s_lshl_b32 s13, s41, 10','s_add_u32 s12, s12, s13')
        k(f's_mul_i32 s15, s47, {8*10240}','s_add_u32 s15, s15, s92')
        k(f's_sub_u32 s14, s15, {24*1024}','s_add_u32 s14, s14, s13','s_cmp_lt_u32 s41, 24','s_cselect_b32 s12, s12, s14',
          f'buffer_store_dwordx4 v[56:59], v2, s[8:11], s12 offen{LS}',
          's_add_u32 s14, s15, 8192','s_and_b32 s13, s13, 1024','s_add_u32 s14, s14, s13',f'buffer_store_dwordx4 v[56:59], v2, s[8:11], s14 offen{LS}','s_waitcnt vmcnt(0)')
        k(f'{L("nw")}:')
    k('s_cmp_eq_u32 s3, 3',f's_cbranch_scc1 {L("A3")}')
    k('s_add_u32 s64, s56, 3072','s_add_u32 s65, s56, 6144','s_add_u32 s66, s56, s67')
    def aiss(st):
        b0=M+16*st
        k(f'buffer_load_dwordx4 {vr(b0)}, v23, s[8:11], s56 offen sc1',f'buffer_load_dwordx4 {vr(b0+4)}, v23, s[8:11], s64 offen sc1',
          f'buffer_load_dwordx4 {vr(b0+8)}, v23, s[8:11], s65 offen sc1',f'buffer_load_dwordx4 {vr(b0+12)}, v23, s[8:11], s66 offen sc1')
    if PIPEA: aiss(0)
    k(f's_mov_b32 s61, {SPIN}',f'{L("Ap")}:')
    for st in range(2):
        b0=M+16*st
        aiss(1-st) if PIPEA else aiss(st)
        k('s_waitcnt vmcnt(4)' if PIPEA else 's_waitcnt vmcnt(0)',f'v_max3_u32 v{T}, v{b0}, v{b0+2}, v{b0+4}',f'v_max3_u32 v{T+1}, v{b0+6}, v{b0+8}, v{b0+10}',f'v_max3_u32 v{T}, v{T}, v{b0+12}, v{b0+14}',f'v_max_u32 v{T}, v{T}, v{T+1}')
        k(f'v_cmp_eq_u32 vcc, -1, v{T}','s_sub_u32 s61, s61, 1','s_cmp_eq_u32 s61, 0',f's_cbranch_scc1 {L("Ad%d"%st)}',f's_cbranch_vccz {L("Ad%d"%st)}')
    k(f's_branch {L("Ap")}')
    for st in range(2):
        b0=M+16*st
        k(f'{L("Ad%d"%st)}:',f'ds_write_b128 v18, {vr(b0)}',f'ds_write_b128 v18, {vr(b0+4)} offset:3072',f'ds_write_b128 v18, {vr(b0+8)} offset:6144',
          's_cmp_eq_u32 s3, 0',f's_cbranch_scc0 {L("A3")}',f'ds_write_b128 v18, {vr(b0+12)} offset:9216',f's_branch {L("A3")}')
    k(f'{L("A3")}:')
    if TRACE: k('s_cmp_eq_u32 s3, 3',f's_cbranch_scc1 {L("t4")}',f's_sub_u32 s84, {SPIN}, s61',f'{L("t4")}:')
    k('v_add_u32 v18, s63, v12','s_waitcnt lgkmcnt(0)','s_barrier')
    ts(1)
    k('s_cmp_eq_u32 s3, 3',f's_cbranch_scc1 {L("B")}')
    if TRACE: k('s_waitcnt lgkmcnt(0)')
    for ks in range(12): k(f'ds_read_b128 {vr(MF+4*ks)}, v18 offset:{ks*512}')
    for sw in (0,1):
        if sw==0: k('s_cmp_eq_u32 s3, 2',f's_cbranch_scc1 {L("Av")}')
        else: k(f'{L("Av")}:')
        for ks in range(20):
            k(f's_waitcnt lgkmcnt({min(11,19-ks)})')
            A,B=(ar(4*ks),vr(MF+4*(ks%12))) if sw==0 else (vr(MF+4*(ks%12)),ar(4*ks))
            k(f'v_mfma_f32_16x16x32_bf16 {vr(D)}, {A}, {B}, {vr(D) if ks else 0}')
            if ks+12<20: k(f'ds_read_b128 {vr(MF+4*ks)}, v18 offset:{(ks+12)*512}')
        k('s_nop 7',f'v_cvt_pk_bf16_f32 v{PT}, v{D}, v{D+1}',f'v_cvt_pk_bf16_f32 v{PT+1}, v{D+2}, v{D+3}',f'v_min_u32 v{PT}, v{PT}, v21')
        k(f's_mov_b64 exec, s[{50 if sw==0 else 52}:{51 if sw==0 else 53}]',f'buffer_store_dwordx2 {vr(PT,2)}, v22, s[8:11], s57 offen{LS}','s_mov_b64 exec, -1')
        if sw==0: k(f's_branch {L("B")}')
    k(f'{L("B")}:','s_cmp_ge_u32 s41, 20',f's_cbranch_scc1 {L("hi")}',f's_cmp_eq_u32 s60, {NSTEP-1}',f's_cbranch_scc1 {L("end")}')
    ts(2)
    if TOK and W3DMA:
        k('s_cmp_eq_u32 s3, 3',f's_cbranch_scc0 {L("bsl")}','s_cmp_gt_u32 s60, 60',f's_cbranch_scc1 {L("bsl")}',
          's_add_u32 s25, s60, 3','s_mul_i32 s20, s25, 40960',f's_add_u32 s20, s20, {OFF["XN"]}')
        dma_pre()
        for i in range(W3DMA): k(f's_add_u32 m0, s26, {i*KB}',f's_add_u32 s12, s20, {i*KB}','buffer_load_dwordx4 v2, s[8:11], s12 offen lds')
        k(f's_branch {L("bsd")}',f'{L("bsl")}:')
    k(f's_sleep {BSLEEP}') if BSLEEP else None
    k(f'{L("bsd")}:')
    k(f's_mov_b32 s61, {SPIN}',f'{L("Bp")}:','s_mov_b64 exec, s[50:51]')
    for ks in range(4): k(f'buffer_load_dwordx4 {vr(Q+4*ks)}, v12, s[8:11], s58 offen offset:{ks*512} sc1')
    for ks in range(4): k(f'buffer_load_dwordx4 {vr(KM+4*ks)}, v12, s[8:11], s58 offen offset:{2048+ks*512} sc1')
    k('s_add_u32 s12, s58, 4096','s_mov_b64 exec, s[52:53]')
    for ep in range(4): k(f'buffer_load_dwordx4 {vr(VM+4*ep)}, v14, s[8:11], s12 offen offset:{ep*512} sc1')
    k('s_mov_b64 exec, -1')
    for i in range(12):
        k(f's_waitcnt vmcnt({11-i})')
        b=Q+4*i
        if i==0: k(f'v_max_u32 v{T}, v{b}, v{b+2}')
        else: k(f'v_max3_u32 v{T}, v{T}, v{b}, v{b+2}')
        if i<4:
            for t in range(2): k(f'v_mfma_f32_16x16x32_bf16 {vr(S+4*t)}, {ar(112+16*t+4*i)}, {vr(Q+4*i)}, {vr(S+4*t) if i else 0}')
        elif i<8:
            k(f'v_mfma_f32_16x16x32_bf16 {vr(S+8)}, {vr(KM+4*(i-4))}, {vr(Q+4*(i-4))}, {vr(S+8) if i>4 else 0}')
    k(f'v_cmp_eq_u32 vcc, -1, v{T}','s_sub_u32 s61, s61, 1','s_cmp_eq_u32 s61, 0',f's_cbranch_scc1 {L("Bd")}',f's_cbranch_vccnz {L("Bp")}',f'{L("Bd")}:')
    ts(3)
    if TRACE: k('s_cmp_eq_u32 s3, 3',f's_cbranch_scc1 {L("t3")}',f's_sub_u32 s82, {SPIN}, s61',f'{L("t3")}:')
    if EARLYK: pf_k()
    vals=[S+i for i in range(12)]
    for i in range(4): k(f'v_add_f32 v{S+8+i}, v{S+8+i}, v{MM}')
    m=T
    k(f'v_max3_f32 v{m}, v{S}, v{S+1}, v{S+2}',f'v_max3_f32 v{m+1}, v{S+3}, v{S+4}, v{S+5}',f'v_max3_f32 v{m}, v{m}, v{S+6}, v{S+7}',f'v_max3_f32 v{m+1}, v{m+1}, v{S+8}, v{S+9}',
      f'v_max3_f32 v{m}, v{m}, v{S+10}, v{S+11}',f'v_max_f32 v{m}, v{m}, v{m+1}')
    xred(k,'v_max_f32',m,T+1)
    k(f'v_mul_f32 v{m}, 0x{CS:x}, v{m}',f's_mov_b32 s39, 0x{CS:x}')
    for v in vals: k(f'v_fma_f32 v{v}, v{v}, s39, -v{m}')
    for v in vals: k(f'v_exp_f32 v{v}, v{v}')
    k('s_nop 0')
    for t in range(3): k(f'v_cvt_pk_bf16_f32 v{P+2*t}, v{S+4*t}, v{S+4*t+1}',f'v_cvt_pk_bf16_f32 v{P+2*t+1}, v{S+4*t+2}, v{S+4*t+3}')
    k('s_nop 1')
    def pv1(et): k(f'v_mfma_f32_16x16x32_bf16 {vr(O+4*et)}, {ar(144+4*et)}, {vr(P)}, 0')
    def pv2(et): k(f'v_mfma_f32_16x16x16_bf16 {vr(O+4*et)}, {vr(VM+2*et,2)}, {vr(P+4,2)}, {vr(O+4*et)}')
    def cv(c):
        r0=O+8*c; t=OB+4*c
        k(f'v_cvt_pk_bf16_f32 v{t}, v{r0}, v{r0+1}',f'v_cvt_pk_bf16_f32 v{t+1}, v{r0+2}, v{r0+3}',
          f'v_cvt_pk_bf16_f32 v{t+2}, v{r0+4}, v{r0+5}',f'v_cvt_pk_bf16_f32 v{t+3}, v{r0+6}, v{r0+7}')
    def wo(c):
        for t in range(2): k(f'v_mfma_f32_16x16x32_bf16 {vr(D+4*t)}, {ar(80+16*t+4*c)}, {vr(OB+4*c)}, {vr(D+4*t) if c else 0}')
    for et in range(8): pv1(et)
    k(f'v_mfma_f32_16x16x32_bf16 {vr(SM)}, {vr(ONE)}, {vr(P)}, 0')
    for et in range(8): pv2(et)
    k(f'v_mfma_f32_16x16x16_bf16 {vr(SM)}, {vr(ONE,2)}, {vr(P+4,2)}, {vr(SM)}')
    k('s_nop 1'); cv(0); cv(1); wo(0); cv(2); wo(1); k(f'v_rcp_f32 v{T}, v{SM}'); cv(3); wo(2); k('s_nop 0'); wo(3)
    k('s_nop 7')
    for i in range(8): k(f'v_mul_f32 v{D+i}, v{D+i}, v{T}')
    k('s_and_b32 s12, s60, 1','s_lshl_b32 s12, s12, 13','s_lshl_b32 s13, s3, 11','s_add_u32 s13, s13, s12','v_add_u32 v18, s13, v2')
    k(f'ds_write_b128 v18, {vr(D)}',f'ds_write_b128 v18, {vr(D+4)} offset:1024','s_waitcnt lgkmcnt(0)','s_barrier')
    ts(4)
    k('s_cmp_eq_u32 s3, 3',f's_cbranch_scc0 {L("pf")}')
    k('v_add_u32 v18, s12, v16')
    for hh in range(4): k(f'ds_read_b128 {vr(M+4*hh)}, v18 offset:{hh*2048}')
    k('s_waitcnt lgkmcnt(0)')
    for q in range(4): k(f'v_add_f32 v{M+q}, v{M+q}, v{M+4+q}',f'v_add_f32 v{M+8+q}, v{M+8+q}, v{M+12+q}',f'v_add_f32 v{M+q}, v{M+q}, v{M+8+q}')
    k(f'v_min_u32 v{M}, v{M}, v21',f's_mul_i32 s12, s40, {20*KB}','s_add_u32 s12, s12, s59',f'buffer_store_dwordx4 {vr(M)}, v2, s[8:11], s12 offen sc1')
    ts(5)
    k('s_add_u32 s48, s60, 1',f's_and_b32 s48, s48, {RING-1}',f's_mul_i32 s48, s48, {8*10240}','s_add_u32 s48, s48, s92')
    if not EARLYK: pf_k()
    pf_v()
    if CSLEEP: k(f's_sleep {CSLEEP}')
    def ciss(st):
        k('s_mov_b32 s12, s59')
        for x in range(8): k(f'buffer_load_dwordx4 {vr(M+16+32*st+4*x)}, v2, s[8:11], s12 offen sc1',f's_add_u32 s12, s12, {20*KB}')
    if PIPE: ciss(0)
    k(f's_mov_b32 s61, {SPIN}',f'{L("Cp")}:')
    for st in range(2):
        b=M+16+32*st
        ciss(1-st) if PIPE else ciss(st)
        k('s_waitcnt vmcnt(8)' if PIPE else 's_waitcnt vmcnt(0)')
        k(f'v_max3_u32 v{T}, v{b}, v{b+4}, v{b+8}',f'v_max3_u32 v{T+1}, v{b+12}, v{b+16}, v{b+20}',f'v_max3_u32 v{T}, v{T}, v{b+24}, v{b+28}',f'v_max_u32 v{T}, v{T}, v{T+1}')
        k(f'v_cmp_eq_u32 vcc, -1, v{T}','s_sub_u32 s61, s61, 1','s_cmp_eq_u32 s61, 0',f's_cbranch_scc1 {L("Cd%d"%st)}',f's_cbranch_vccz {L("Cd%d"%st)}')
    k(f's_branch {L("Cp")}')
    for st in range(2):
        b=M+16+32*st
        k(f'{L("Cd%d"%st)}:')
        ts(6)
        for q in range(4):
            k(f'v_add_f32 v{b+q}, v{b+q}, v{b+4+q}',f'v_add_f32 v{b+8+q}, v{b+8+q}, v{b+12+q}',f'v_add_f32 v{b+16+q}, v{b+16+q}, v{b+20+q}',f'v_add_f32 v{b+24+q}, v{b+24+q}, v{b+28+q}',
              f'v_add_f32 v{b+q}, v{b+q}, v{b+8+q}',f'v_add_f32 v{b+16+q}, v{b+16+q}, v{b+24+q}',f'v_add_f32 v{b+q}, v{b+q}, v{b+16+q}')
        k(f'v_cvt_pk_bf16_f32 v{PT}, v{b}, v{b+1}',f'v_cvt_pk_bf16_f32 v{PT+1}, v{b+2}, v{b+3}',f'v_min_u32 v{PT}, v{PT}, v21')
        if st==0: k(f's_branch {L("Ce")}')
    k(f'{L("Ce")}:')
    k('s_lshl_b32 s12, s41, 9','s_add_u32 s12, s12, s48',f'buffer_store_dwordx2 {vr(PT,2)}, v17, s[8:11], s12 offen{LS}')
    k(f's_branch {L("next")}',f'{L("pf")}:')
    if PSLEEP: k(f's_sleep {PSLEEP}')
    if WARM and PFILL:
        k('s_cmp_eq_u32 s3, 0',f's_cbranch_scc0 {L("npf")}',f's_cmp_gt_u32 s60, {63-WARM}',f's_cbranch_scc1 {L("npf")}',
          f's_mul_i32 s12, s40, {20*KB}','s_add_u32 s12, s12, s95',f's_mul_i32 s13, s47, {8*20*KB}','s_add_u32 s12, s12, s13','buffer_store_dwordx4 v[56:59], v2, s[8:11], s12 offen sc1',f'{L("npf")}:')
    if not EARLYK: pf_k()
    if not PVL: pf_v()
    if TOK: window('lo')
    if PVL: pf_v()
    k(f'{L("next")}:')
    if TRACE:
        ts(7)
        k('s_waitcnt lgkmcnt(0)')
        k('s_lshl_b32 s12, s40, 5','s_add_u32 s12, s12, s41','s_lshl_b32 s12, s12, 2','s_add_u32 s12, s12, s3','s_lshl_b32 s12, s12, 11','s_lshl_b32 s13, s60, 5','s_add_u32 s12, s12, s13',f's_add_u32 s12, s12, {OFF["TR"]}')
        for i in range(8): k(f'v_mov_b32 v{24+i}, s{72+2*i}')
        k('v_mov_b32 v32, 0','s_mov_b64 exec, 1','buffer_store_dwordx4 v[24:27], v32, s[8:11], s12 offen','buffer_store_dwordx4 v[28:31], v32, s[8:11], s12 offen offset:16','s_mov_b64 exec, -1')
    k('s_add_u32 s60, s60, 1',f's_branch {L("loop")}')
    k(f'{L("end")}:','s_endpgm')
    k(f'{L("hi")}:')
    if TOK:
        k('s_cmp_eq_u32 s3, 3',f's_cbranch_scc1 {L("hi3")}')
        if HSLEEP: k(f's_sleep {HSLEEP}')
        window('hi')
        k(f's_branch {L("hid")}',f'{L("hi3")}:')
    if TATT:
        k('s_cmp_eq_u32 s90, 0',f's_cbranch_scc1 {L("hid")}','s_cmp_eq_u32 s60, 0',f's_cbranch_scc1 {L("hid")}')
        k(f'{L("tl")}:',f's_mov_b32 s61, {SPIN}',f's_and_b32 s49, s89, {RING-1}',f's_mul_i32 s49, s49, {32*6144}','s_add_u32 s49, s49, s71',f'{L("tp")}:')
        for ks in range(4): k(f'buffer_load_dwordx4 {vr(TKM+4*ks)}, v12, s[8:11], s49 offen offset:{2048+ks*512} sc1')
        k('s_add_u32 s12, s49, 4096')
        for ep in range(4): k(f'buffer_load_dwordx4 {vr(TVM+4*ep)}, v14, s[8:11], s12 offen offset:{ep*512} sc1')
        k('s_waitcnt vmcnt(0)')
        regs=[TKM+4*i for i in range(4)]+[TVM+4*i for i in range(4)]
        for i,b in enumerate(regs):
            if i==0: k(f'v_max_u32 v{T}, v{b}, v{b+2}')
            else: k(f'v_max3_u32 v{T}, v{T}, v{b}, v{b+2}')
        k(f'v_cmp_eq_u32 vcc, -1, v{T}','s_sub_u32 s61, s61, 1','s_cmp_eq_u32 s61, 0',f's_cbranch_scc1 {L("td")}',f's_cbranch_vccnz {L("tp")}',f'{L("td")}:')
        k('s_cmp_eq_u32 s91, 0',f's_cbranch_scc0 {L("tq1")}')
        attn_core(k,TQ,TK,TKM,TV,TVM,TS,TP,TO,T,[0],0,MB,MM)
        k(f's_branch {L("tq2")}',f'{L("tq1")}:')
        attn_core(k,TQ,TK,TKM,TV,TVM,TS,TP,TO,T,[0,1],1,MB,MM)
        k(f'{L("tq2")}:')
        for c in range(4):
            r0=TO+8*c; t=TKM+4*c
            k(f'v_cvt_pk_bf16_f32 v{t}, v{r0}, v{r0+1}',f'v_cvt_pk_bf16_f32 v{t+1}, v{r0+2}, v{r0+3}',
              f'v_cvt_pk_bf16_f32 v{t+2}, v{r0+4}, v{r0+5}',f'v_cvt_pk_bf16_f32 v{t+3}, v{r0+6}, v{r0+7}',
              f'buffer_store_dwordx4 {vr(t)}, v2, s[8:11], s88 offen offset:{c*KB}')
        k(f's_add_u32 s88, s88, {256*KB}','s_add_u32 s89, s89, 1','s_cmp_ge_u32 s89, 64',f's_cbranch_scc1 {L("end")}')
        tpf()
        k(f's_cmp_eq_u32 s60, {NSTEP-1}',f's_cbranch_scc1 {L("tl")}')
    k(f'{L("hid")}:',f's_cmp_eq_u32 s60, {NSTEP-1}',f's_cbranch_scc1 {L("end")}',f's_branch {L("next")}')
def gen_chain(use_fast=False):
    k=K('chain_kernel',vgpr=248,agpr=176,sgpr=96)
    k('s_cmp_ge_u32 s2, 256','s_cbranch_scc1 chain_done')
    k.srd(8,'ws',WS_BYTES)
    k('v_lshrrev_b32 v1, 6, v0','s_nop 0','v_readfirstlane_b32 s3, v1','v_and_b32 v0, 63, v0','v_lshlrev_b32 v2, 4, v0')
    if TOK and EARLYDMA:
        k('s_cmp_eq_u32 s3, 3','s_cbranch_scc1 ch_nodma',f's_mul_i32 s21, s3, {14*KB}')
        for j in range(2):
            for i in range(14):
                k(f's_add_u32 s12, s21, {i*KB}',f's_min_u32 s12, s12, {39*KB}',f's_add_u32 m0, s12, {XB0+j*40960}',f's_add_u32 s12, s12, {OFF["XN"]+j*40960}','buffer_load_dwordx4 v2, s[8:11], s12 offen lds')
        k('ch_nodma:')
    if use_fast:
        k.srd(64,'dbg',256)
        k('s_getreg_b32 s40, hwreg(HW_REG_XCC_ID)','s_and_b32 s40, s40, 7')
        k('s_cmp_eq_u32 s3, 0','s_cbranch_scc0 ch_reg_wait')
        k('v_mov_b32 v4, 1','s_lshl_b32 s12, s40, 2','v_mov_b32 v5, s12','s_mov_b64 exec, 1',
          'buffer_atomic_add v4, v5, s[64:67], 0 offen sc0 sc1','s_waitcnt vmcnt(0)',
          'v_mov_b32 v6, 1','v_mov_b32 v7, 32','buffer_atomic_add v6, v7, s[64:67], 0 offen sc0 sc1','s_waitcnt vmcnt(0)',
          's_mov_b64 exec, -1')
        k(f's_mov_b32 s61, {SPIN}','v_lshlrev_b32 v8, 2, v0','ch_reg_poll:','buffer_load_dword v9, v8, s[64:67], 0 offen sc1','s_waitcnt vmcnt(0)',
          'v_readlane_b32 s12, v9, 8','s_sub_u32 s61, s61, 1','s_cmp_eq_u32 s61, 0','s_cbranch_scc1 ch_reg_got','s_cmp_lt_u32 s12, 256','s_cbranch_scc1 ch_reg_poll','ch_reg_got:')
        k('v_cmp_ne_u32 vcc, 32, v9','s_nop 1','s_and_b32 s12, vcc_lo, 0xff','v_readfirstlane_b32 s13, v4','v_readfirstlane_b32 s14, v6',
          's_cmp_eq_u32 s12, 0',f's_cselect_b32 s15, {0 if FORCESLOW else 1}, 0',
          'v_mov_b32 v11, s13','v_mov_b32 v12, s14','v_mov_b32 v10, s15','v_mov_b32 v8, 16384','ds_write_b96 v8, v[10:12]','s_waitcnt lgkmcnt(0)')
        k('ch_reg_wait:','s_barrier','v_mov_b32 v8, 16384','ds_read_b96 v[12:14], v8','s_waitcnt lgkmcnt(0)',
          'v_readfirstlane_b32 s15, v12','v_readfirstlane_b32 s41, v13','v_readfirstlane_b32 s14, v14','s_cmp_eq_u32 s15, 1','s_cbranch_scc0 ch_slow')
        chain_body(k,True,'f')
        k('ch_slow:','s_lshr_b32 s40, s14, 5','s_and_b32 s41, s14, 31')
    else:
        k('s_lshr_b32 s40, s2, 5','s_and_b32 s41, s2, 31')
    chain_body(k,False,'s')
    k('chain_done:')
    return k,(XB0+81920 if TOK else 16448+20480)
```

```python
from common import *
from attn import *
NSTEP=64
SPIN=1<<16
TRACE=False
CSLEEP=0
NOPF=0
PSLEEP=0
WARM=2
PIPE=0
PIPEA=0
BSLEEP=4
TATT=1
W3DMA=0
PFSC=1
FORCESLOW=0
EARLYDMA=0
DP=2
PVL=0
EARLYV=1
EARLYK=1
QRING=1
TOK=1
HSLEEP=32
XB0=40960
RING=8
PFILL=1
def chain_body(k, fast, tag):
    def ts(i):
        if TRACE: k(f's_memtime s[{72+2*i}:{73+2*i}]')
    LS='' if fast else ' sc1'
    LR=' sc1' if (PFSC or not fast) else ''
    started=[False]
    M=64; Q=192; KM=208; VM=224; S=112; P=124; O=132; T=8; MM=3; OB=164; D=180; PT=188; ONE=240; SM=244; MB0=16448; MF=96
    L=lambda n: f'ch_{tag}_{n}'
    MB=36
    lane_consts(k,MB,MM,T)
    k('v_and_b32 v12, 7, v0','v_lshrrev_b32 v13, 4, v0','v_lshlrev_b32 v12, 4, v12','v_lshl_add_u32 v12, v13, 7, v12')
    k('v_and_b32 v14, 15, v0','v_and_b32 v15, 1, v13','v_lshlrev_b32 v14, 4, v14','v_lshl_add_u32 v14, v15, 8, v14')
    k('v_lshrrev_b32 v18, 5, v0','v_bfe_u32 v19, v0, 3, 2','v_and_b32 v20, 7, v0',
      'v_lshlrev_b32 v16, 10, v18','v_lshl_add_u32 v16, v19, 8, v16','v_lshl_add_u32 v16, v20, 4, v16',
      'v_lshlrev_b32 v17, 7, v19','v_lshl_add_u32 v17, v20, 4, v17','v_lshl_add_u32 v17, v18, 3, v17')
    k('v_mov_b32 v21, -2')
    for i in range(4): k(f'v_mov_b32 v{56+i}, -1')
    k('v_and_b32 v18, 8, v0','v_cmp_eq_u32 s[50:51], 0, v18','s_mov_b32 s52, -1','s_mov_b32 s53, 0')
    k('s_lshr_b32 s42, s41, 3','s_and_b32 s43, s41, 7','s_lshl_b32 s44, s40, 2','s_add_u32 s45, s44, s42')
    k('s_cmp_eq_u32 s3, 3',f's_cbranch_scc1 {L("nowa")}')
    k('s_lshl_b32 s12, s3, 8','s_lshl_b32 s13, s45, 3','s_add_u32 s12, s12, s13','s_add_u32 s12, s12, s43',f's_mul_i32 s12, s12, {20*KB}',f's_add_u32 s12, s12, {OFF["WQKV"]}')
    for ks in range(20):
        if ks%4==0 and ks: k('s_add_u32 s12, s12, 4096')
        k(f'buffer_load_dwordx4 {ar(4*ks)}, v2, s[8:11], s12 offen offset:{(ks%4)*KB}')
    k(f'{L("nowa")}:')
    k('s_add_u32 s46, s44, s3')
    k('s_cmp_ge_u32 s41, 20',f's_cbranch_scc1 {L("nowo")}')
    for t in range(2):
        k('s_lshl_b32 s12, s41, 1',f's_add_u32 s12, s12, {t}','s_lshl_b32 s12, s12, 7','s_lshl_b32 s13, s46, 2','s_add_u32 s12, s12, s13','s_lshl_b32 s12, s12, 10',f's_add_u32 s12, s12, {OFF["WO"]}')
        for c in range(4): k(f'buffer_load_dwordx4 {ar(80+16*t+4*c)}, v2, s[8:11], s12 offen offset:{c*KB}')
    k('s_lshl_b32 s54, s46, 12',f's_add_u32 s54, s54, {OFF["QK"]+128*KB}','s_lshl_b32 s55, s46, 13',f's_add_u32 s55, s55, {OFF["VT"]}')
    def pf_k():
        if NOPF and started[0]: return
        for kt in range(2):
            k(f's_add_u32 s12, s54, {kt*256*KB}')
            for ks in range(4): k(f'buffer_load_dwordx4 {ar(112+16*kt+4*ks)}, v2, s[8:11], s12 offen offset:{ks*KB}{LR}')
        k(f's_add_u32 s54, s54, {512*KB}')
        if QRING: k('s_bitset0_b32 s54, 22')
    def pf_v():
        if NOPF and started[0]: return
        for hf in range(2):
            k(f's_add_u32 s12, s55, {hf*4096}')
            for e in range(4): k(f'buffer_load_dwordx4 {ar(144+16*hf+4*e)}, v2, s[8:11], s12 offen offset:{e*KB}{LR}')
        k(f's_add_u32 s55, s55, {256*KB}')
        if QRING: k('s_bitset0_b32 s55, 21')
    k(f'{L("nowo")}:')
    k(f's_mov_b32 s20, {OFF["XN"]}',f's_mul_i32 s21, s3, {14*KB}','s_mov_b32 s24, 0','s_mov_b32 s25, 0')
    k('s_lshl_b32 s12, s45, 2','s_lshr_b32 s13, s43, 1','s_add_u32 s12, s12, s13','s_lshl_b32 s13, s3, 7','s_add_u32 s12, s12, s13','s_lshl_b32 s12, s12, 10',f's_add_u32 s22, s12, {OFF["QK"]}',
      's_lshl_b32 s12, s45, 3','s_add_u32 s12, s12, s43','s_lshl_b32 s12, s12, 10',f's_add_u32 s23, s12, {OFF["VT"]}',
      's_and_b32 s12, s43, 1','s_lshl_b32 s12, s12, 3','v_add_u32 v42, s12, v2')
    def dma1(i,b='s21'):
        k(f's_add_u32 s12, {b}, {i*KB}',f's_min_u32 s12, s12, {39*KB}','s_add_u32 m0, s12, s26','s_add_u32 s12, s12, s20','buffer_load_dwordx4 v2, s[8:11], s12 offen lds')
    def dma_pre(): k('s_and_b32 s26, s25, 1','s_mul_i32 s26, s26, 40960',f's_add_u32 s26, s26, {XB0}')
    def dma_post(): k('s_add_u32 s20, s20, 40960','s_add_u32 s25, s25, 1')
    def tok(dma,tg):
        TX=96; D0=144
        k('s_and_b32 s12, s24, 1','s_mul_i32 s12, s12, 40960',f's_add_u32 s12, s12, {XB0}','v_add_u32 v40, s12, v2')
        if dma: dma_pre()
        nd=14 if dma!=2 else (40-W3DMA+2)//3
        if dma==2: k(f's_mul_i32 s27, s3, {nd*KB}',f's_add_u32 s27, s27, {W3DMA*KB}')
        seq=[(ks,mt) for ks in range(20) for mt in range(2)]
        rd=lambda n: k(f'ds_read_b128 {vr(TX+4*(n%12))}, v40 offset:{(seq[n][1]*20+seq[n][0])*KB}')
        for n in range(12): rd(n)
        for sw in (0,1):
            if sw==0: k('s_cmp_eq_u32 s3, 2',f's_cbranch_scc1 {L("tv"+tg)}')
            else: k(f'{L("tv"+tg)}:')
            for n,(ks,mt) in enumerate(seq):
                k(f's_waitcnt lgkmcnt({min(11,39-n)})')
                X=vr(TX+4*(n%12)); A,B=(ar(4*ks),X) if sw==0 else (X,ar(4*ks))
                k(f'v_mfma_f32_16x16x32_bf16 {vr(D0+4*mt)}, {A}, {B}, {vr(D0+4*mt) if ks else 0}')
                if n+12<40: rd(n+12)
                if dma and DP==2 and n%2==1 and n//2<nd: dma1(n//2,'s27' if dma==2 else 's21')
                if dma and DP==3 and n%3==0 and n//3<nd: dma1(n//3,'s27' if dma==2 else 's21')
            k('s_nop 7','s_nop 7')
            for q in range(4): k(f'v_cvt_pk_bf16_f32 v{D0+8+q}, v{D0+2*q}, v{D0+2*q+1}')
            if sw==0:
                k(f'buffer_store_dwordx2 {vr(D0+8,2)}, v42, s[8:11], s22 offen{LS}',f's_add_u32 s12, s22, {256*KB}',f'buffer_store_dwordx2 {vr(D0+10,2)}, v42, s[8:11], s12 offen{LS}',f's_branch {L("te"+tg)}')
            else: k(f'buffer_store_dwordx4 {vr(D0+8)}, v2, s[8:11], s23 offen{LS}',f'{L("te"+tg)}:')
        k(f's_add_u32 s22, s22, {512*KB}',f's_add_u32 s23, s23, {256*KB}','s_add_u32 s24, s24, 1')
        if QRING: k('s_bitset0_b32 s22, 22','s_bitset0_b32 s23, 21')
        if dma: dma_post()
    def window(tg):
        k('s_cmp_gt_u32 s60, 61',f's_cbranch_scc1 {L("wx"+tg)}','s_cmp_eq_u32 s60, 61',f's_cbranch_scc1 {L("wn"+tg)}')
        tok(2 if (W3DMA and tg=='lo') else True,tg+'a')
        k(f's_branch {L("wx"+tg)}',f'{L("wn"+tg)}:')
        tok(False,tg+'b')
        k(f'{L("wx"+tg)}:')
    if TOK:
        if EARLYDMA: k(f's_mov_b32 s20, {OFF["XN"]+2*40960}','s_mov_b32 s25, 2')
        else:
            k('s_cmp_eq_u32 s3, 3',f's_cbranch_scc1 {L("p1")}')
            for j in range(2):
                dma_pre()
                for i in range(14): dma1(i)
                dma_post()
        k(f'{L("p1")}:','s_waitcnt vmcnt(0)','s_barrier','s_cmp_eq_u32 s3, 3',f's_cbranch_scc1 {L("p2")}')
        tok(False,'p0'); tok(False,'p1')
        k(f'{L("p2")}:','s_waitcnt vmcnt(0)','s_barrier','s_cmp_eq_u32 s3, 3',f's_cbranch_scc1 {L("p3")}')
        dma_pre()
        for i in range(14): dma1(i)
        dma_post()
        k('s_cmp_eq_u32 s3, 0',f's_cbranch_scc0 {L("p3")}')
        k('s_lshl_b32 s12, s40, 2','s_add_u32 s12, s12, 64','v_mov_b32 v44, 1','v_mov_b32 v45, s12','s_mov_b64 exec, 1','buffer_atomic_add v44, v45, s[64:67], 0 offen sc1',
          f's_mov_b32 s61, {SPIN}',f'{L("sy")}:','buffer_load_dword v46, v45, s[64:67], 0 offen sc1','s_waitcnt vmcnt(0)','v_readfirstlane_b32 s12, v46',
          's_sub_u32 s61, s61, 1','s_cmp_eq_u32 s61, 0',f's_cbranch_scc1 {L("sy2")}','s_cmp_lt_u32 s12, 32',f's_cbranch_scc1 {L("sy")}',f'{L("sy2")}:','s_mov_b64 exec, -1')
        k(f'{L("p3")}:','s_barrier')
    k('s_cmp_ge_u32 s41, 20',f's_cbranch_scc1 {L("nopf0")}')
    pf_k(); pf_v()
    started[0]=True
    k(f'{L("nopf0")}:')
    k(f's_mul_i32 s92, s40, 10240',f's_add_u32 s92, s92, {OFF["MEM"]}')
    k(f's_mul_i32 s93, s45, 6144',f's_add_u32 s93, s93, {OFF["QKVM"]}')
    k(f's_mul_i32 s94, s46, 6144',f's_add_u32 s94, s94, {OFF["QKVM"]}')
    k(f's_lshl_b32 s95, s41, 10',f's_add_u32 s95, s95, {OFF["PART"]}')
    TQ=64; TK=96; TKM=128; TV=144; TVM=176; TS=192; TP=204; TO=212
    k('s_sub_u32 s12, s41, 20','s_lshr_b32 s12, s12, 1','s_add_u32 s12, s12, s44','s_and_b32 s91, s41, 1',
      's_lshl_b32 s13, s12, 12','s_lshl_b32 s14, s91, 18','s_add_u32 s68, s13, s14',f's_add_u32 s68, s68, {OFF["QK"]}',f's_add_u32 s69, s13, {OFF["QK"]+128*KB}',
      's_lshl_b32 s70, s12, 13',f's_add_u32 s70, s70, {OFF["VT"]}','s_mul_i32 s71, s12, 6144',f's_add_u32 s71, s71, {OFF["QKVM"]}',
      's_lshl_b32 s14, s91, 17','s_add_u32 s88, s13, s14',f's_add_u32 s88, s88, {OFF["O"]}','s_mov_b32 s89, 0','s_mov_b32 s90, 0')
    def tpf():
        for ks in range(4): k(f'buffer_load_dwordx4 {vr(TQ+4*ks)}, v2, s[8:11], s68 offen offset:{ks*KB}{LR}')
        for kt in range(2):
            k(f's_add_u32 s12, s69, {kt*256*KB}')
            for ks in range(4): k(f'buffer_load_dwordx4 {vr(TK+16*kt+4*ks)}, v2, s[8:11], s12 offen offset:{ks*KB}{LR}')
        for hf in range(2):
            k(f's_add_u32 s12, s70, {hf*4096}')
            for e in range(4): k(f'buffer_load_dwordx4 {vr(TV+16*hf+4*e)}, v2, s[8:11], s12 offen offset:{e*KB}{LR}')
        k(f's_add_u32 s68, s68, {512*KB}',f's_add_u32 s69, s69, {512*KB}',f's_add_u32 s70, s70, {256*KB}')
        if QRING: k('s_bitset0_b32 s68, 22','s_bitset0_b32 s69, 22','s_bitset0_b32 s70, 21')
    if TATT:
        k('s_cmp_eq_u32 s3, 3',f's_cbranch_scc0 {L("not")}','s_cmp_lt_u32 s41, 20',f's_cbranch_scc1 {L("not")}','s_cmp_ge_u32 s41, 28',f's_cbranch_scc1 {L("not")}','s_mov_b32 s90, 1')
        tpf()
        k(f'{L("not")}:')
    k('s_lshr_b32 s12, s43, 1','s_lshl_b32 s12, s12, 9','s_and_b32 s13, s43, 1','s_lshl_b32 s13, s13, 3','s_add_u32 s12, s12, s13','s_lshl_b32 s13, s3, 11','s_add_u32 s12, s12, s13')
    k('s_cmp_eq_u32 s3, 2',f's_cbranch_scc1 {L("vo")}','v_add_u32 v22, s12, v12',f's_branch {L("vo2")}',f'{L("vo")}:','v_add_u32 v22, s12, v14',f'{L("vo2")}:')
    k('s_mov_b32 s60, 0')
    for i in range(48): k(f'v_mov_b32 v{Q+i}, 0')
    for i in range(4): k(f'v_mov_b32 v{ONE+i}, 0x3f803f80')
    k('s_lshl_b32 s62, s3, 10','v_add_u32 v23, s62, v2','s_cmp_eq_u32 s3, 0','s_cselect_b32 s67, 9216, 0','s_waitcnt vmcnt(0)')
    k(f'{L("loop")}:')
    ts(0)
    k(f's_and_b32 s12, s60, {RING-1}',f's_mul_i32 s13, s12, {8*10240}','s_add_u32 s56, s92, s13',f's_mul_i32 s13, s12, {32*6144}','s_add_u32 s57, s93, s13','s_add_u32 s58, s94, s13',
      f's_mul_i32 s13, s12, {8*20*KB}','s_add_u32 s59, s95, s13',f's_add_u32 s47, s60, {WARM}',f's_and_b32 s47, s47, {RING-1}')
    k('s_and_b32 s12, s60, 1','s_mul_i32 s63, s12, 10240',f's_add_u32 s63, s63, {MB0}','v_add_u32 v18, s63, v23')
    if WARM:
        k('s_cmp_eq_u32 s3, 3',f's_cbranch_scc0 {L("nw")}',f's_cmp_gt_u32 s60, {63-WARM}',f's_cbranch_scc1 {L("nw")}')
        k(f's_mul_i32 s12, s47, {32*6144}',f's_mul_i32 s13, s44, 6144','s_add_u32 s12, s12, s13',f's_add_u32 s12, s12, {OFF["QKVM"]}','s_lshl_b32 s13, s41, 10','s_add_u32 s12, s12, s13')
        k(f's_mul_i32 s15, s47, {8*10240}','s_add_u32 s15, s15, s92')
        k(f's_sub_u32 s14, s15, {24*1024}','s_add_u32 s14, s14, s13','s_cmp_lt_u32 s41, 24','s_cselect_b32 s12, s12, s14',
          f'buffer_store_dwordx4 v[56:59], v2, s[8:11], s12 offen{LS}',
          's_add_u32 s14, s15, 8192','s_and_b32 s13, s13, 1024','s_add_u32 s14, s14, s13',f'buffer_store_dwordx4 v[56:59], v2, s[8:11], s14 offen{LS}','s_waitcnt vmcnt(0)')
        k(f'{L("nw")}:')
    k('s_cmp_eq_u32 s3, 3',f's_cbranch_scc1 {L("A3")}')
    k('s_add_u32 s64, s56, 3072','s_add_u32 s65, s56, 6144','s_add_u32 s66, s56, s67')
    def aiss(st):
        b0=M+16*st
        k(f'buffer_load_dwordx4 {vr(b0)}, v23, s[8:11], s56 offen sc1',f'buffer_load_dwordx4 {vr(b0+4)}, v23, s[8:11], s64 offen sc1',
          f'buffer_load_dwordx4 {vr(b0+8)}, v23, s[8:11], s65 offen sc1',f'buffer_load_dwordx4 {vr(b0+12)}, v23, s[8:11], s66 offen sc1')
    if PIPEA: aiss(0)
    k(f's_mov_b32 s61, {SPIN}',f'{L("Ap")}:')
    for st in range(2):
        b0=M+16*st
        aiss(1-st) if PIPEA else aiss(st)
        k('s_waitcnt vmcnt(4)' if PIPEA else 's_waitcnt vmcnt(0)',f'v_max3_u32 v{T}, v{b0}, v{b0+2}, v{b0+4}',f'v_max3_u32 v{T+1}, v{b0+6}, v{b0+8}, v{b0+10}',f'v_max3_u32 v{T}, v{T}, v{b0+12}, v{b0+14}',f'v_max_u32 v{T}, v{T}, v{T+1}')
        k(f'v_cmp_eq_u32 vcc, -1, v{T}','s_sub_u32 s61, s61, 1','s_cmp_eq_u32 s61, 0',f's_cbranch_scc1 {L("Ad%d"%st)}',f's_cbranch_vccz {L("Ad%d"%st)}')
    k(f's_branch {L("Ap")}')
    for st in range(2):
        b0=M+16*st
        k(f'{L("Ad%d"%st)}:',f'ds_write_b128 v18, {vr(b0)}',f'ds_write_b128 v18, {vr(b0+4)} offset:3072',f'ds_write_b128 v18, {vr(b0+8)} offset:6144',
          's_cmp_eq_u32 s3, 0',f's_cbranch_scc0 {L("A3")}',f'ds_write_b128 v18, {vr(b0+12)} offset:9216',f's_branch {L("A3")}')
    k(f'{L("A3")}:')
    if TRACE: k('s_cmp_eq_u32 s3, 3',f's_cbranch_scc1 {L("t4")}',f's_sub_u32 s84, {SPIN}, s61',f'{L("t4")}:')
    k('v_add_u32 v18, s63, v12','s_waitcnt lgkmcnt(0)','s_barrier')
    ts(1)
    k('s_cmp_eq_u32 s3, 3',f's_cbranch_scc1 {L("B")}')
    if TRACE: k('s_waitcnt lgkmcnt(0)')
    for ks in range(12): k(f'ds_read_b128 {vr(MF+4*ks)}, v18 offset:{ks*512}')
    for sw in (0,1):
        if sw==0: k('s_cmp_eq_u32 s3, 2',f's_cbranch_scc1 {L("Av")}')
        else: k(f'{L("Av")}:')
        for ks in range(20):
            k(f's_waitcnt lgkmcnt({min(11,19-ks)})')
            A,B=(ar(4*ks),vr(MF+4*(ks%12))) if sw==0 else (vr(MF+4*(ks%12)),ar(4*ks))
            k(f'v_mfma_f32_16x16x32_bf16 {vr(D)}, {A}, {B}, {vr(D) if ks else 0}')
            if ks+12<20: k(f'ds_read_b128 {vr(MF+4*ks)}, v18 offset:{(ks+12)*512}')
        k('s_nop 7',f'v_cvt_pk_bf16_f32 v{PT}, v{D}, v{D+1}',f'v_cvt_pk_bf16_f32 v{PT+1}, v{D+2}, v{D+3}',f'v_min_u32 v{PT}, v{PT}, v21')
        k(f's_mov_b64 exec, s[{50 if sw==0 else 52}:{51 if sw==0 else 53}]',f'buffer_store_dwordx2 {vr(PT,2)}, v22, s[8:11], s57 offen{LS}','s_mov_b64 exec, -1')
        if sw==0: k(f's_branch {L("B")}')
    k(f'{L("B")}:','s_cmp_ge_u32 s41, 20',f's_cbranch_scc1 {L("hi")}',f's_cmp_eq_u32 s60, {NSTEP-1}',f's_cbranch_scc1 {L("end")}')
    ts(2)
    if TOK and W3DMA:
        k('s_cmp_eq_u32 s3, 3',f's_cbranch_scc0 {L("bsl")}','s_cmp_gt_u32 s60, 60',f's_cbranch_scc1 {L("bsl")}',
          's_add_u32 s25, s60, 3','s_mul_i32 s20, s25, 40960',f's_add_u32 s20, s20, {OFF["XN"]}')
        dma_pre()
        for i in range(W3DMA): k(f's_add_u32 m0, s26, {i*KB}',f's_add_u32 s12, s20, {i*KB}','buffer_load_dwordx4 v2, s[8:11], s12 offen lds')
        k(f's_branch {L("bsd")}',f'{L("bsl")}:')
    k(f's_sleep {BSLEEP}') if BSLEEP else None
    k(f'{L("bsd")}:')
    k(f's_mov_b32 s61, {SPIN}',f'{L("Bp")}:','s_mov_b64 exec, s[50:51]')
    for ks in range(4): k(f'buffer_load_dwordx4 {vr(Q+4*ks)}, v12, s[8:11], s58 offen offset:{ks*512} sc1')
    for ks in range(4): k(f'buffer_load_dwordx4 {vr(KM+4*ks)}, v12, s[8:11], s58 offen offset:{2048+ks*512} sc1')
    k('s_add_u32 s12, s58, 4096','s_mov_b64 exec, s[52:53]')
    for ep in range(4): k(f'buffer_load_dwordx4 {vr(VM+4*ep)}, v14, s[8:11], s12 offen offset:{ep*512} sc1')
    k('s_mov_b64 exec, -1')
    for i in range(12):
        k(f's_waitcnt vmcnt({11-i})')
        b=Q+4*i
        if i==0: k(f'v_max_u32 v{T}, v{b}, v{b+2}')
        else: k(f'v_max3_u32 v{T}, v{T}, v{b}, v{b+2}')
        if i<4:
            for t in range(2): k(f'v_mfma_f32_16x16x32_bf16 {vr(S+4*t)}, {ar(112+16*t+4*i)}, {vr(Q+4*i)}, {vr(S+4*t) if i else 0}')
        elif i<8:
            k(f'v_mfma_f32_16x16x32_bf16 {vr(S+8)}, {vr(KM+4*(i-4))}, {vr(Q+4*(i-4))}, {vr(S+8) if i>4 else 0}')
    k(f'v_cmp_eq_u32 vcc, -1, v{T}','s_sub_u32 s61, s61, 1','s_cmp_eq_u32 s61, 0',f's_cbranch_scc1 {L("Bd")}',f's_cbranch_vccnz {L("Bp")}',f'{L("Bd")}:')
    ts(3)
    if TRACE: k('s_cmp_eq_u32 s3, 3',f's_cbranch_scc1 {L("t3")}',f's_sub_u32 s82, {SPIN}, s61',f'{L("t3")}:')
    if EARLYK: pf_k()
    vals=[S+i for i in range(12)]
    for i in range(4): k(f'v_add_f32 v{S+8+i}, v{S+8+i}, v{MM}')
    m=T
    k(f'v_max3_f32 v{m}, v{S}, v{S+1}, v{S+2}',f'v_max3_f32 v{m+1}, v{S+3}, v{S+4}, v{S+5}',f'v_max3_f32 v{m}, v{m}, v{S+6}, v{S+7}',f'v_max3_f32 v{m+1}, v{m+1}, v{S+8}, v{S+9}',
      f'v_max3_f32 v{m}, v{m}, v{S+10}, v{S+11}',f'v_max_f32 v{m}, v{m}, v{m+1}')
    xred(k,'v_max_f32',m,T+1)
    k(f'v_mul_f32 v{m}, 0x{CS:x}, v{m}',f's_mov_b32 s39, 0x{CS:x}')
    for v in vals: k(f'v_fma_f32 v{v}, v{v}, s39, -v{m}')
    for v in vals: k(f'v_exp_f32 v{v}, v{v}')
    k('s_nop 0')
    for t in range(3): k(f'v_cvt_pk_bf16_f32 v{P+2*t}, v{S+4*t}, v{S+4*t+1}',f'v_cvt_pk_bf16_f32 v{P+2*t+1}, v{S+4*t+2}, v{S+4*t+3}')
    k('s_nop 1')
    def pv1(et): k(f'v_mfma_f32_16x16x32_bf16 {vr(O+4*et)}, {ar(144+4*et)}, {vr(P)}, 0')
    def pv2(et): k(f'v_mfma_f32_16x16x16_bf16 {vr(O+4*et)}, {vr(VM+2*et,2)}, {vr(P+4,2)}, {vr(O+4*et)}')
    def cv(c):
        r0=O+8*c; t=OB+4*c
        k(f'v_cvt_pk_bf16_f32 v{t}, v{r0}, v{r0+1}',f'v_cvt_pk_bf16_f32 v{t+1}, v{r0+2}, v{r0+3}',
          f'v_cvt_pk_bf16_f32 v{t+2}, v{r0+4}, v{r0+5}',f'v_cvt_pk_bf16_f32 v{t+3}, v{r0+6}, v{r0+7}')
    def wo(c):
        for t in range(2): k(f'v_mfma_f32_16x16x32_bf16 {vr(D+4*t)}, {ar(80+16*t+4*c)}, {vr(OB+4*c)}, {vr(D+4*t) if c else 0}')
    for et in range(8): pv1(et)
    if EARLYV==1: pf_v()
    k(f'v_mfma_f32_16x16x32_bf16 {vr(SM)}, {vr(ONE)}, {vr(P)}, 0')
    for et in range(8): pv2(et)
    k(f'v_mfma_f32_16x16x16_bf16 {vr(SM)}, {vr(ONE,2)}, {vr(P+4,2)}, {vr(SM)}')
    if EARLYV==2: pf_v()
    k('s_nop 1'); cv(0); cv(1); wo(0); cv(2); wo(1); k(f'v_rcp_f32 v{T}, v{SM}'); cv(3); wo(2); k('s_nop 0'); wo(3)
    k('s_nop 7')
    for i in range(8): k(f'v_mul_f32 v{D+i}, v{D+i}, v{T}')
    k('s_and_b32 s12, s60, 1','s_lshl_b32 s12, s12, 13','s_lshl_b32 s13, s3, 11','s_add_u32 s13, s13, s12','v_add_u32 v18, s13, v2')
    k(f'ds_write_b128 v18, {vr(D)}',f'ds_write_b128 v18, {vr(D+4)} offset:1024','s_waitcnt lgkmcnt(0)','s_barrier')
    ts(4)
    k('s_cmp_eq_u32 s3, 3',f's_cbranch_scc0 {L("pf")}')
    k('v_add_u32 v18, s12, v16')
    for hh in range(4): k(f'ds_read_b128 {vr(M+4*hh)}, v18 offset:{hh*2048}')
    k('s_waitcnt lgkmcnt(0)')
    for q in range(4): k(f'v_add_f32 v{M+q}, v{M+q}, v{M+4+q}',f'v_add_f32 v{M+8+q}, v{M+8+q}, v{M+12+q}',f'v_add_f32 v{M+q}, v{M+q}, v{M+8+q}')
    k(f'v_min_u32 v{M}, v{M}, v21',f's_mul_i32 s12, s40, {20*KB}','s_add_u32 s12, s12, s59',f'buffer_store_dwordx4 {vr(M)}, v2, s[8:11], s12 offen sc1')
    ts(5)
    k('s_add_u32 s48, s60, 1',f's_and_b32 s48, s48, {RING-1}',f's_mul_i32 s48, s48, {8*10240}','s_add_u32 s48, s48, s92')
    if not EARLYK: pf_k()
    if not EARLYV: pf_v()
    if CSLEEP: k(f's_sleep {CSLEEP}')
    def ciss(st):
        k('s_mov_b32 s12, s59')
        for x in range(8): k(f'buffer_load_dwordx4 {vr(M+16+32*st+4*x)}, v2, s[8:11], s12 offen sc1',f's_add_u32 s12, s12, {20*KB}')
    if PIPE: ciss(0)
    k(f's_mov_b32 s61, {SPIN}',f'{L("Cp")}:')
    for st in range(2):
        b=M+16+32*st
        ciss(1-st) if PIPE else ciss(st)
        k('s_waitcnt vmcnt(8)' if PIPE else 's_waitcnt vmcnt(0)')
        k(f'v_max3_u32 v{T}, v{b}, v{b+4}, v{b+8}',f'v_max3_u32 v{T+1}, v{b+12}, v{b+16}, v{b+20}',f'v_max3_u32 v{T}, v{T}, v{b+24}, v{b+28}',f'v_max_u32 v{T}, v{T}, v{T+1}')
        k(f'v_cmp_eq_u32 vcc, -1, v{T}','s_sub_u32 s61, s61, 1','s_cmp_eq_u32 s61, 0',f's_cbranch_scc1 {L("Cd%d"%st)}',f's_cbranch_vccz {L("Cd%d"%st)}')
    k(f's_branch {L("Cp")}')
    for st in range(2):
        b=M+16+32*st
        k(f'{L("Cd%d"%st)}:')
        ts(6)
        for q in range(4):
            k(f'v_add_f32 v{b+q}, v{b+q}, v{b+4+q}',f'v_add_f32 v{b+8+q}, v{b+8+q}, v{b+12+q}',f'v_add_f32 v{b+16+q}, v{b+16+q}, v{b+20+q}',f'v_add_f32 v{b+24+q}, v{b+24+q}, v{b+28+q}',
              f'v_add_f32 v{b+q}, v{b+q}, v{b+8+q}',f'v_add_f32 v{b+16+q}, v{b+16+q}, v{b+24+q}',f'v_add_f32 v{b+q}, v{b+q}, v{b+16+q}')
        k(f'v_cvt_pk_bf16_f32 v{PT}, v{b}, v{b+1}',f'v_cvt_pk_bf16_f32 v{PT+1}, v{b+2}, v{b+3}',f'v_min_u32 v{PT}, v{PT}, v21')
        if st==0: k(f's_branch {L("Ce")}')
    k(f'{L("Ce")}:')
    k('s_lshl_b32 s12, s41, 9','s_add_u32 s12, s12, s48',f'buffer_store_dwordx2 {vr(PT,2)}, v17, s[8:11], s12 offen{LS}')
    k(f's_branch {L("next")}',f'{L("pf")}:')
    if PSLEEP: k(f's_sleep {PSLEEP}')
    if WARM and PFILL:
        k('s_cmp_eq_u32 s3, 0',f's_cbranch_scc0 {L("npf")}',f's_cmp_gt_u32 s60, {63-WARM}',f's_cbranch_scc1 {L("npf")}',
          f's_mul_i32 s12, s40, {20*KB}','s_add_u32 s12, s12, s95',f's_mul_i32 s13, s47, {8*20*KB}','s_add_u32 s12, s12, s13','buffer_store_dwordx4 v[56:59], v2, s[8:11], s12 offen sc1',f'{L("npf")}:')
    if not EARLYK: pf_k()
    if not PVL and not EARLYV: pf_v()
    if TOK: window('lo')
    if PVL: pf_v()
    k(f'{L("next")}:')
    if TRACE:
        ts(7)
        k('s_waitcnt lgkmcnt(0)')
        k('s_lshl_b32 s12, s40, 5','s_add_u32 s12, s12, s41','s_lshl_b32 s12, s12, 2','s_add_u32 s12, s12, s3','s_lshl_b32 s12, s12, 11','s_lshl_b32 s13, s60, 5','s_add_u32 s12, s12, s13',f's_add_u32 s12, s12, {OFF["TR"]}')
        for i in range(8): k(f'v_mov_b32 v{24+i}, s{72+2*i}')
        k('v_mov_b32 v32, 0','s_mov_b64 exec, 1','buffer_store_dwordx4 v[24:27], v32, s[8:11], s12 offen','buffer_store_dwordx4 v[28:31], v32, s[8:11], s12 offen offset:16','s_mov_b64 exec, -1')
    k('s_add_u32 s60, s60, 1',f's_branch {L("loop")}')
    k(f'{L("end")}:','s_endpgm')
    k(f'{L("hi")}:')
    if TOK:
        k('s_cmp_eq_u32 s3, 3',f's_cbranch_scc1 {L("hi3")}')
        if HSLEEP: k(f's_sleep {HSLEEP}')
        window('hi')
        k(f's_branch {L("hid")}',f'{L("hi3")}:')
    if TATT:
        k('s_cmp_eq_u32 s90, 0',f's_cbranch_scc1 {L("hid")}','s_cmp_eq_u32 s60, 0',f's_cbranch_scc1 {L("hid")}')
        k(f'{L("tl")}:',f's_mov_b32 s61, {SPIN}',f's_and_b32 s49, s89, {RING-1}',f's_mul_i32 s49, s49, {32*6144}','s_add_u32 s49, s49, s71',f'{L("tp")}:')
        for ks in range(4): k(f'buffer_load_dwordx4 {vr(TKM+4*ks)}, v12, s[8:11], s49 offen offset:{2048+ks*512} sc1')
        k('s_add_u32 s12, s49, 4096')
        for ep in range(4): k(f'buffer_load_dwordx4 {vr(TVM+4*ep)}, v14, s[8:11], s12 offen offset:{ep*512} sc1')
        k('s_waitcnt vmcnt(0)')
        regs=[TKM+4*i for i in range(4)]+[TVM+4*i for i in range(4)]
        for i,b in enumerate(regs):
            if i==0: k(f'v_max_u32 v{T}, v{b}, v{b+2}')
            else: k(f'v_max3_u32 v{T}, v{T}, v{b}, v{b+2}')
        k(f'v_cmp_eq_u32 vcc, -1, v{T}','s_sub_u32 s61, s61, 1','s_cmp_eq_u32 s61, 0',f's_cbranch_scc1 {L("td")}',f's_cbranch_vccnz {L("tp")}',f'{L("td")}:')
        k('s_cmp_eq_u32 s91, 0',f's_cbranch_scc0 {L("tq1")}')
        attn_core(k,TQ,TK,TKM,TV,TVM,TS,TP,TO,T,[0],0,MB,MM)
        k(f's_branch {L("tq2")}',f'{L("tq1")}:')
        attn_core(k,TQ,TK,TKM,TV,TVM,TS,TP,TO,T,[0,1],1,MB,MM)
        k(f'{L("tq2")}:')
        for c in range(4):
            r0=TO+8*c; t=TKM+4*c
            k(f'v_cvt_pk_bf16_f32 v{t}, v{r0}, v{r0+1}',f'v_cvt_pk_bf16_f32 v{t+1}, v{r0+2}, v{r0+3}',
              f'v_cvt_pk_bf16_f32 v{t+2}, v{r0+4}, v{r0+5}',f'v_cvt_pk_bf16_f32 v{t+3}, v{r0+6}, v{r0+7}',
              f'buffer_store_dwordx4 {vr(t)}, v2, s[8:11], s88 offen offset:{c*KB}')
        k(f's_add_u32 s88, s88, {256*KB}','s_add_u32 s89, s89, 1','s_cmp_ge_u32 s89, 64',f's_cbranch_scc1 {L("end")}')
        tpf()
        k(f's_cmp_eq_u32 s60, {NSTEP-1}',f's_cbranch_scc1 {L("tl")}')
    k(f'{L("hid")}:',f's_cmp_eq_u32 s60, {NSTEP-1}',f's_cbranch_scc1 {L("end")}',f's_branch {L("next")}')
def gen_chain(use_fast=False):
    k=K('chain_kernel',vgpr=248,agpr=176,sgpr=96)
    k('s_cmp_ge_u32 s2, 256','s_cbranch_scc1 chain_done')
    k.srd(8,'ws',WS_BYTES)
    k('v_lshrrev_b32 v1, 6, v0','s_nop 0','v_readfirstlane_b32 s3, v1','v_and_b32 v0, 63, v0','v_lshlrev_b32 v2, 4, v0')
    if TOK and EARLYDMA:
        k('s_cmp_eq_u32 s3, 3','s_cbranch_scc1 ch_nodma',f's_mul_i32 s21, s3, {14*KB}')
        for j in range(2):
            for i in range(14):
                k(f's_add_u32 s12, s21, {i*KB}',f's_min_u32 s12, s12, {39*KB}',f's_add_u32 m0, s12, {XB0+j*40960}',f's_add_u32 s12, s12, {OFF["XN"]+j*40960}','buffer_load_dwordx4 v2, s[8:11], s12 offen lds')
        k('ch_nodma:')
    if use_fast:
        k.srd(64,'dbg',256)
        k('s_getreg_b32 s40, hwreg(HW_REG_XCC_ID)','s_and_b32 s40, s40, 7')
        k('s_cmp_eq_u32 s3, 0','s_cbranch_scc0 ch_reg_wait')
        k('v_mov_b32 v4, 1','s_lshl_b32 s12, s40, 2','v_mov_b32 v5, s12','s_mov_b64 exec, 1',
          'buffer_atomic_add v4, v5, s[64:67], 0 offen sc0 sc1','s_waitcnt vmcnt(0)',
          'v_mov_b32 v6, 1','v_mov_b32 v7, 32','buffer_atomic_add v6, v7, s[64:67], 0 offen sc0 sc1','s_waitcnt vmcnt(0)',
          's_mov_b64 exec, -1')
        k(f's_mov_b32 s61, {SPIN}','v_lshlrev_b32 v8, 2, v0','ch_reg_poll:','buffer_load_dword v9, v8, s[64:67], 0 offen sc1','s_waitcnt vmcnt(0)',
          'v_readlane_b32 s12, v9, 8','s_sub_u32 s61, s61, 1','s_cmp_eq_u32 s61, 0','s_cbranch_scc1 ch_reg_got','s_cmp_lt_u32 s12, 256','s_cbranch_scc1 ch_reg_poll','ch_reg_got:')
        k('v_cmp_ne_u32 vcc, 32, v9','s_nop 1','s_and_b32 s12, vcc_lo, 0xff','v_readfirstlane_b32 s13, v4','v_readfirstlane_b32 s14, v6',
          's_cmp_eq_u32 s12, 0',f's_cselect_b32 s15, {0 if FORCESLOW else 1}, 0',
          'v_mov_b32 v11, s13','v_mov_b32 v12, s14','v_mov_b32 v10, s15','v_mov_b32 v8, 16384','ds_write_b96 v8, v[10:12]','s_waitcnt lgkmcnt(0)')
        k('ch_reg_wait:','s_barrier','v_mov_b32 v8, 16384','ds_read_b96 v[12:14], v8','s_waitcnt lgkmcnt(0)',
          'v_readfirstlane_b32 s15, v12','v_readfirstlane_b32 s41, v13','v_readfirstlane_b32 s14, v14','s_cmp_eq_u32 s15, 1','s_cbranch_scc0 ch_slow')
        chain_body(k,True,'f')
        k('ch_slow:','s_lshr_b32 s40, s14, 5','s_and_b32 s41, s14, 31')
    else:
        k('s_lshr_b32 s40, s2, 5','s_and_b32 s41, s2, 31')
    chain_body(k,False,'s')
    k('chain_done:')
    return k,(XB0+81920 if TOK else 16448+20480)
```

```python
from common import *
from attn import *
NSTEP=64
SPIN=1<<16
TRACE=False
CSLEEP=0
NOPF=0
PSLEEP=0
WARM=2
PIPE=0
PIPEA=0
BSLEEP=4
TATT=1
W3DMA=0
PFSC=1
FORCESLOW=0
EARLYDMA=0
DP=2
PVL=0
EARLYV=0
W3V=0
EARLYK=1
QRING=1
TOK=1
HSLEEP=32
XB0=40960
RING=8
PFILL=1
def chain_body(k, fast, tag):
    def ts(i):
        if TRACE: k(f's_memtime s[{72+2*i}:{73+2*i}]')
    LS='' if fast else ' sc1'
    LR=' sc1' if (PFSC or not fast) else ''
    started=[False]
    M=64; Q=192; KM=208; VM=224; S=112; P=124; O=132; T=8; MM=3; OB=164; D=180; PT=188; ONE=240; SM=244; MB0=16448; MF=96
    L=lambda n: f'ch_{tag}_{n}'
    MB=36
    lane_consts(k,MB,MM,T)
    k('v_and_b32 v12, 7, v0','v_lshrrev_b32 v13, 4, v0','v_lshlrev_b32 v12, 4, v12','v_lshl_add_u32 v12, v13, 7, v12')
    k('v_and_b32 v14, 15, v0','v_and_b32 v15, 1, v13','v_lshlrev_b32 v14, 4, v14','v_lshl_add_u32 v14, v15, 8, v14')
    k('v_lshrrev_b32 v18, 5, v0','v_bfe_u32 v19, v0, 3, 2','v_and_b32 v20, 7, v0',
      'v_lshlrev_b32 v16, 10, v18','v_lshl_add_u32 v16, v19, 8, v16','v_lshl_add_u32 v16, v20, 4, v16',
      'v_lshlrev_b32 v17, 7, v19','v_lshl_add_u32 v17, v20, 4, v17','v_lshl_add_u32 v17, v18, 3, v17')
    k('v_mov_b32 v21, -2')
    for i in range(4): k(f'v_mov_b32 v{56+i}, -1')
    k('v_and_b32 v18, 8, v0','v_cmp_eq_u32 s[50:51], 0, v18','s_mov_b32 s52, -1','s_mov_b32 s53, 0')
    k('s_lshr_b32 s42, s41, 3','s_and_b32 s43, s41, 7','s_lshl_b32 s44, s40, 2','s_add_u32 s45, s44, s42')
    k('s_cmp_eq_u32 s3, 3',f's_cbranch_scc1 {L("nowa")}')
    k('s_lshl_b32 s12, s3, 8','s_lshl_b32 s13, s45, 3','s_add_u32 s12, s12, s13','s_add_u32 s12, s12, s43',f's_mul_i32 s12, s12, {20*KB}',f's_add_u32 s12, s12, {OFF["WQKV"]}')
    for ks in range(20):
        if ks%4==0 and ks: k('s_add_u32 s12, s12, 4096')
        k(f'buffer_load_dwordx4 {ar(4*ks)}, v2, s[8:11], s12 offen offset:{(ks%4)*KB}')
    k(f'{L("nowa")}:')
    k('s_add_u32 s46, s44, s3')
    k('s_cmp_ge_u32 s41, 20',f's_cbranch_scc1 {L("nowo")}')
    for t in range(2):
        k('s_lshl_b32 s12, s41, 1',f's_add_u32 s12, s12, {t}','s_lshl_b32 s12, s12, 7','s_lshl_b32 s13, s46, 2','s_add_u32 s12, s12, s13','s_lshl_b32 s12, s12, 10',f's_add_u32 s12, s12, {OFF["WO"]}')
        for c in range(4): k(f'buffer_load_dwordx4 {ar(80+16*t+4*c)}, v2, s[8:11], s12 offen offset:{c*KB}')
    k('s_lshl_b32 s54, s46, 12',f's_add_u32 s54, s54, {OFF["QK"]+128*KB}','s_lshl_b32 s55, s46, 13',f's_add_u32 s55, s55, {OFF["VT"]}')
    def pf_k():
        if NOPF and started[0]: return
        for kt in range(2):
            k(f's_add_u32 s12, s54, {kt*256*KB}')
            for ks in range(4): k(f'buffer_load_dwordx4 {ar(112+16*kt+4*ks)}, v2, s[8:11], s12 offen offset:{ks*KB}{LR}')
        k(f's_add_u32 s54, s54, {512*KB}')
        if QRING: k('s_bitset0_b32 s54, 22')
    def pf_v():
        if NOPF and started[0]: return
        for hf in range(2):
            k(f's_add_u32 s12, s55, {hf*4096}')
            for e in range(4): k(f'buffer_load_dwordx4 {ar(144+16*hf+4*e)}, v2, s[8:11], s12 offen offset:{e*KB}{LR}')
        k(f's_add_u32 s55, s55, {256*KB}')
        if QRING: k('s_bitset0_b32 s55, 21')
    k(f'{L("nowo")}:')
    k(f's_mov_b32 s20, {OFF["XN"]}',f's_mul_i32 s21, s3, {14*KB}','s_mov_b32 s24, 0','s_mov_b32 s25, 0')
    k('s_lshl_b32 s12, s45, 2','s_lshr_b32 s13, s43, 1','s_add_u32 s12, s12, s13','s_lshl_b32 s13, s3, 7','s_add_u32 s12, s12, s13','s_lshl_b32 s12, s12, 10',f's_add_u32 s22, s12, {OFF["QK"]}',
      's_lshl_b32 s12, s45, 3','s_add_u32 s12, s12, s43','s_lshl_b32 s12, s12, 10',f's_add_u32 s23, s12, {OFF["VT"]}',
      's_and_b32 s12, s43, 1','s_lshl_b32 s12, s12, 3','v_add_u32 v42, s12, v2')
    def dma1(i,b='s21'):
        k(f's_add_u32 s12, {b}, {i*KB}',f's_min_u32 s12, s12, {39*KB}','s_add_u32 m0, s12, s26','s_add_u32 s12, s12, s20','buffer_load_dwordx4 v2, s[8:11], s12 offen lds')
    def dma_pre(): k('s_and_b32 s26, s25, 1','s_mul_i32 s26, s26, 40960',f's_add_u32 s26, s26, {XB0}')
    def dma_post(): k('s_add_u32 s20, s20, 40960','s_add_u32 s25, s25, 1')
    def tok(dma,tg):
        TX=96; D0=144
        k('s_and_b32 s12, s24, 1','s_mul_i32 s12, s12, 40960',f's_add_u32 s12, s12, {XB0}','v_add_u32 v40, s12, v2')
        if dma: dma_pre()
        nd=14 if dma!=2 else (40-W3DMA+2)//3
        if dma==2: k(f's_mul_i32 s27, s3, {nd*KB}',f's_add_u32 s27, s27, {W3DMA*KB}')
        seq=[(ks,mt) for ks in range(20) for mt in range(2)]
        rd=lambda n: k(f'ds_read_b128 {vr(TX+4*(n%12))}, v40 offset:{(seq[n][1]*20+seq[n][0])*KB}')
        for n in range(12): rd(n)
        for sw in (0,1):
            if sw==0: k('s_cmp_eq_u32 s3, 2',f's_cbranch_scc1 {L("tv"+tg)}')
            else: k(f'{L("tv"+tg)}:')
            for n,(ks,mt) in enumerate(seq):
                k(f's_waitcnt lgkmcnt({min(11,39-n)})')
                X=vr(TX+4*(n%12)); A,B=(ar(4*ks),X) if sw==0 else (X,ar(4*ks))
                k(f'v_mfma_f32_16x16x32_bf16 {vr(D0+4*mt)}, {A}, {B}, {vr(D0+4*mt) if ks else 0}')
                if n+12<40: rd(n+12)
                if dma and DP==2 and n%2==1 and n//2<nd: dma1(n//2,'s27' if dma==2 else 's21')
                if dma and DP==3 and n%3==0 and n//3<nd: dma1(n//3,'s27' if dma==2 else 's21')
            k('s_nop 7','s_nop 7')
            for q in range(4): k(f'v_cvt_pk_bf16_f32 v{D0+8+q}, v{D0+2*q}, v{D0+2*q+1}')
            if sw==0:
                k(f'buffer_store_dwordx2 {vr(D0+8,2)}, v42, s[8:11], s22 offen{LS}',f's_add_u32 s12, s22, {256*KB}',f'buffer_store_dwordx2 {vr(D0+10,2)}, v42, s[8:11], s12 offen{LS}',f's_branch {L("te"+tg)}')
            else: k(f'buffer_store_dwordx4 {vr(D0+8)}, v2, s[8:11], s23 offen{LS}',f'{L("te"+tg)}:')
        k(f's_add_u32 s22, s22, {512*KB}',f's_add_u32 s23, s23, {256*KB}','s_add_u32 s24, s24, 1')
        if QRING: k('s_bitset0_b32 s22, 22','s_bitset0_b32 s23, 21')
        if dma: dma_post()
    def window(tg):
        k('s_cmp_gt_u32 s60, 61',f's_cbranch_scc1 {L("wx"+tg)}','s_cmp_eq_u32 s60, 61',f's_cbranch_scc1 {L("wn"+tg)}')
        tok(2 if (W3DMA and tg=='lo') else True,tg+'a')
        k(f's_branch {L("wx"+tg)}',f'{L("wn"+tg)}:')
        tok(False,tg+'b')
        k(f'{L("wx"+tg)}:')
    if TOK:
        if EARLYDMA: k(f's_mov_b32 s20, {OFF["XN"]+2*40960}','s_mov_b32 s25, 2')
        else:
            k('s_cmp_eq_u32 s3, 3',f's_cbranch_scc1 {L("p1")}')
            for j in range(2):
                dma_pre()
                for i in range(14): dma1(i)
                dma_post()
        k(f'{L("p1")}:','s_waitcnt vmcnt(0)','s_barrier','s_cmp_eq_u32 s3, 3',f's_cbranch_scc1 {L("p2")}')
        tok(False,'p0'); tok(False,'p1')
        k(f'{L("p2")}:','s_waitcnt vmcnt(0)','s_barrier','s_cmp_eq_u32 s3, 3',f's_cbranch_scc1 {L("p3")}')
        dma_pre()
        for i in range(14): dma1(i)
        dma_post()
        k('s_cmp_eq_u32 s3, 0',f's_cbranch_scc0 {L("p3")}')
        k('s_lshl_b32 s12, s40, 2','s_add_u32 s12, s12, 64','v_mov_b32 v44, 1','v_mov_b32 v45, s12','s_mov_b64 exec, 1','buffer_atomic_add v44, v45, s[64:67], 0 offen sc1',
          f's_mov_b32 s61, {SPIN}',f'{L("sy")}:','buffer_load_dword v46, v45, s[64:67], 0 offen sc1','s_waitcnt vmcnt(0)','v_readfirstlane_b32 s12, v46',
          's_sub_u32 s61, s61, 1','s_cmp_eq_u32 s61, 0',f's_cbranch_scc1 {L("sy2")}','s_cmp_lt_u32 s12, 32',f's_cbranch_scc1 {L("sy")}',f'{L("sy2")}:','s_mov_b64 exec, -1')
        k(f'{L("p3")}:','s_barrier')
    k('s_cmp_ge_u32 s41, 20',f's_cbranch_scc1 {L("nopf0")}')
    pf_k(); pf_v()
    started[0]=True
    k(f'{L("nopf0")}:')
    k(f's_mul_i32 s92, s40, 10240',f's_add_u32 s92, s92, {OFF["MEM"]}')
    k(f's_mul_i32 s93, s45, 6144',f's_add_u32 s93, s93, {OFF["QKVM"]}')
    k(f's_mul_i32 s94, s46, 6144',f's_add_u32 s94, s94, {OFF["QKVM"]}')
    k(f's_lshl_b32 s95, s41, 10',f's_add_u32 s95, s95, {OFF["PART"]}')
    TQ=64; TK=96; TKM=128; TV=144; TVM=176; TS=192; TP=204; TO=212
    k('s_sub_u32 s12, s41, 20','s_lshr_b32 s12, s12, 1','s_add_u32 s12, s12, s44','s_and_b32 s91, s41, 1',
      's_lshl_b32 s13, s12, 12','s_lshl_b32 s14, s91, 18','s_add_u32 s68, s13, s14',f's_add_u32 s68, s68, {OFF["QK"]}',f's_add_u32 s69, s13, {OFF["QK"]+128*KB}',
      's_lshl_b32 s70, s12, 13',f's_add_u32 s70, s70, {OFF["VT"]}','s_mul_i32 s71, s12, 6144',f's_add_u32 s71, s71, {OFF["QKVM"]}',
      's_lshl_b32 s14, s91, 17','s_add_u32 s88, s13, s14',f's_add_u32 s88, s88, {OFF["O"]}','s_mov_b32 s89, 0','s_mov_b32 s90, 0')
    def tpf():
        for ks in range(4): k(f'buffer_load_dwordx4 {vr(TQ+4*ks)}, v2, s[8:11], s68 offen offset:{ks*KB}{LR}')
        for kt in range(2):
            k(f's_add_u32 s12, s69, {kt*256*KB}')
            for ks in range(4): k(f'buffer_load_dwordx4 {vr(TK+16*kt+4*ks)}, v2, s[8:11], s12 offen offset:{ks*KB}{LR}')
        for hf in range(2):
            k(f's_add_u32 s12, s70, {hf*4096}')
            for e in range(4): k(f'buffer_load_dwordx4 {vr(TV+16*hf+4*e)}, v2, s[8:11], s12 offen offset:{e*KB}{LR}')
        k(f's_add_u32 s68, s68, {512*KB}',f's_add_u32 s69, s69, {512*KB}',f's_add_u32 s70, s70, {256*KB}')
        if QRING: k('s_bitset0_b32 s68, 22','s_bitset0_b32 s69, 22','s_bitset0_b32 s70, 21')
    if TATT:
        k('s_cmp_eq_u32 s3, 3',f's_cbranch_scc0 {L("not")}','s_cmp_lt_u32 s41, 20',f's_cbranch_scc1 {L("not")}','s_cmp_ge_u32 s41, 28',f's_cbranch_scc1 {L("not")}','s_mov_b32 s90, 1')
        tpf()
        k(f'{L("not")}:')
    k('s_lshr_b32 s12, s43, 1','s_lshl_b32 s12, s12, 9','s_and_b32 s13, s43, 1','s_lshl_b32 s13, s13, 3','s_add_u32 s12, s12, s13','s_lshl_b32 s13, s3, 11','s_add_u32 s12, s12, s13')
    k('s_cmp_eq_u32 s3, 2',f's_cbranch_scc1 {L("vo")}','v_add_u32 v22, s12, v12',f's_branch {L("vo2")}',f'{L("vo")}:','v_add_u32 v22, s12, v14',f'{L("vo2")}:')
    k('s_mov_b32 s60, 0')
    for i in range(48): k(f'v_mov_b32 v{Q+i}, 0')
    for i in range(4): k(f'v_mov_b32 v{ONE+i}, 0x3f803f80')
    k('s_lshl_b32 s62, s3, 10','v_add_u32 v23, s62, v2','s_cmp_eq_u32 s3, 0','s_cselect_b32 s67, 9216, 0','s_waitcnt vmcnt(0)')
    k(f'{L("loop")}:')
    ts(0)
    k(f's_and_b32 s12, s60, {RING-1}',f's_mul_i32 s13, s12, {8*10240}','s_add_u32 s56, s92, s13',f's_mul_i32 s13, s12, {32*6144}','s_add_u32 s57, s93, s13','s_add_u32 s58, s94, s13',
      f's_mul_i32 s13, s12, {8*20*KB}','s_add_u32 s59, s95, s13',f's_add_u32 s47, s60, {WARM}',f's_and_b32 s47, s47, {RING-1}')
    k('s_and_b32 s12, s60, 1','s_mul_i32 s63, s12, 10240',f's_add_u32 s63, s63, {MB0}','v_add_u32 v18, s63, v23')
    if WARM:
        k('s_cmp_eq_u32 s3, 3',f's_cbranch_scc0 {L("nw")}',f's_cmp_gt_u32 s60, {63-WARM}',f's_cbranch_scc1 {L("nw")}')
        k(f's_mul_i32 s12, s47, {32*6144}',f's_mul_i32 s13, s44, 6144','s_add_u32 s12, s12, s13',f's_add_u32 s12, s12, {OFF["QKVM"]}','s_lshl_b32 s13, s41, 10','s_add_u32 s12, s12, s13')
        k(f's_mul_i32 s15, s47, {8*10240}','s_add_u32 s15, s15, s92')
        k(f's_sub_u32 s14, s15, {24*1024}','s_add_u32 s14, s14, s13','s_cmp_lt_u32 s41, 24','s_cselect_b32 s12, s12, s14',
          f'buffer_store_dwordx4 v[56:59], v2, s[8:11], s12 offen{LS}',
          's_add_u32 s14, s15, 8192','s_and_b32 s13, s13, 1024','s_add_u32 s14, s14, s13',f'buffer_store_dwordx4 v[56:59], v2, s[8:11], s14 offen{LS}','s_waitcnt vmcnt(0)')
        k(f'{L("nw")}:')
    k('s_cmp_eq_u32 s3, 3',f's_cbranch_scc1 {L("A3")}')
    k('s_add_u32 s64, s56, 3072','s_add_u32 s65, s56, 6144','s_add_u32 s66, s56, s67')
    def aiss(st):
        b0=M+16*st
        k(f'buffer_load_dwordx4 {vr(b0)}, v23, s[8:11], s56 offen sc1',f'buffer_load_dwordx4 {vr(b0+4)}, v23, s[8:11], s64 offen sc1',
          f'buffer_load_dwordx4 {vr(b0+8)}, v23, s[8:11], s65 offen sc1',f'buffer_load_dwordx4 {vr(b0+12)}, v23, s[8:11], s66 offen sc1')
    if PIPEA: aiss(0)
    k(f's_mov_b32 s61, {SPIN}',f'{L("Ap")}:')
    for st in range(2):
        b0=M+16*st
        aiss(1-st) if PIPEA else aiss(st)
        k('s_waitcnt vmcnt(4)' if PIPEA else 's_waitcnt vmcnt(0)',f'v_max3_u32 v{T}, v{b0}, v{b0+2}, v{b0+4}',f'v_max3_u32 v{T+1}, v{b0+6}, v{b0+8}, v{b0+10}',f'v_max3_u32 v{T}, v{T}, v{b0+12}, v{b0+14}',f'v_max_u32 v{T}, v{T}, v{T+1}')
        k(f'v_cmp_eq_u32 vcc, -1, v{T}','s_sub_u32 s61, s61, 1','s_cmp_eq_u32 s61, 0',f's_cbranch_scc1 {L("Ad%d"%st)}',f's_cbranch_vccz {L("Ad%d"%st)}')
    k(f's_branch {L("Ap")}')
    for st in range(2):
        b0=M+16*st
        k(f'{L("Ad%d"%st)}:',f'ds_write_b128 v18, {vr(b0)}',f'ds_write_b128 v18, {vr(b0+4)} offset:3072',f'ds_write_b128 v18, {vr(b0+8)} offset:6144',
          's_cmp_eq_u32 s3, 0',f's_cbranch_scc0 {L("A3")}',f'ds_write_b128 v18, {vr(b0+12)} offset:9216',f's_branch {L("A3")}')
    k(f'{L("A3")}:')
    if TRACE: k('s_cmp_eq_u32 s3, 3',f's_cbranch_scc1 {L("t4")}',f's_sub_u32 s84, {SPIN}, s61',f'{L("t4")}:')
    k('v_add_u32 v18, s63, v12','s_waitcnt lgkmcnt(0)','s_barrier')
    ts(1)
    k('s_cmp_eq_u32 s3, 3',f's_cbranch_scc1 {L("B")}')
    if TRACE: k('s_waitcnt lgkmcnt(0)')
    for ks in range(12): k(f'ds_read_b128 {vr(MF+4*ks)}, v18 offset:{ks*512}')
    for sw in (0,1):
        if sw==0: k('s_cmp_eq_u32 s3, 2',f's_cbranch_scc1 {L("Av")}')
        else: k(f'{L("Av")}:')
        for ks in range(20):
            k(f's_waitcnt lgkmcnt({min(11,19-ks)})')
            A,B=(ar(4*ks),vr(MF+4*(ks%12))) if sw==0 else (vr(MF+4*(ks%12)),ar(4*ks))
            k(f'v_mfma_f32_16x16x32_bf16 {vr(D)}, {A}, {B}, {vr(D) if ks else 0}')
            if ks+12<20: k(f'ds_read_b128 {vr(MF+4*ks)}, v18 offset:{(ks+12)*512}')
        k('s_nop 7',f'v_cvt_pk_bf16_f32 v{PT}, v{D}, v{D+1}',f'v_cvt_pk_bf16_f32 v{PT+1}, v{D+2}, v{D+3}',f'v_min_u32 v{PT}, v{PT}, v21')
        k(f's_mov_b64 exec, s[{50 if sw==0 else 52}:{51 if sw==0 else 53}]',f'buffer_store_dwordx2 {vr(PT,2)}, v22, s[8:11], s57 offen{LS}','s_mov_b64 exec, -1')
        if sw==0: k(f's_branch {L("B")}')
    k(f'{L("B")}:','s_cmp_ge_u32 s41, 20',f's_cbranch_scc1 {L("hi")}',f's_cmp_eq_u32 s60, {NSTEP-1}',f's_cbranch_scc1 {L("end")}')
    ts(2)
    if TOK and W3DMA:
        k('s_cmp_eq_u32 s3, 3',f's_cbranch_scc0 {L("bsl")}','s_cmp_gt_u32 s60, 60',f's_cbranch_scc1 {L("bsl")}',
          's_add_u32 s25, s60, 3','s_mul_i32 s20, s25, 40960',f's_add_u32 s20, s20, {OFF["XN"]}')
        dma_pre()
        for i in range(W3DMA): k(f's_add_u32 m0, s26, {i*KB}',f's_add_u32 s12, s20, {i*KB}','buffer_load_dwordx4 v2, s[8:11], s12 offen lds')
        k(f's_branch {L("bsd")}',f'{L("bsl")}:')
    k(f's_sleep {BSLEEP}') if BSLEEP else None
    k(f'{L("bsd")}:')
    k(f's_mov_b32 s61, {SPIN}',f'{L("Bp")}:','s_mov_b64 exec, s[50:51]')
    for ks in range(4): k(f'buffer_load_dwordx4 {vr(Q+4*ks)}, v12, s[8:11], s58 offen offset:{ks*512} sc1')
    for ks in range(4): k(f'buffer_load_dwordx4 {vr(KM+4*ks)}, v12, s[8:11], s58 offen offset:{2048+ks*512} sc1')
    k('s_add_u32 s12, s58, 4096','s_mov_b64 exec, s[52:53]')
    for ep in range(4): k(f'buffer_load_dwordx4 {vr(VM+4*ep)}, v14, s[8:11], s12 offen offset:{ep*512} sc1')
    k('s_mov_b64 exec, -1')
    for i in range(12):
        k(f's_waitcnt vmcnt({11-i})')
        b=Q+4*i
        if i==0: k(f'v_max_u32 v{T}, v{b}, v{b+2}')
        else: k(f'v_max3_u32 v{T}, v{T}, v{b}, v{b+2}')
        if i<4:
            for t in range(2): k(f'v_mfma_f32_16x16x32_bf16 {vr(S+4*t)}, {ar(112+16*t+4*i)}, {vr(Q+4*i)}, {vr(S+4*t) if i else 0}')
        elif i<8:
            k(f'v_mfma_f32_16x16x32_bf16 {vr(S+8)}, {vr(KM+4*(i-4))}, {vr(Q+4*(i-4))}, {vr(S+8) if i>4 else 0}')
    k(f'v_cmp_eq_u32 vcc, -1, v{T}','s_sub_u32 s61, s61, 1','s_cmp_eq_u32 s61, 0',f's_cbranch_scc1 {L("Bd")}',f's_cbranch_vccnz {L("Bp")}',f'{L("Bd")}:')
    ts(3)
    if TRACE: k('s_cmp_eq_u32 s3, 3',f's_cbranch_scc1 {L("t3")}',f's_sub_u32 s82, {SPIN}, s61',f'{L("t3")}:')
    if EARLYK: pf_k()
    vals=[S+i for i in range(12)]
    for i in range(4): k(f'v_add_f32 v{S+8+i}, v{S+8+i}, v{MM}')
    m=T
    k(f'v_max3_f32 v{m}, v{S}, v{S+1}, v{S+2}',f'v_max3_f32 v{m+1}, v{S+3}, v{S+4}, v{S+5}',f'v_max3_f32 v{m}, v{m}, v{S+6}, v{S+7}',f'v_max3_f32 v{m+1}, v{m+1}, v{S+8}, v{S+9}',
      f'v_max3_f32 v{m}, v{m}, v{S+10}, v{S+11}',f'v_max_f32 v{m}, v{m}, v{m+1}')
    xred(k,'v_max_f32',m,T+1)
    k(f'v_mul_f32 v{m}, 0x{CS:x}, v{m}',f's_mov_b32 s39, 0x{CS:x}')
    for v in vals: k(f'v_fma_f32 v{v}, v{v}, s39, -v{m}')
    for v in vals: k(f'v_exp_f32 v{v}, v{v}')
    k('s_nop 0')
    for t in range(3): k(f'v_cvt_pk_bf16_f32 v{P+2*t}, v{S+4*t}, v{S+4*t+1}',f'v_cvt_pk_bf16_f32 v{P+2*t+1}, v{S+4*t+2}, v{S+4*t+3}')
    k('s_nop 1')
    def pv1(et): k(f'v_mfma_f32_16x16x32_bf16 {vr(O+4*et)}, {ar(144+4*et)}, {vr(P)}, 0')
    def pv2(et): k(f'v_mfma_f32_16x16x16_bf16 {vr(O+4*et)}, {vr(VM+2*et,2)}, {vr(P+4,2)}, {vr(O+4*et)}')
    def cv(c):
        r0=O+8*c; t=OB+4*c
        k(f'v_cvt_pk_bf16_f32 v{t}, v{r0}, v{r0+1}',f'v_cvt_pk_bf16_f32 v{t+1}, v{r0+2}, v{r0+3}',
          f'v_cvt_pk_bf16_f32 v{t+2}, v{r0+4}, v{r0+5}',f'v_cvt_pk_bf16_f32 v{t+3}, v{r0+6}, v{r0+7}')
    def wo(c):
        for t in range(2): k(f'v_mfma_f32_16x16x32_bf16 {vr(D+4*t)}, {ar(80+16*t+4*c)}, {vr(OB+4*c)}, {vr(D+4*t) if c else 0}')
    for et in range(8): pv1(et)
    if EARLYV==1: pf_v()
    k(f'v_mfma_f32_16x16x32_bf16 {vr(SM)}, {vr(ONE)}, {vr(P)}, 0')
    for et in range(8): pv2(et)
    k(f'v_mfma_f32_16x16x16_bf16 {vr(SM)}, {vr(ONE,2)}, {vr(P+4,2)}, {vr(SM)}')
    if EARLYV==2: pf_v()
    k('s_nop 1'); cv(0); cv(1); wo(0); cv(2); wo(1); k(f'v_rcp_f32 v{T}, v{SM}'); cv(3); wo(2); k('s_nop 0'); wo(3)
    k('s_nop 7')
    for i in range(8): k(f'v_mul_f32 v{D+i}, v{D+i}, v{T}')
    k('s_and_b32 s12, s60, 1','s_lshl_b32 s12, s12, 13','s_lshl_b32 s13, s3, 11','s_add_u32 s13, s13, s12','v_add_u32 v18, s13, v2')
    k(f'ds_write_b128 v18, {vr(D)}',f'ds_write_b128 v18, {vr(D+4)} offset:1024','s_waitcnt lgkmcnt(0)','s_barrier')
    ts(4)
    k('s_cmp_eq_u32 s3, 3',f's_cbranch_scc0 {L("pf")}')
    k('v_add_u32 v18, s12, v16')
    for hh in range(4): k(f'ds_read_b128 {vr(M+4*hh)}, v18 offset:{hh*2048}')
    k('s_waitcnt lgkmcnt(0)')
    for q in range(4): k(f'v_add_f32 v{M+q}, v{M+q}, v{M+4+q}',f'v_add_f32 v{M+8+q}, v{M+8+q}, v{M+12+q}',f'v_add_f32 v{M+q}, v{M+q}, v{M+8+q}')
    k(f'v_min_u32 v{M}, v{M}, v21',f's_mul_i32 s12, s40, {20*KB}','s_add_u32 s12, s12, s59',f'buffer_store_dwordx4 {vr(M)}, v2, s[8:11], s12 offen sc1')
    ts(5)
    k('s_add_u32 s48, s60, 1',f's_and_b32 s48, s48, {RING-1}',f's_mul_i32 s48, s48, {8*10240}','s_add_u32 s48, s48, s92')
    if not EARLYK: pf_k()
    if not EARLYV and not W3V: pf_v()
    if CSLEEP: k(f's_sleep {CSLEEP}')
    def ciss(st):
        k('s_mov_b32 s12, s59')
        for x in range(8): k(f'buffer_load_dwordx4 {vr(M+16+32*st+4*x)}, v2, s[8:11], s12 offen sc1',f's_add_u32 s12, s12, {20*KB}')
    if PIPE: ciss(0)
    k(f's_mov_b32 s61, {SPIN}',f'{L("Cp")}:')
    for st in range(2):
        b=M+16+32*st
        ciss(1-st) if PIPE else ciss(st)
        k('s_waitcnt vmcnt(8)' if PIPE else 's_waitcnt vmcnt(0)')
        k(f'v_max3_u32 v{T}, v{b}, v{b+4}, v{b+8}',f'v_max3_u32 v{T+1}, v{b+12}, v{b+16}, v{b+20}',f'v_max3_u32 v{T}, v{T}, v{b+24}, v{b+28}',f'v_max_u32 v{T}, v{T}, v{T+1}')
        k(f'v_cmp_eq_u32 vcc, -1, v{T}','s_sub_u32 s61, s61, 1','s_cmp_eq_u32 s61, 0',f's_cbranch_scc1 {L("Cd%d"%st)}',f's_cbranch_vccz {L("Cd%d"%st)}')
    k(f's_branch {L("Cp")}')
    for st in range(2):
        b=M+16+32*st
        k(f'{L("Cd%d"%st)}:')
        ts(6)
        for q in range(4):
            k(f'v_add_f32 v{b+q}, v{b+q}, v{b+4+q}',f'v_add_f32 v{b+8+q}, v{b+8+q}, v{b+12+q}',f'v_add_f32 v{b+16+q}, v{b+16+q}, v{b+20+q}',f'v_add_f32 v{b+24+q}, v{b+24+q}, v{b+28+q}',
              f'v_add_f32 v{b+q}, v{b+q}, v{b+8+q}',f'v_add_f32 v{b+16+q}, v{b+16+q}, v{b+24+q}',f'v_add_f32 v{b+q}, v{b+q}, v{b+16+q}')
        k(f'v_cvt_pk_bf16_f32 v{PT}, v{b}, v{b+1}',f'v_cvt_pk_bf16_f32 v{PT+1}, v{b+2}, v{b+3}',f'v_min_u32 v{PT}, v{PT}, v21')
        if st==0: k(f's_branch {L("Ce")}')
    k(f'{L("Ce")}:')
    k('s_lshl_b32 s12, s41, 9','s_add_u32 s12, s12, s48',f'buffer_store_dwordx2 {vr(PT,2)}, v17, s[8:11], s12 offen{LS}')
    if W3V: pf_v()
    k(f's_branch {L("next")}',f'{L("pf")}:')
    if PSLEEP: k(f's_sleep {PSLEEP}')
    if WARM and PFILL:
        k('s_cmp_eq_u32 s3, 0',f's_cbranch_scc0 {L("npf")}',f's_cmp_gt_u32 s60, {63-WARM}',f's_cbranch_scc1 {L("npf")}',
          f's_mul_i32 s12, s40, {20*KB}','s_add_u32 s12, s12, s95',f's_mul_i32 s13, s47, {8*20*KB}','s_add_u32 s12, s12, s13','buffer_store_dwordx4 v[56:59], v2, s[8:11], s12 offen sc1',f'{L("npf")}:')
    if not EARLYK: pf_k()
    if not PVL and not EARLYV: pf_v()
    if TOK: window('lo')
    if PVL: pf_v()
    k(f'{L("next")}:')
    if TRACE:
        ts(7)
        k('s_waitcnt lgkmcnt(0)')
        k('s_lshl_b32 s12, s40, 5','s_add_u32 s12, s12, s41','s_lshl_b32 s12, s12, 2','s_add_u32 s12, s12, s3','s_lshl_b32 s12, s12, 11','s_lshl_b32 s13, s60, 5','s_add_u32 s12, s12, s13',f's_add_u32 s12, s12, {OFF["TR"]}')
        for i in range(8): k(f'v_mov_b32 v{24+i}, s{72+2*i}')
        k('v_mov_b32 v32, 0','s_mov_b64 exec, 1','buffer_store_dwordx4 v[24:27], v32, s[8:11], s12 offen','buffer_store_dwordx4 v[28:31], v32, s[8:11], s12 offen offset:16','s_mov_b64 exec, -1')
    k('s_add_u32 s60, s60, 1',f's_branch {L("loop")}')
    k(f'{L("end")}:','s_endpgm')
    k(f'{L("hi")}:')
    if TOK:
        k('s_cmp_eq_u32 s3, 3',f's_cbranch_scc1 {L("hi3")}')
        if HSLEEP: k(f's_sleep {HSLEEP}')
        window('hi')
        k(f's_branch {L("hid")}',f'{L("hi3")}:')
    if TATT:
        k('s_cmp_eq_u32 s90, 0',f's_cbranch_scc1 {L("hid")}','s_cmp_eq_u32 s60, 0',f's_cbranch_scc1 {L("hid")}')
        k(f'{L("tl")}:',f's_mov_b32 s61, {SPIN}',f's_and_b32 s49, s89, {RING-1}',f's_mul_i32 s49, s49, {32*6144}','s_add_u32 s49, s49, s71',f'{L("tp")}:')
        for ks in range(4): k(f'buffer_load_dwordx4 {vr(TKM+4*ks)}, v12, s[8:11], s49 offen offset:{2048+ks*512} sc1')
        k('s_add_u32 s12, s49, 4096')
        for ep in range(4): k(f'buffer_load_dwordx4 {vr(TVM+4*ep)}, v14, s[8:11], s12 offen offset:{ep*512} sc1')
        k('s_waitcnt vmcnt(0)')
        regs=[TKM+4*i for i in range(4)]+[TVM+4*i for i in range(4)]
        for i,b in enumerate(regs):
            if i==0: k(f'v_max_u32 v{T}, v{b}, v{b+2}')
            else: k(f'v_max3_u32 v{T}, v{T}, v{b}, v{b+2}')
        k(f'v_cmp_eq_u32 vcc, -1, v{T}','s_sub_u32 s61, s61, 1','s_cmp_eq_u32 s61, 0',f's_cbranch_scc1 {L("td")}',f's_cbranch_vccnz {L("tp")}',f'{L("td")}:')
        k('s_cmp_eq_u32 s91, 0',f's_cbranch_scc0 {L("tq1")}')
        attn_core(k,TQ,TK,TKM,TV,TVM,TS,TP,TO,T,[0],0,MB,MM)
        k(f's_branch {L("tq2")}',f'{L("tq1")}:')
        attn_core(k,TQ,TK,TKM,TV,TVM,TS,TP,TO,T,[0,1],1,MB,MM)
        k(f'{L("tq2")}:')
        for c in range(4):
            r0=TO+8*c; t=TKM+4*c
            k(f'v_cvt_pk_bf16_f32 v{t}, v{r0}, v{r0+1}',f'v_cvt_pk_bf16_f32 v{t+1}, v{r0+2}, v{r0+3}',
              f'v_cvt_pk_bf16_f32 v{t+2}, v{r0+4}, v{r0+5}',f'v_cvt_pk_bf16_f32 v{t+3}, v{r0+6}, v{r0+7}',
              f'buffer_store_dwordx4 {vr(t)}, v2, s[8:11], s88 offen offset:{c*KB}')
        k(f's_add_u32 s88, s88, {256*KB}','s_add_u32 s89, s89, 1','s_cmp_ge_u32 s89, 64',f's_cbranch_scc1 {L("end")}')
        tpf()
        k(f's_cmp_eq_u32 s60, {NSTEP-1}',f's_cbranch_scc1 {L("tl")}')
    k(f'{L("hid")}:',f's_cmp_eq_u32 s60, {NSTEP-1}',f's_cbranch_scc1 {L("end")}',f's_branch {L("next")}')
def gen_chain(use_fast=False):
    k=K('chain_kernel',vgpr=248,agpr=176,sgpr=96)
    k('s_cmp_ge_u32 s2, 256','s_cbranch_scc1 chain_done')
    k.srd(8,'ws',WS_BYTES)
    k('v_lshrrev_b32 v1, 6, v0','s_nop 0','v_readfirstlane_b32 s3, v1','v_and_b32 v0, 63, v0','v_lshlrev_b32 v2, 4, v0')
    if TOK and EARLYDMA:
        k('s_cmp_eq_u32 s3, 3','s_cbranch_scc1 ch_nodma',f's_mul_i32 s21, s3, {14*KB}')
        for j in range(2):
            for i in range(14):
                k(f's_add_u32 s12, s21, {i*KB}',f's_min_u32 s12, s12, {39*KB}',f's_add_u32 m0, s12, {XB0+j*40960}',f's_add_u32 s12, s12, {OFF["XN"]+j*40960}','buffer_load_dwordx4 v2, s[8:11], s12 offen lds')
        k('ch_nodma:')
    if use_fast:
        k.srd(64,'dbg',256)
        k('s_getreg_b32 s40, hwreg(HW_REG_XCC_ID)','s_and_b32 s40, s40, 7')
        k('s_cmp_eq_u32 s3, 0','s_cbranch_scc0 ch_reg_wait')
        k('v_mov_b32 v4, 1','s_lshl_b32 s12, s40, 2','v_mov_b32 v5, s12','s_mov_b64 exec, 1',
          'buffer_atomic_add v4, v5, s[64:67], 0 offen sc0 sc1','s_waitcnt vmcnt(0)',
          'v_mov_b32 v6, 1','v_mov_b32 v7, 32','buffer_atomic_add v6, v7, s[64:67], 0 offen sc0 sc1','s_waitcnt vmcnt(0)',
          's_mov_b64 exec, -1')
        k(f's_mov_b32 s61, {SPIN}','v_lshlrev_b32 v8, 2, v0','ch_reg_poll:','buffer_load_dword v9, v8, s[64:67], 0 offen sc1','s_waitcnt vmcnt(0)',
          'v_readlane_b32 s12, v9, 8','s_sub_u32 s61, s61, 1','s_cmp_eq_u32 s61, 0','s_cbranch_scc1 ch_reg_got','s_cmp_lt_u32 s12, 256','s_cbranch_scc1 ch_reg_poll','ch_reg_got:')
        k('v_cmp_ne_u32 vcc, 32, v9','s_nop 1','s_and_b32 s12, vcc_lo, 0xff','v_readfirstlane_b32 s13, v4','v_readfirstlane_b32 s14, v6',
          's_cmp_eq_u32 s12, 0',f's_cselect_b32 s15, {0 if FORCESLOW else 1}, 0',
          'v_mov_b32 v11, s13','v_mov_b32 v12, s14','v_mov_b32 v10, s15','v_mov_b32 v8, 16384','ds_write_b96 v8, v[10:12]','s_waitcnt lgkmcnt(0)')
        k('ch_reg_wait:','s_barrier','v_mov_b32 v8, 16384','ds_read_b96 v[12:14], v8','s_waitcnt lgkmcnt(0)',
          'v_readfirstlane_b32 s15, v12','v_readfirstlane_b32 s41, v13','v_readfirstlane_b32 s14, v14','s_cmp_eq_u32 s15, 1','s_cbranch_scc0 ch_slow')
        chain_body(k,True,'f')
        k('ch_slow:','s_lshr_b32 s40, s14, 5','s_and_b32 s41, s14, 31')
    else:
        k('s_lshr_b32 s40, s2, 5','s_and_b32 s41, s2, 31')
    chain_body(k,False,'s')
    k('chain_done:')
    return k,(XB0+81920 if TOK else 16448+20480)
```

```python
from common import *
from attn import *
NSTEP=64
SPIN=1<<16
TRACE=False
CSLEEP=0
NOPF=0
PSLEEP=0
WARM=2
PIPE=0
PIPEA=0
BSLEEP=4
TATT=1
W3DMA=0
PFSC=1
FORCESLOW=0
EARLYDMA=0
DP=2
PVL=0
EARLYV=0
W3V=0
WLO=1
EARLYK=1
QRING=1
TOK=1
HSLEEP=32
XB0=40960
RING=8
PFILL=1
def chain_body(k, fast, tag):
    def ts(i):
        if TRACE: k(f's_memtime s[{72+2*i}:{73+2*i}]')
    LS='' if fast else ' sc1'
    LR=' sc1' if (PFSC or not fast) else ''
    started=[False]
    M=64; Q=192; KM=208; VM=224; S=112; P=124; O=132; T=8; MM=3; OB=164; D=180; PT=188; ONE=240; SM=244; MB0=16448; MF=96
    L=lambda n: f'ch_{tag}_{n}'
    MB=36
    lane_consts(k,MB,MM,T)
    k('v_and_b32 v12, 7, v0','v_lshrrev_b32 v13, 4, v0','v_lshlrev_b32 v12, 4, v12','v_lshl_add_u32 v12, v13, 7, v12')
    k('v_and_b32 v14, 15, v0','v_and_b32 v15, 1, v13','v_lshlrev_b32 v14, 4, v14','v_lshl_add_u32 v14, v15, 8, v14')
    k('v_lshrrev_b32 v18, 5, v0','v_bfe_u32 v19, v0, 3, 2','v_and_b32 v20, 7, v0',
      'v_lshlrev_b32 v16, 10, v18','v_lshl_add_u32 v16, v19, 8, v16','v_lshl_add_u32 v16, v20, 4, v16',
      'v_lshlrev_b32 v17, 7, v19','v_lshl_add_u32 v17, v20, 4, v17','v_lshl_add_u32 v17, v18, 3, v17')
    k('v_mov_b32 v21, -2')
    for i in range(4): k(f'v_mov_b32 v{56+i}, -1')
    k('v_and_b32 v18, 8, v0','v_cmp_eq_u32 s[50:51], 0, v18','s_mov_b32 s52, -1','s_mov_b32 s53, 0')
    k('s_lshr_b32 s42, s41, 3','s_and_b32 s43, s41, 7','s_lshl_b32 s44, s40, 2','s_add_u32 s45, s44, s42')
    k('s_cmp_eq_u32 s3, 3',f's_cbranch_scc1 {L("nowa")}')
    k('s_lshl_b32 s12, s3, 8','s_lshl_b32 s13, s45, 3','s_add_u32 s12, s12, s13','s_add_u32 s12, s12, s43',f's_mul_i32 s12, s12, {20*KB}',f's_add_u32 s12, s12, {OFF["WQKV"]}')
    for ks in range(20):
        if ks%4==0 and ks: k('s_add_u32 s12, s12, 4096')
        k(f'buffer_load_dwordx4 {ar(4*ks)}, v2, s[8:11], s12 offen offset:{(ks%4)*KB}')
    k(f'{L("nowa")}:')
    k('s_add_u32 s46, s44, s3')
    k('s_cmp_ge_u32 s41, 20',f's_cbranch_scc1 {L("nowo")}')
    for t in range(2):
        k('s_lshl_b32 s12, s41, 1',f's_add_u32 s12, s12, {t}','s_lshl_b32 s12, s12, 7','s_lshl_b32 s13, s46, 2','s_add_u32 s12, s12, s13','s_lshl_b32 s12, s12, 10',f's_add_u32 s12, s12, {OFF["WO"]}')
        for c in range(4): k(f'buffer_load_dwordx4 {ar(80+16*t+4*c)}, v2, s[8:11], s12 offen offset:{c*KB}')
    k('s_lshl_b32 s54, s46, 12',f's_add_u32 s54, s54, {OFF["QK"]+128*KB}','s_lshl_b32 s55, s46, 13',f's_add_u32 s55, s55, {OFF["VT"]}')
    def pf_k():
        if NOPF and started[0]: return
        for kt in range(2):
            k(f's_add_u32 s12, s54, {kt*256*KB}')
            for ks in range(4): k(f'buffer_load_dwordx4 {ar(112+16*kt+4*ks)}, v2, s[8:11], s12 offen offset:{ks*KB}{LR}')
        k(f's_add_u32 s54, s54, {512*KB}')
        if QRING: k('s_bitset0_b32 s54, 22')
    def pf_v():
        if NOPF and started[0]: return
        for hf in range(2):
            k(f's_add_u32 s12, s55, {hf*4096}')
            for e in range(4): k(f'buffer_load_dwordx4 {ar(144+16*hf+4*e)}, v2, s[8:11], s12 offen offset:{e*KB}{LR}')
        k(f's_add_u32 s55, s55, {256*KB}')
        if QRING: k('s_bitset0_b32 s55, 21')
    k(f'{L("nowo")}:')
    k(f's_mov_b32 s20, {OFF["XN"]}',f's_mul_i32 s21, s3, {14*KB}','s_mov_b32 s24, 0','s_mov_b32 s25, 0')
    k('s_lshl_b32 s12, s45, 2','s_lshr_b32 s13, s43, 1','s_add_u32 s12, s12, s13','s_lshl_b32 s13, s3, 7','s_add_u32 s12, s12, s13','s_lshl_b32 s12, s12, 10',f's_add_u32 s22, s12, {OFF["QK"]}',
      's_lshl_b32 s12, s45, 3','s_add_u32 s12, s12, s43','s_lshl_b32 s12, s12, 10',f's_add_u32 s23, s12, {OFF["VT"]}',
      's_and_b32 s12, s43, 1','s_lshl_b32 s12, s12, 3','v_add_u32 v42, s12, v2')
    def dma1(i,b='s21'):
        k(f's_add_u32 s12, {b}, {i*KB}',f's_min_u32 s12, s12, {39*KB}','s_add_u32 m0, s12, s26','s_add_u32 s12, s12, s20','buffer_load_dwordx4 v2, s[8:11], s12 offen lds')
    def dma_pre(): k('s_and_b32 s26, s25, 1','s_mul_i32 s26, s26, 40960',f's_add_u32 s26, s26, {XB0}')
    def dma_post(): k('s_add_u32 s20, s20, 40960','s_add_u32 s25, s25, 1')
    def tok(dma,tg):
        TX=96; D0=144
        k('s_and_b32 s12, s24, 1','s_mul_i32 s12, s12, 40960',f's_add_u32 s12, s12, {XB0}','v_add_u32 v40, s12, v2')
        if dma: dma_pre()
        nd=14 if dma!=2 else (40-W3DMA+2)//3
        if dma==2: k(f's_mul_i32 s27, s3, {nd*KB}',f's_add_u32 s27, s27, {W3DMA*KB}')
        seq=[(ks,mt) for ks in range(20) for mt in range(2)]
        rd=lambda n: k(f'ds_read_b128 {vr(TX+4*(n%12))}, v40 offset:{(seq[n][1]*20+seq[n][0])*KB}')
        for n in range(12): rd(n)
        for sw in (0,1):
            if sw==0: k('s_cmp_eq_u32 s3, 2',f's_cbranch_scc1 {L("tv"+tg)}')
            else: k(f'{L("tv"+tg)}:')
            for n,(ks,mt) in enumerate(seq):
                k(f's_waitcnt lgkmcnt({min(11,39-n)})')
                X=vr(TX+4*(n%12)); A,B=(ar(4*ks),X) if sw==0 else (X,ar(4*ks))
                k(f'v_mfma_f32_16x16x32_bf16 {vr(D0+4*mt)}, {A}, {B}, {vr(D0+4*mt) if ks else 0}')
                if n+12<40: rd(n+12)
                if dma and DP==2 and n%2==1 and n//2<nd: dma1(n//2,'s27' if dma==2 else 's21')
                if dma and DP==3 and n%3==0 and n//3<nd: dma1(n//3,'s27' if dma==2 else 's21')
            k('s_nop 7','s_nop 7')
            for q in range(4): k(f'v_cvt_pk_bf16_f32 v{D0+8+q}, v{D0+2*q}, v{D0+2*q+1}')
            if sw==0:
                k(f'buffer_store_dwordx2 {vr(D0+8,2)}, v42, s[8:11], s22 offen{LS}',f's_add_u32 s12, s22, {256*KB}',f'buffer_store_dwordx2 {vr(D0+10,2)}, v42, s[8:11], s12 offen{LS}',f's_branch {L("te"+tg)}')
            else: k(f'buffer_store_dwordx4 {vr(D0+8)}, v2, s[8:11], s23 offen{LS}',f'{L("te"+tg)}:')
        k(f's_add_u32 s22, s22, {512*KB}',f's_add_u32 s23, s23, {256*KB}','s_add_u32 s24, s24, 1')
        if QRING: k('s_bitset0_b32 s22, 22','s_bitset0_b32 s23, 21')
        if dma: dma_post()
    def window(tg):
        k('s_cmp_gt_u32 s60, 61',f's_cbranch_scc1 {L("wx"+tg)}','s_cmp_eq_u32 s60, 61',f's_cbranch_scc1 {L("wn"+tg)}')
        tok(2 if (W3DMA and tg=='lo') else True,tg+'a')
        k(f's_branch {L("wx"+tg)}',f'{L("wn"+tg)}:')
        tok(False,tg+'b')
        k(f'{L("wx"+tg)}:')
    if TOK:
        if EARLYDMA: k(f's_mov_b32 s20, {OFF["XN"]+2*40960}','s_mov_b32 s25, 2')
        else:
            k('s_cmp_eq_u32 s3, 3',f's_cbranch_scc1 {L("p1")}')
            for j in range(2):
                dma_pre()
                for i in range(14): dma1(i)
                dma_post()
        k(f'{L("p1")}:','s_waitcnt vmcnt(0)','s_barrier','s_cmp_eq_u32 s3, 3',f's_cbranch_scc1 {L("p2")}')
        tok(False,'p0'); tok(False,'p1')
        k(f'{L("p2")}:','s_waitcnt vmcnt(0)','s_barrier','s_cmp_eq_u32 s3, 3',f's_cbranch_scc1 {L("p3")}')
        dma_pre()
        for i in range(14): dma1(i)
        dma_post()
        k('s_cmp_eq_u32 s3, 0',f's_cbranch_scc0 {L("p3")}')
        k('s_lshl_b32 s12, s40, 2','s_add_u32 s12, s12, 64','v_mov_b32 v44, 1','v_mov_b32 v45, s12','s_mov_b64 exec, 1','buffer_atomic_add v44, v45, s[64:67], 0 offen sc1',
          f's_mov_b32 s61, {SPIN}',f'{L("sy")}:','buffer_load_dword v46, v45, s[64:67], 0 offen sc1','s_waitcnt vmcnt(0)','v_readfirstlane_b32 s12, v46',
          's_sub_u32 s61, s61, 1','s_cmp_eq_u32 s61, 0',f's_cbranch_scc1 {L("sy2")}','s_cmp_lt_u32 s12, 32',f's_cbranch_scc1 {L("sy")}',f'{L("sy2")}:','s_mov_b64 exec, -1')
        k(f'{L("p3")}:','s_barrier')
    k('s_cmp_ge_u32 s41, 20',f's_cbranch_scc1 {L("nopf0")}')
    pf_k(); pf_v()
    started[0]=True
    k(f'{L("nopf0")}:')
    k(f's_mul_i32 s92, s40, 10240',f's_add_u32 s92, s92, {OFF["MEM"]}')
    k(f's_mul_i32 s93, s45, 6144',f's_add_u32 s93, s93, {OFF["QKVM"]}')
    k(f's_mul_i32 s94, s46, 6144',f's_add_u32 s94, s94, {OFF["QKVM"]}')
    k(f's_lshl_b32 s95, s41, 10',f's_add_u32 s95, s95, {OFF["PART"]}')
    TQ=64; TK=96; TKM=128; TV=144; TVM=176; TS=192; TP=204; TO=212
    k('s_sub_u32 s12, s41, 20','s_lshr_b32 s12, s12, 1','s_add_u32 s12, s12, s44','s_and_b32 s91, s41, 1',
      's_lshl_b32 s13, s12, 12','s_lshl_b32 s14, s91, 18','s_add_u32 s68, s13, s14',f's_add_u32 s68, s68, {OFF["QK"]}',f's_add_u32 s69, s13, {OFF["QK"]+128*KB}',
      's_lshl_b32 s70, s12, 13',f's_add_u32 s70, s70, {OFF["VT"]}','s_mul_i32 s71, s12, 6144',f's_add_u32 s71, s71, {OFF["QKVM"]}',
      's_lshl_b32 s14, s91, 17','s_add_u32 s88, s13, s14',f's_add_u32 s88, s88, {OFF["O"]}','s_mov_b32 s89, 0','s_mov_b32 s90, 0')
    def tpf():
        for ks in range(4): k(f'buffer_load_dwordx4 {vr(TQ+4*ks)}, v2, s[8:11], s68 offen offset:{ks*KB}{LR}')
        for kt in range(2):
            k(f's_add_u32 s12, s69, {kt*256*KB}')
            for ks in range(4): k(f'buffer_load_dwordx4 {vr(TK+16*kt+4*ks)}, v2, s[8:11], s12 offen offset:{ks*KB}{LR}')
        for hf in range(2):
            k(f's_add_u32 s12, s70, {hf*4096}')
            for e in range(4): k(f'buffer_load_dwordx4 {vr(TV+16*hf+4*e)}, v2, s[8:11], s12 offen offset:{e*KB}{LR}')
        k(f's_add_u32 s68, s68, {512*KB}',f's_add_u32 s69, s69, {512*KB}',f's_add_u32 s70, s70, {256*KB}')
        if QRING: k('s_bitset0_b32 s68, 22','s_bitset0_b32 s69, 22','s_bitset0_b32 s70, 21')
    if TATT:
        k('s_cmp_eq_u32 s3, 3',f's_cbranch_scc0 {L("not")}','s_cmp_lt_u32 s41, 20',f's_cbranch_scc1 {L("not")}','s_cmp_ge_u32 s41, 28',f's_cbranch_scc1 {L("not")}','s_mov_b32 s90, 1')
        tpf()
        k(f'{L("not")}:')
    k('s_lshr_b32 s12, s43, 1','s_lshl_b32 s12, s12, 9','s_and_b32 s13, s43, 1','s_lshl_b32 s13, s13, 3','s_add_u32 s12, s12, s13','s_lshl_b32 s13, s3, 11','s_add_u32 s12, s12, s13')
    k('s_cmp_eq_u32 s3, 2',f's_cbranch_scc1 {L("vo")}','v_add_u32 v22, s12, v12',f's_branch {L("vo2")}',f'{L("vo")}:','v_add_u32 v22, s12, v14',f'{L("vo2")}:')
    k('s_mov_b32 s60, 0')
    for i in range(48): k(f'v_mov_b32 v{Q+i}, 0')
    for i in range(4): k(f'v_mov_b32 v{ONE+i}, 0x3f803f80')
    k('s_lshl_b32 s62, s3, 10','v_add_u32 v23, s62, v2','s_cmp_eq_u32 s3, 0','s_cselect_b32 s67, 9216, 0','s_waitcnt vmcnt(0)')
    k(f'{L("loop")}:')
    ts(0)
    k(f's_and_b32 s12, s60, {RING-1}',f's_mul_i32 s13, s12, {8*10240}','s_add_u32 s56, s92, s13',f's_mul_i32 s13, s12, {32*6144}','s_add_u32 s57, s93, s13','s_add_u32 s58, s94, s13',
      f's_mul_i32 s13, s12, {8*20*KB}','s_add_u32 s59, s95, s13',f's_add_u32 s47, s60, {WARM}',f's_and_b32 s47, s47, {RING-1}')
    k('s_and_b32 s12, s60, 1','s_mul_i32 s63, s12, 10240',f's_add_u32 s63, s63, {MB0}','v_add_u32 v18, s63, v23')
    def warm_stores(wait):
        k(f's_mul_i32 s12, s47, {32*6144}',f's_mul_i32 s13, s44, 6144','s_add_u32 s12, s12, s13',f's_add_u32 s12, s12, {OFF["QKVM"]}','s_lshl_b32 s13, s41, 10','s_add_u32 s12, s12, s13')
        k(f's_mul_i32 s15, s47, {8*10240}','s_add_u32 s15, s15, s92')
        k(f's_sub_u32 s14, s15, {24*1024}','s_add_u32 s14, s14, s13','s_cmp_lt_u32 s41, 24','s_cselect_b32 s12, s12, s14',
          f'buffer_store_dwordx4 v[56:59], v2, s[8:11], s12 offen{LS}',
          's_add_u32 s14, s15, 8192','s_and_b32 s13, s13, 1024','s_add_u32 s14, s14, s13',f'buffer_store_dwordx4 v[56:59], v2, s[8:11], s14 offen{LS}')
        if wait: k('s_waitcnt vmcnt(0)')
    if WARM:
        k('s_cmp_eq_u32 s3, 3',f's_cbranch_scc0 {L("nw")}',f's_cmp_gt_u32 s60, {63-WARM}',f's_cbranch_scc1 {L("nw")}')
        if WLO: k('s_cmp_lt_u32 s41, 20',f's_cbranch_scc1 {L("nw")}')
        warm_stores(True)
        k(f'{L("nw")}:')
    k('s_cmp_eq_u32 s3, 3',f's_cbranch_scc1 {L("A3")}')
    k('s_add_u32 s64, s56, 3072','s_add_u32 s65, s56, 6144','s_add_u32 s66, s56, s67')
    def aiss(st):
        b0=M+16*st
        k(f'buffer_load_dwordx4 {vr(b0)}, v23, s[8:11], s56 offen sc1',f'buffer_load_dwordx4 {vr(b0+4)}, v23, s[8:11], s64 offen sc1',
          f'buffer_load_dwordx4 {vr(b0+8)}, v23, s[8:11], s65 offen sc1',f'buffer_load_dwordx4 {vr(b0+12)}, v23, s[8:11], s66 offen sc1')
    if PIPEA: aiss(0)
    k(f's_mov_b32 s61, {SPIN}',f'{L("Ap")}:')
    for st in range(2):
        b0=M+16*st
        aiss(1-st) if PIPEA else aiss(st)
        k('s_waitcnt vmcnt(4)' if PIPEA else 's_waitcnt vmcnt(0)',f'v_max3_u32 v{T}, v{b0}, v{b0+2}, v{b0+4}',f'v_max3_u32 v{T+1}, v{b0+6}, v{b0+8}, v{b0+10}',f'v_max3_u32 v{T}, v{T}, v{b0+12}, v{b0+14}',f'v_max_u32 v{T}, v{T}, v{T+1}')
        k(f'v_cmp_eq_u32 vcc, -1, v{T}','s_sub_u32 s61, s61, 1','s_cmp_eq_u32 s61, 0',f's_cbranch_scc1 {L("Ad%d"%st)}',f's_cbranch_vccz {L("Ad%d"%st)}')
    k(f's_branch {L("Ap")}')
    for st in range(2):
        b0=M+16*st
        k(f'{L("Ad%d"%st)}:',f'ds_write_b128 v18, {vr(b0)}',f'ds_write_b128 v18, {vr(b0+4)} offset:3072',f'ds_write_b128 v18, {vr(b0+8)} offset:6144',
          's_cmp_eq_u32 s3, 0',f's_cbranch_scc0 {L("A3")}',f'ds_write_b128 v18, {vr(b0+12)} offset:9216',f's_branch {L("A3")}')
    k(f'{L("A3")}:')
    if TRACE: k('s_cmp_eq_u32 s3, 3',f's_cbranch_scc1 {L("t4")}',f's_sub_u32 s84, {SPIN}, s61',f'{L("t4")}:')
    k('v_add_u32 v18, s63, v12','s_waitcnt lgkmcnt(0)','s_barrier')
    ts(1)
    k('s_cmp_eq_u32 s3, 3',f's_cbranch_scc1 {L("B")}')
    if TRACE: k('s_waitcnt lgkmcnt(0)')
    for ks in range(12): k(f'ds_read_b128 {vr(MF+4*ks)}, v18 offset:{ks*512}')
    for sw in (0,1):
        if sw==0: k('s_cmp_eq_u32 s3, 2',f's_cbranch_scc1 {L("Av")}')
        else: k(f'{L("Av")}:')
        for ks in range(20):
            k(f's_waitcnt lgkmcnt({min(11,19-ks)})')
            A,B=(ar(4*ks),vr(MF+4*(ks%12))) if sw==0 else (vr(MF+4*(ks%12)),ar(4*ks))
            k(f'v_mfma_f32_16x16x32_bf16 {vr(D)}, {A}, {B}, {vr(D) if ks else 0}')
            if ks+12<20: k(f'ds_read_b128 {vr(MF+4*ks)}, v18 offset:{(ks+12)*512}')
        k('s_nop 7',f'v_cvt_pk_bf16_f32 v{PT}, v{D}, v{D+1}',f'v_cvt_pk_bf16_f32 v{PT+1}, v{D+2}, v{D+3}',f'v_min_u32 v{PT}, v{PT}, v21')
        k(f's_mov_b64 exec, s[{50 if sw==0 else 52}:{51 if sw==0 else 53}]',f'buffer_store_dwordx2 {vr(PT,2)}, v22, s[8:11], s57 offen{LS}','s_mov_b64 exec, -1')
        if sw==0: k(f's_branch {L("B")}')
    k(f'{L("B")}:','s_cmp_ge_u32 s41, 20',f's_cbranch_scc1 {L("hi")}',f's_cmp_eq_u32 s60, {NSTEP-1}',f's_cbranch_scc1 {L("end")}')
    ts(2)
    if TOK and W3DMA:
        k('s_cmp_eq_u32 s3, 3',f's_cbranch_scc0 {L("bsl")}','s_cmp_gt_u32 s60, 60',f's_cbranch_scc1 {L("bsl")}',
          's_add_u32 s25, s60, 3','s_mul_i32 s20, s25, 40960',f's_add_u32 s20, s20, {OFF["XN"]}')
        dma_pre()
        for i in range(W3DMA): k(f's_add_u32 m0, s26, {i*KB}',f's_add_u32 s12, s20, {i*KB}','buffer_load_dwordx4 v2, s[8:11], s12 offen lds')
        k(f's_branch {L("bsd")}',f'{L("bsl")}:')
    k(f's_sleep {BSLEEP}') if BSLEEP else None
    k(f'{L("bsd")}:')
    k(f's_mov_b32 s61, {SPIN}',f'{L("Bp")}:','s_mov_b64 exec, s[50:51]')
    for ks in range(4): k(f'buffer_load_dwordx4 {vr(Q+4*ks)}, v12, s[8:11], s58 offen offset:{ks*512} sc1')
    for ks in range(4): k(f'buffer_load_dwordx4 {vr(KM+4*ks)}, v12, s[8:11], s58 offen offset:{2048+ks*512} sc1')
    k('s_add_u32 s12, s58, 4096','s_mov_b64 exec, s[52:53]')
    for ep in range(4): k(f'buffer_load_dwordx4 {vr(VM+4*ep)}, v14, s[8:11], s12 offen offset:{ep*512} sc1')
    k('s_mov_b64 exec, -1')
    for i in range(12):
        k(f's_waitcnt vmcnt({11-i})')
        b=Q+4*i
        if i==0: k(f'v_max_u32 v{T}, v{b}, v{b+2}')
        else: k(f'v_max3_u32 v{T}, v{T}, v{b}, v{b+2}')
        if i<4:
            for t in range(2): k(f'v_mfma_f32_16x16x32_bf16 {vr(S+4*t)}, {ar(112+16*t+4*i)}, {vr(Q+4*i)}, {vr(S+4*t) if i else 0}')
        elif i<8:
            k(f'v_mfma_f32_16x16x32_bf16 {vr(S+8)}, {vr(KM+4*(i-4))}, {vr(Q+4*(i-4))}, {vr(S+8) if i>4 else 0}')
    k(f'v_cmp_eq_u32 vcc, -1, v{T}','s_sub_u32 s61, s61, 1','s_cmp_eq_u32 s61, 0',f's_cbranch_scc1 {L("Bd")}',f's_cbranch_vccnz {L("Bp")}',f'{L("Bd")}:')
    ts(3)
    if TRACE: k('s_cmp_eq_u32 s3, 3',f's_cbranch_scc1 {L("t3")}',f's_sub_u32 s82, {SPIN}, s61',f'{L("t3")}:')
    if EARLYK: pf_k()
    vals=[S+i for i in range(12)]
    for i in range(4): k(f'v_add_f32 v{S+8+i}, v{S+8+i}, v{MM}')
    m=T
    k(f'v_max3_f32 v{m}, v{S}, v{S+1}, v{S+2}',f'v_max3_f32 v{m+1}, v{S+3}, v{S+4}, v{S+5}',f'v_max3_f32 v{m}, v{m}, v{S+6}, v{S+7}',f'v_max3_f32 v{m+1}, v{m+1}, v{S+8}, v{S+9}',
      f'v_max3_f32 v{m}, v{m}, v{S+10}, v{S+11}',f'v_max_f32 v{m}, v{m}, v{m+1}')
    xred(k,'v_max_f32',m,T+1)
    k(f'v_mul_f32 v{m}, 0x{CS:x}, v{m}',f's_mov_b32 s39, 0x{CS:x}')
    for v in vals: k(f'v_fma_f32 v{v}, v{v}, s39, -v{m}')
    for v in vals: k(f'v_exp_f32 v{v}, v{v}')
    k('s_nop 0')
    for t in range(3): k(f'v_cvt_pk_bf16_f32 v{P+2*t}, v{S+4*t}, v{S+4*t+1}',f'v_cvt_pk_bf16_f32 v{P+2*t+1}, v{S+4*t+2}, v{S+4*t+3}')
    k('s_nop 1')
    def pv1(et): k(f'v_mfma_f32_16x16x32_bf16 {vr(O+4*et)}, {ar(144+4*et)}, {vr(P)}, 0')
    def pv2(et): k(f'v_mfma_f32_16x16x16_bf16 {vr(O+4*et)}, {vr(VM+2*et,2)}, {vr(P+4,2)}, {vr(O+4*et)}')
    def cv(c):
        r0=O+8*c; t=OB+4*c
        k(f'v_cvt_pk_bf16_f32 v{t}, v{r0}, v{r0+1}',f'v_cvt_pk_bf16_f32 v{t+1}, v{r0+2}, v{r0+3}',
          f'v_cvt_pk_bf16_f32 v{t+2}, v{r0+4}, v{r0+5}',f'v_cvt_pk_bf16_f32 v{t+3}, v{r0+6}, v{r0+7}')
    def wo(c):
        for t in range(2): k(f'v_mfma_f32_16x16x32_bf16 {vr(D+4*t)}, {ar(80+16*t+4*c)}, {vr(OB+4*c)}, {vr(D+4*t) if c else 0}')
    for et in range(8): pv1(et)
    if EARLYV==1: pf_v()
    k(f'v_mfma_f32_16x16x32_bf16 {vr(SM)}, {vr(ONE)}, {vr(P)}, 0')
    for et in range(8): pv2(et)
    k(f'v_mfma_f32_16x16x16_bf16 {vr(SM)}, {vr(ONE,2)}, {vr(P+4,2)}, {vr(SM)}')
    if EARLYV==2: pf_v()
    k('s_nop 1'); cv(0); cv(1); wo(0); cv(2); wo(1); k(f'v_rcp_f32 v{T}, v{SM}'); cv(3); wo(2); k('s_nop 0'); wo(3)
    k('s_nop 7')
    for i in range(8): k(f'v_mul_f32 v{D+i}, v{D+i}, v{T}')
    k('s_and_b32 s12, s60, 1','s_lshl_b32 s12, s12, 13','s_lshl_b32 s13, s3, 11','s_add_u32 s13, s13, s12','v_add_u32 v18, s13, v2')
    k(f'ds_write_b128 v18, {vr(D)}',f'ds_write_b128 v18, {vr(D+4)} offset:1024','s_waitcnt lgkmcnt(0)','s_barrier')
    ts(4)
    k('s_cmp_eq_u32 s3, 3',f's_cbranch_scc0 {L("pf")}')
    k('v_add_u32 v18, s12, v16')
    for hh in range(4): k(f'ds_read_b128 {vr(M+4*hh)}, v18 offset:{hh*2048}')
    k('s_waitcnt lgkmcnt(0)')
    for q in range(4): k(f'v_add_f32 v{M+q}, v{M+q}, v{M+4+q}',f'v_add_f32 v{M+8+q}, v{M+8+q}, v{M+12+q}',f'v_add_f32 v{M+q}, v{M+q}, v{M+8+q}')
    k(f'v_min_u32 v{M}, v{M}, v21',f's_mul_i32 s12, s40, {20*KB}','s_add_u32 s12, s12, s59',f'buffer_store_dwordx4 {vr(M)}, v2, s[8:11], s12 offen sc1')
    ts(5)
    k('s_add_u32 s48, s60, 1',f's_and_b32 s48, s48, {RING-1}',f's_mul_i32 s48, s48, {8*10240}','s_add_u32 s48, s48, s92')
    if not EARLYK: pf_k()
    if not EARLYV and not W3V: pf_v()
    if CSLEEP: k(f's_sleep {CSLEEP}')
    def ciss(st):
        k('s_mov_b32 s12, s59')
        for x in range(8): k(f'buffer_load_dwordx4 {vr(M+16+32*st+4*x)}, v2, s[8:11], s12 offen sc1',f's_add_u32 s12, s12, {20*KB}')
    if PIPE: ciss(0)
    k(f's_mov_b32 s61, {SPIN}',f'{L("Cp")}:')
    for st in range(2):
        b=M+16+32*st
        ciss(1-st) if PIPE else ciss(st)
        k('s_waitcnt vmcnt(8)' if PIPE else 's_waitcnt vmcnt(0)')
        k(f'v_max3_u32 v{T}, v{b}, v{b+4}, v{b+8}',f'v_max3_u32 v{T+1}, v{b+12}, v{b+16}, v{b+20}',f'v_max3_u32 v{T}, v{T}, v{b+24}, v{b+28}',f'v_max_u32 v{T}, v{T}, v{T+1}')
        k(f'v_cmp_eq_u32 vcc, -1, v{T}','s_sub_u32 s61, s61, 1','s_cmp_eq_u32 s61, 0',f's_cbranch_scc1 {L("Cd%d"%st)}',f's_cbranch_vccz {L("Cd%d"%st)}')
    k(f's_branch {L("Cp")}')
    for st in range(2):
        b=M+16+32*st
        k(f'{L("Cd%d"%st)}:')
        ts(6)
        for q in range(4):
            k(f'v_add_f32 v{b+q}, v{b+q}, v{b+4+q}',f'v_add_f32 v{b+8+q}, v{b+8+q}, v{b+12+q}',f'v_add_f32 v{b+16+q}, v{b+16+q}, v{b+20+q}',f'v_add_f32 v{b+24+q}, v{b+24+q}, v{b+28+q}',
              f'v_add_f32 v{b+q}, v{b+q}, v{b+8+q}',f'v_add_f32 v{b+16+q}, v{b+16+q}, v{b+24+q}',f'v_add_f32 v{b+q}, v{b+q}, v{b+16+q}')
        k(f'v_cvt_pk_bf16_f32 v{PT}, v{b}, v{b+1}',f'v_cvt_pk_bf16_f32 v{PT+1}, v{b+2}, v{b+3}',f'v_min_u32 v{PT}, v{PT}, v21')
        if st==0: k(f's_branch {L("Ce")}')
    k(f'{L("Ce")}:')
    k('s_lshl_b32 s12, s41, 9','s_add_u32 s12, s12, s48',f'buffer_store_dwordx2 {vr(PT,2)}, v17, s[8:11], s12 offen{LS}')
    if W3V: pf_v()
    k(f's_branch {L("next")}',f'{L("pf")}:')
    if PSLEEP: k(f's_sleep {PSLEEP}')
    if WARM and WLO:
        k('s_cmp_eq_u32 s3, 1',f's_cbranch_scc0 {L("nwl")}',f's_cmp_gt_u32 s60, {63-WARM}',f's_cbranch_scc1 {L("nwl")}')
        warm_stores(False)
        k(f'{L("nwl")}:')
    if WARM and PFILL:
        k('s_cmp_eq_u32 s3, 0',f's_cbranch_scc0 {L("npf")}',f's_cmp_gt_u32 s60, {63-WARM}',f's_cbranch_scc1 {L("npf")}',
          f's_mul_i32 s12, s40, {20*KB}','s_add_u32 s12, s12, s95',f's_mul_i32 s13, s47, {8*20*KB}','s_add_u32 s12, s12, s13','buffer_store_dwordx4 v[56:59], v2, s[8:11], s12 offen sc1',f'{L("npf")}:')
    if not EARLYK: pf_k()
    if not PVL and not EARLYV: pf_v()
    if TOK: window('lo')
    if PVL: pf_v()
    k(f'{L("next")}:')
    if TRACE:
        ts(7)
        k('s_waitcnt lgkmcnt(0)')
        k('s_lshl_b32 s12, s40, 5','s_add_u32 s12, s12, s41','s_lshl_b32 s12, s12, 2','s_add_u32 s12, s12, s3','s_lshl_b32 s12, s12, 11','s_lshl_b32 s13, s60, 5','s_add_u32 s12, s12, s13',f's_add_u32 s12, s12, {OFF["TR"]}')
        for i in range(8): k(f'v_mov_b32 v{24+i}, s{72+2*i}')
        k('v_mov_b32 v32, 0','s_mov_b64 exec, 1','buffer_store_dwordx4 v[24:27], v32, s[8:11], s12 offen','buffer_store_dwordx4 v[28:31], v32, s[8:11], s12 offen offset:16','s_mov_b64 exec, -1')
    k('s_add_u32 s60, s60, 1',f's_branch {L("loop")}')
    k(f'{L("end")}:','s_endpgm')
    k(f'{L("hi")}:')
    if TOK:
        k('s_cmp_eq_u32 s3, 3',f's_cbranch_scc1 {L("hi3")}')
        if HSLEEP: k(f's_sleep {HSLEEP}')
        window('hi')
        k(f's_branch {L("hid")}',f'{L("hi3")}:')
    if TATT:
        k('s_cmp_eq_u32 s90, 0',f's_cbranch_scc1 {L("hid")}','s_cmp_eq_u32 s60, 0',f's_cbranch_scc1 {L("hid")}')
        k(f'{L("tl")}:',f's_mov_b32 s61, {SPIN}',f's_and_b32 s49, s89, {RING-1}',f's_mul_i32 s49, s49, {32*6144}','s_add_u32 s49, s49, s71',f'{L("tp")}:')
        for ks in range(4): k(f'buffer_load_dwordx4 {vr(TKM+4*ks)}, v12, s[8:11], s49 offen offset:{2048+ks*512} sc1')
        k('s_add_u32 s12, s49, 4096')
        for ep in range(4): k(f'buffer_load_dwordx4 {vr(TVM+4*ep)}, v14, s[8:11], s12 offen offset:{ep*512} sc1')
        k('s_waitcnt vmcnt(0)')
        regs=[TKM+4*i for i in range(4)]+[TVM+4*i for i in range(4)]
        for i,b in enumerate(regs):
            if i==0: k(f'v_max_u32 v{T}, v{b}, v{b+2}')
            else: k(f'v_max3_u32 v{T}, v{T}, v{b}, v{b+2}')
        k(f'v_cmp_eq_u32 vcc, -1, v{T}','s_sub_u32 s61, s61, 1','s_cmp_eq_u32 s61, 0',f's_cbranch_scc1 {L("td")}',f's_cbranch_vccnz {L("tp")}',f'{L("td")}:')
        k('s_cmp_eq_u32 s91, 0',f's_cbranch_scc0 {L("tq1")}')
        attn_core(k,TQ,TK,TKM,TV,TVM,TS,TP,TO,T,[0],0,MB,MM)
        k(f's_branch {L("tq2")}',f'{L("tq1")}:')
        attn_core(k,TQ,TK,TKM,TV,TVM,TS,TP,TO,T,[0,1],1,MB,MM)
        k(f'{L("tq2")}:')
        for c in range(4):
            r0=TO+8*c; t=TKM+4*c
            k(f'v_cvt_pk_bf16_f32 v{t}, v{r0}, v{r0+1}',f'v_cvt_pk_bf16_f32 v{t+1}, v{r0+2}, v{r0+3}',
              f'v_cvt_pk_bf16_f32 v{t+2}, v{r0+4}, v{r0+5}',f'v_cvt_pk_bf16_f32 v{t+3}, v{r0+6}, v{r0+7}',
              f'buffer_store_dwordx4 {vr(t)}, v2, s[8:11], s88 offen offset:{c*KB}')
        k(f's_add_u32 s88, s88, {256*KB}','s_add_u32 s89, s89, 1','s_cmp_ge_u32 s89, 64',f's_cbranch_scc1 {L("end")}')
        tpf()
        k(f's_cmp_eq_u32 s60, {NSTEP-1}',f's_cbranch_scc1 {L("tl")}')
    k(f'{L("hid")}:',f's_cmp_eq_u32 s60, {NSTEP-1}',f's_cbranch_scc1 {L("end")}',f's_branch {L("next")}')
def gen_chain(use_fast=False):
    k=K('chain_kernel',vgpr=248,agpr=176,sgpr=96)
    k('s_cmp_ge_u32 s2, 256','s_cbranch_scc1 chain_done')
    k.srd(8,'ws',WS_BYTES)
    k('v_lshrrev_b32 v1, 6, v0','s_nop 0','v_readfirstlane_b32 s3, v1','v_and_b32 v0, 63, v0','v_lshlrev_b32 v2, 4, v0')
    if TOK and EARLYDMA:
        k('s_cmp_eq_u32 s3, 3','s_cbranch_scc1 ch_nodma',f's_mul_i32 s21, s3, {14*KB}')
        for j in range(2):
            for i in range(14):
                k(f's_add_u32 s12, s21, {i*KB}',f's_min_u32 s12, s12, {39*KB}',f's_add_u32 m0, s12, {XB0+j*40960}',f's_add_u32 s12, s12, {OFF["XN"]+j*40960}','buffer_load_dwordx4 v2, s[8:11], s12 offen lds')
        k('ch_nodma:')
    if use_fast:
        k.srd(64,'dbg',256)
        k('s_getreg_b32 s40, hwreg(HW_REG_XCC_ID)','s_and_b32 s40, s40, 7')
        k('s_cmp_eq_u32 s3, 0','s_cbranch_scc0 ch_reg_wait')
        k('v_mov_b32 v4, 1','s_lshl_b32 s12, s40, 2','v_mov_b32 v5, s12','s_mov_b64 exec, 1',
          'buffer_atomic_add v4, v5, s[64:67], 0 offen sc0 sc1','s_waitcnt vmcnt(0)',
          'v_mov_b32 v6, 1','v_mov_b32 v7, 32','buffer_atomic_add v6, v7, s[64:67], 0 offen sc0 sc1','s_waitcnt vmcnt(0)',
          's_mov_b64 exec, -1')
        k(f's_mov_b32 s61, {SPIN}','v_lshlrev_b32 v8, 2, v0','ch_reg_poll:','buffer_load_dword v9, v8, s[64:67], 0 offen sc1','s_waitcnt vmcnt(0)',
          'v_readlane_b32 s12, v9, 8','s_sub_u32 s61, s61, 1','s_cmp_eq_u32 s61, 0','s_cbranch_scc1 ch_reg_got','s_cmp_lt_u32 s12, 256','s_cbranch_scc1 ch_reg_poll','ch_reg_got:')
        k('v_cmp_ne_u32 vcc, 32, v9','s_nop 1','s_and_b32 s12, vcc_lo, 0xff','v_readfirstlane_b32 s13, v4','v_readfirstlane_b32 s14, v6',
          's_cmp_eq_u32 s12, 0',f's_cselect_b32 s15, {0 if FORCESLOW else 1}, 0',
          'v_mov_b32 v11, s13','v_mov_b32 v12, s14','v_mov_b32 v10, s15','v_mov_b32 v8, 16384','ds_write_b96 v8, v[10:12]','s_waitcnt lgkmcnt(0)')
        k('ch_reg_wait:','s_barrier','v_mov_b32 v8, 16384','ds_read_b96 v[12:14], v8','s_waitcnt lgkmcnt(0)',
          'v_readfirstlane_b32 s15, v12','v_readfirstlane_b32 s41, v13','v_readfirstlane_b32 s14, v14','s_cmp_eq_u32 s15, 1','s_cbranch_scc0 ch_slow')
        chain_body(k,True,'f')
        k('ch_slow:','s_lshr_b32 s40, s14, 5','s_and_b32 s41, s14, 31')
    else:
        k('s_lshr_b32 s40, s2, 5','s_and_b32 s41, s2, 31')
    chain_body(k,False,'s')
    k('chain_done:')
    return k,(XB0+81920 if TOK else 16448+20480)
```
